```python
import torch

def _softmax(x, axis=-1):
    return torch.softmax(x, dim=axis)
def _gelu(x):
    return torch.nn.functional.gelu(x, approximate="tanh")
def _silu(x):
    return torch.nn.functional.silu(x)
def _sigmoid(x):
    return torch.sigmoid(x)
def _layernorm(x, axis=-1, eps=1e-5):
    m = x.mean(dim=axis, keepdim=True)
    v = x.var(dim=axis, keepdim=True, unbiased=False)
    return (x - m) / torch.sqrt(v + eps)
def _scatter_add(tgt, idx, src, axis=0):
    return tgt.clone().index_add_(axis, idx, src)
def _segment_sum(src, seg, n):
    out = torch.zeros((n,) + src.shape[1:], dtype=src.dtype)
    return out.index_add_(0, seg, src)
def _pad(x, pw):
    flat = tuple(v for pair in reversed(pw) for v in pair)
    return torch.nn.functional.pad(x, flat)

kernel_name = 'interleave_layers__spectral_gfnet__glu_gated_reglu__prompt'

def setup_inputs():

    _w = (lambda a: (lambda t: t.to(torch.bfloat16) if t.is_floating_point() else t)(torch.as_tensor(a)))
    def _A_setup():
        B, S, D = 1, 2048, 512
        Df = D // 2 + 1
        return {
            "x": _w((lambda *s: torch.randn(*s, dtype=torch.bfloat16) * 0.05)(B, S, D)),
            "w_r": _w((lambda *s: torch.randn(*s, dtype=torch.bfloat16) * 0.4)(S, Df) * 0.02),
            "w_i": _w((lambda *s: torch.randn(*s, dtype=torch.bfloat16) * 0.4)(S, Df) * 0.02),
        }
    _A_in = _A_setup()

    def _B_setup():
        B, S, D, F = 1, 2048, 512, 1376
        return {
            "x": _w((lambda *s: torch.randn(*s, dtype=torch.bfloat16) * 0.05)(B, S, D)),
            "W_gate": _w((lambda *s: torch.randn(*s, dtype=torch.bfloat16) * 0.2)(D, F) * (2.0 / D) ** 0.5),
            "W_up": _w((lambda *s: torch.randn(*s, dtype=torch.bfloat16) * 0.2)(D, F) * (2.0 / D) ** 0.5),
            "W_down": _w((lambda *s: torch.randn(*s, dtype=torch.bfloat16) * 0.2)(F, D) * (1.0 / F) ** 0.5),
        }
    _B_in = _B_setup()

    return {
        "A_x": _A_in["x"],
        "A_w_r": _A_in["w_r"],
        "A_w_i": _A_in["w_i"],
        "B_x": _B_in["x"],
        "B_W_gate": _B_in["W_gate"],
        "B_W_up": _B_in["W_up"],
        "B_W_down": _B_in["W_down"],
    }

def reference(A_x, A_w_r, A_w_i, B_x, B_W_gate, B_W_up, B_W_down):
    def _A_ref(x, w_r, w_i):
        B, S, D = x.shape
        X = (lambda x, axes=(-2,-1): torch.fft.rfft2(x.float(), dim=axes))(x, axes=(-2, -1))
        W = w_r + 1j * w_i
        X = X * W
        y = (lambda x, s, axes=(-2,-1): torch.fft.irfft2(x, s=s, dim=axes).to(torch.bfloat16))(X, (S, D), axes=(-2, -1))
        return y

    def _B_ref(x, W_gate, W_up, W_down):
        gate = torch.einsum("bsd,df->bsf", x, W_gate)
        up = torch.einsum("bsd,df->bsf", x, W_up)
        gate = gate * (lambda x, dt: x.to(dt))(gate > 0, gate.dtype)
        h = gate * up
        return torch.einsum("bsf,fd->bsd", h, W_down)

    x = A_x
    x = x + _A_ref(_layernorm(x, axis=-1), A_w_r, A_w_i)
    x = x + _B_ref(_layernorm(x, axis=-1), B_W_gate, B_W_up, B_W_down)
    x = x + _A_ref(_layernorm(x, axis=-1), A_w_r, A_w_i)
    x = x + _B_ref(_layernorm(x, axis=-1), B_W_gate, B_W_up, B_W_down)
    return x
```

```python
import re, copy, struct

def f2u(x):
    return struct.unpack("<I", struct.pack("<f", x))[0]
def fhex(x):
    return "0x%08x" % f2u(x)

_REG = re.compile(r"^(-?)(?:abs\(|\|)?([vas])(?:(\d+)|\[(\d+):(\d+)\])\)?\|?$")
def regs_of(tok):
    tok = tok.strip()
    if tok in ("vcc",): return {("s", "vcc")}
    if tok in ("vcc_lo", "vcc_hi"): return {("s", "vcc")}
    if tok in ("exec", "exec_lo", "exec_hi"): return {("s", "exec")}
    if tok == "m0": return {("s", "m0")}
    m = _REG.match(tok)
    if not m: return set()
    k = m.group(2)
    if m.group(3) is not None: return {(k, int(m.group(3)))}
    return {(k, i) for i in range(int(m.group(4)), int(m.group(5)) + 1)}

TRANS = ("v_exp_f32", "v_log_f32", "v_rcp_f32", "v_rsq_f32", "v_sqrt_f32", "v_sin_f32", "v_cos_f32", "v_rcp_iflag_f32")

def split_ops(s):
    out, depth, cur = [], 0, ""
    for ch in s:
        if ch in "[(": depth += 1
        if ch in "])": depth -= 1
        if ch == "," and depth == 0:
            out.append(cur.strip()); cur = ""
        else: cur += ch
    if cur.strip(): out.append(cur.strip())
    return out

class Ins:
    __slots__ = ("text", "mn", "w", "r", "cls", "ws", "passes", "srcc", "ab", "dpp", "widestore", "data")
    def __init__(self, text):
        self.text = text
        t = text.split(";")[0].strip()
        parts = t.split(None, 1)
        mn = parts[0]; self.mn = mn
        ops = split_ops(parts[1]) if len(parts) > 1 else []
        mods = ""
        if ops:
            l = ops[-1].split(None, 1)
            ops[-1] = l[0]
            if len(l) > 1: mods = l[1]
        R = [regs_of(o) for o in ops]
        self.w, self.r = set(), set()
        self.ws = 1; self.passes = 0; self.srcc = set(); self.ab = set(); self.dpp = False; self.widestore = False; self.data = set()
        U = lambda l: set().union(*l) if l else set()
        if mn == "s_nop":
            self.cls = "nop"; self.ws = int(ops[0], 0) + 1
        elif mn.startswith("v_mfma"):
            self.cls = "mfma"; self.w = R[0]; self.ab = R[1] | R[2]; self.srcc = R[3]; self.r = self.ab | self.srcc
            self.passes = 8 if "32x32x16" in mn else 4 if "16x16x32" in mn else None
            assert self.passes, mn
        elif mn.startswith("v_"):
            base = re.sub(r"_(e32|e64|dpp|sdwa)$", "", mn)
            self.cls = "trans" if base in TRANS else "valu"
            self.dpp = mn.endswith("_dpp")
            if base.startswith("v_permlane") or base == "v_swap_b32":
                self.w = R[0] | R[1]; self.r = R[0] | R[1]
            elif base.startswith("v_cmpx"):
                self.w = R[0] | {("s", "exec")}; self.r = U(R[1:])
            elif base in ("v_add_co_u32", "v_sub_co_u32", "v_addc_co_u32", "v_subb_co_u32", "v_subrev_co_u32", "v_mad_u64_u32"):
                self.w = R[0] | R[1]; self.r = U(R[2:])
            else:
                self.w = R[0]; self.r = U(R[1:])
                if base in ("v_fmac_f32", "v_dot2c_f32_bf16", "v_pk_fmac_f16", "v_writelane_b32") or self.dpp or mn.endswith("_sdwa"):
                    self.r |= R[0]
            if base.startswith("v_dot"): self.cls = "dot"
        elif mn.startswith("ds_"):
            self.cls = "ds"
            if mn.startswith("ds_read") or mn.startswith("ds_bpermute") or mn.startswith("ds_swizzle") or mn.startswith("ds_permute"):
                self.w = R[0]; self.r = U(R[1:])
            else: self.r = U(R)
        elif mn.startswith("buffer_") or mn.startswith("global_"):
            self.cls = "vm"
            islds = (" lds" in (" " + mods)) or "load_lds" in mn
            if mn in ("buffer_inv", "buffer_wbl2"): pass
            elif islds: self.r = U(R) | {("s", "m0")}; self.cls = "vm"
            elif "_load_" in mn: self.w = R[0]; self.r = U(R[1:])
            elif "atomic" in mn and "sc0" in mods.split():
                self.w = R[0]; self.r = U(R) if mn.startswith("buffer_") else U(R[1:])
            else:
                self.r = U(R)
                if "dwordx4" in mn or "dwordx3" in mn:
                    self.widestore = True; self.data = R[0] if mn.startswith("buffer_") else R[1]
        elif mn.startswith("s_load") or mn.startswith("s_memtime") or mn.startswith("s_memrealtime") or mn.startswith("s_buffer_load"):
            self.cls = "smem"; self.w = R[0]; self.r = U(R[1:])
        elif mn.startswith("s_"):
            self.cls = "salu"
            if mn.startswith(("s_cmp", "s_cbranch", "s_branch", "s_waitcnt", "s_barrier", "s_endpgm", "s_sleep", "s_setprio", "s_bitcmp", "s_setpc")):
                self.r = U(R)
            elif "saveexec" in mn: self.w = R[0] | {("s", "exec")}; self.r = U(R[1:]) | {("s", "exec")}
            else: self.w = R[0]; self.r = U(R[1:])
        else:
            raise ValueError("unknown instr: " + text)

def isv(regs): return {x for x in regs if x[0] in "va"}
def iss(regs): return {x for x in regs if x[0] == "s"}
VALUISH = ("valu", "trans", "dot")

def need(p, c):
    n = 0
    cbase = re.sub(r"_(e32|e64|dpp|sdwa)$", "", c.mn)
    if p.cls in VALUISH:
        pw = isv(p.w); ps = iss(p.w)
        if c.cls == "mfma" and pw & c.r: n = max(n, 2)
        if c.cls == "mfma" and ("s", "exec") in ps: n = max(n, 4)
        if p.cls == "trans" and c.cls in ("valu", "dot") and pw & c.r: n = max(n, 1)
        if p.cls == "dot" and c.cls in VALUISH + ("mfma", "vm", "ds"):
            if pw & (c.r | c.w):
                same = (c.mn == p.mn)
                ops_ab = c.r - c.w
                if not (same and not (pw & ops_ab)): n = max(n, 3)
        if p.mn.endswith("_sdwa") and c.cls in VALUISH and pw & (c.r | c.w): n = max(n, 1)
        if ps:
            if c.cls in VALUISH and (ps & c.r): n = max(n, 4 if cbase in ("v_readlane_b32", "v_writelane_b32") else 2)
            if c.cls == "vm" and (ps & c.r): n = max(n, 5)
            if ("s", "exec") in ps:
                if c.dpp: n = max(n, 5)
                if cbase in ("v_readlane_b32", "v_readfirstlane_b32", "v_writelane_b32") or cbase.startswith("v_permlane"): n = max(n, 4)
            if c.cls == "salu" and (ps & c.r): n = max(n, 1)
        if pw & c.r:
            if cbase in ("v_readlane_b32", "v_readfirstlane_b32"): n = max(n, 1)
            if c.dpp: n = max(n, 2)
            if cbase.startswith("v_permlane"): n = max(n, 2)
    if p.cls == "mfma":
        P = p.passes
        if c.cls == "mfma":
            if p.w & c.ab: n = max(n, P + 4)
            if p.w & c.srcc:
                if not (p.w == c.srcc and c.passes == P): n = max(n, P + 2)
            if p.w & c.w and not (p.w == c.srcc): n = max(n, P + 2)
        elif c.cls in VALUISH:
            if p.w & (c.r | c.w): n = max(n, P + 4)
            if p.srcc & c.w: n = max(n, P - 1)
        elif c.cls in ("vm", "ds"):
            if p.w & (c.r | c.w): n = max(n, P + 4)
            if p.srcc & c.w: n = max(n, P - 1)
    if p.cls == "vm" and p.widestore and (p.data & c.w):
        n = max(n, 2 if c.cls in VALUISH + ("mfma",) else 1)
    if p.cls == "salu" and ("s", "m0") in p.w and c.cls in ("vm", "ds") and ("s", "m0") in c.r: n = max(n, 1)
    return n

class Asm:
    def __init__(self):
        self.lines = []
        self.hist = []
        self.vm = []
        self.lg = []
        self.smem = set()
        self.condid = 0; self.curcond = None
        self.nlab = 0
        self.auto = True
    def raw(self, s): self.lines.append(s)
    def comment(self, s): self.lines.append("    ; " + s)
    def newlabel(self, base="L"):
        self.nlab += 1; return f"{base}_{self.nlab}"
    def label(self, name, pad=0):
        self.lines.append(name + ":")
        if pad: self(f"s_nop {pad - 1}")
    def _younger(self, lst, idx):
        me = lst[idx]
        n = 0
        for o in lst[idx + 1:]:
            if o["cond"] is None or o["cond"] == self.curcond or o["cond"] == me["cond"]: n += 1
        return n
    def _emit_wait(self, vm=None, lg=None):
        if vm is not None: vm = min(vm, 63)
        if lg is not None: lg = min(lg, 15)
        s = "s_waitcnt"
        if vm is not None: s += f" vmcnt({vm})"
        if lg is not None: s += f" lgkmcnt({lg})"
        self._put(Ins(s))
        self._note_wait(vm, lg)
    def _trim(self, lst, n):
        for i in range(len(lst)):
            if self._younger(lst, i) < n: return lst[i:]
        return []
    def _note_wait(self, vm, lg):
        if vm is not None: self.vm = self._trim(self.vm, vm)
        if lg is not None:
            if lg == 0: self.smem = set()
            if not self.smem: self.lg = self._trim(self.lg, lg)
    def _put(self, ins):
        dist = 0; req = 0
        for p in reversed(self.hist):
            n = need(p, ins) - dist
            if n > req: req = n
            dist += p.ws
            if dist > 24: break
        while req > 0:
            k = min(req, 16)
            nop = Ins(f"s_nop {k - 1}")
            self.lines.append("    " + nop.text); self.hist.append(nop); req -= k
        self.lines.append("    " + ins.text)
        self.hist.append(ins)
        if len(self.hist) > 40: self.hist = self.hist[-30:]
    def __call__(self, text):
        if "\n" in text:
            r = None
            for l in text.split("\n"):
                if l.strip(): r = self(l.strip())
            return r
        text = text.strip()
        if text.startswith(";"):
            self.lines.append("    " + text); return None
        ins = Ins(text)
        if ins.mn == "s_waitcnt":
            m = re.search(r"vmcnt\((\d+)\)", text); vm = int(m.group(1)) if m else None
            m = re.search(r"lgkmcnt\((\d+)\)", text); lg = int(m.group(1)) if m else None
            self._put(ins); self._note_wait(vm, lg); return None
        if self.auto:
            touch = ins.r | ins.w
            wv = wl = None
            for i in range(len(self.vm) - 1, -1, -1):
                if self.vm[i]["w"] & touch:
                    wv = self._younger(self.vm, i); break
            for i in range(len(self.lg) - 1, -1, -1):
                if self.lg[i]["w"] & touch:
                    wl = self._younger(self.lg, i); break
            if self.smem & touch: wl = 0
            if wl is not None and self.smem: wl = 0
            if wv is not None or wl is not None:
                self._emit_wait(wv, wl)
        self._put(ins)
        if ins.cls == "vm":
            op = dict(w=set(ins.w), cond=self.curcond); self.vm.append(op); return op
        if ins.cls == "ds":
            op = dict(w=set(ins.w), cond=self.curcond); self.lg.append(op); return op
        if ins.cls == "smem": self.smem |= ins.w
        return None
    def wait_vm(self, op):
        for i, o in enumerate(self.vm):
            if o is op:
                self._emit_wait(vm=self._younger(self.vm, i))
                return
    def wait_lg(self, op):
        for i, o in enumerate(self.lg):
            if o is op:
                n = 0 if self.smem else self._younger(self.lg, i)
                self._emit_wait(lg=n); return
    def cond_begin(self):
        self.condid += 1; self.curcond = self.condid
    def cond_end(self): self.curcond = None
    def save(self): return (list(self.hist), list(self.vm), list(self.lg), set(self.smem))
    def restore(self, st): self.hist, self.vm, self.lg, self.smem = list(st[0]), list(st[1]), list(st[2]), set(st[3])
    def reset(self): self.hist, self.vm, self.lg, self.smem = [], [], [], set()
    def align8(self): self.lines.append("    .p2align 3, , 4")
    def text(self): return "\n".join(self.lines) + "\n"

def vr(base, n=1, k="v"):
    return f"{k}{base}" if n == 1 else f"{k}[{base}:{base + n - 1}]"
def ar(base, n=1): return vr(base, n, "a")
def sr(base, n=1): return vr(base, n, "s")
```

```python
import numpy as np
S, D, F = 2048, 512, 1376
NG = 86
def kappa(h, e): return 8 * (e // 4) + 4 * h + e % 4
def sigma(m): return (m & 16) + 8 * ((m >> 2) & 1) + 4 * ((m >> 3) & 1) + (m & 3)
def s_of_sp(sp): return 32 * (sp % 64) + sp // 64
def freq(p):
    g, i = p // 16, p % 16
    if p == 0: return 256
    if i < 8: return g + 32 * i
    return 32 * (i - 7) - (g if g else 16)
MB = 1 << 20
WS_X0 = 0 * MB
WS_X1 = 2 * MB
WS_X2 = 4 * MB
WS_X3 = 6 * MB
WS_WT = 8 * MB
WTS = 8320
WS_W1F = 10 * MB + 0x40000
WS_WDP = 13 * MB
WS_WDF = 15 * MB
WS_H1 = 17 * MB
WS_H2 = 23 * MB
WS_SS0 = 29 * MB
WS_R1 = WS_SS0 + 0x2000
WS_SS2 = WS_SS0 + 0x4000
WS_R3 = WS_SS0 + 0x6000
WS_FLAG = WS_SS0 + 0x10000
WS_STAMP = 30 * MB
WS_END = 31 * MB
```

```python
from asmdsl import *
from maps import *

T1_N, T3_N, T2_N, T4_N, T5_N = 64, 86, 43, 64, 16
T1_B = 0; T3_B = T1_B + T1_N; T2_B = T3_B + T3_N; T4_B = T2_B + T2_N; T5_B = T4_B + T4_N; P1_WGS = T5_B + T5_N
RS = 1040
EX = 32 * RS
P1_LDS = EX + 32768

S_W = 3
S_B = 4
def srd(a, d, base, size, off=0):
    if off:
        a(f"s_add_u32 s{d}, s{base}, {off}"); a(f"s_addc_u32 s{d+1}, s{base+1}, 0")
    else:
        a(f"s_mov_b32 s{d}, s{base}"); a(f"s_mov_b32 s{d+1}, s{base+1}")
    a(f"s_mov_b32 s{d+2}, {size}"); a(f"s_mov_b32 s{d+3}, 0x20000")

V_LANE = 1
V_F32 = 8
V_M = 16
V_T = 48
V_RAW = 80
V_B = 112
V_ACC = 144
V_PK = 208

def gen_f32(a):
    t = V_T
    a(f"v_and_b32 v{t}, 3, v{V_LANE}")
    a(f"v_bfe_u32 v{t+1}, v{V_LANE}, 3, 2")
    a(f"v_lshl_add_u32 v{t}, v{t+1}, 2, v{t}")
    a(f"v_bfe_u32 v{t+1}, v{V_LANE}, 2, 1")
    a(f"v_cvt_f32_u32 v{t+2}, v{t}")
    a(f"v_mul_f32 v{t+2}, {fhex(1/32)}, v{t+2}")
    a(f"v_cvt_f32_u32 v{t+3}, v{t+1}")
    a(f"v_mul_f32 v{t+3}, {fhex(0.25)}, v{t+3}")
    a(f"v_and_b32 v{t+4}, 31, v{V_LANE}")
    a(f"v_cmp_eq_u32 vcc, 4, v{t+4}")
    a(f"v_cndmask_b32 v{t+2}, v{t+2}, 0.5, vcc")
    a(f"v_cndmask_b32 v{t+3}, v{t+3}, 0, vcc")
    a(f"v_lshrrev_b32 v{t+4}, 5, v{V_LANE}")
    a(f"v_lshlrev_b32 v{t+4}, 4, v{t+4}")
    a(f"v_cvt_f32_u32 v{t+4}, v{t+4}")
    a(f"v_fmac_f32 v{t+3}, v{t+4}, v{t+2}")
    for j in range(16):
        a(f"v_fmamk_f32 v{t+8+j}, v{t+2}, {fhex(j)}, v{t+3}")
    for j in range(16): a(f"v_cos_f32 v{t+8+j}, v{t+8+j}")
    for j in range(16): a(f"v_mul_f32 v{t+8+j}, {fhex(1/16)}, v{t+8+j}")
    for j in range(8): a(f"v_cvt_pk_bf16_f32 v{V_F32+j}, v{t+8+2*j}, v{t+9+2*j}")

def gen_m(a, zero_dc):
    t = V_T
    a(f"v_bfe_u32 v{t+6}, v{V_LANE}, 1, 3")
    a(f"v_bfe_u32 v{t+7}, v{V_LANE}, 4, 1")
    a(f"v_add_u32 v{t+6}, v{t+6}, v{t+7}")
    a(f"v_cvt_f32_u32 v{t}, v{t+6}")
    a(f"v_mul_f32 v{t}, {fhex(1/16)}, v{t}")
    a(f"v_cvt_f32_u32 v{t+7}, v{t+7}")
    a(f"v_fma_f32 v{t+6}, v{t+7}, -2.0, 1.0")
    a(f"v_mul_f32 v{t+1}, {fhex(1/512)}, v{t+6}")
    a(f"v_lshrrev_b32 v{t+24}, 5, v{V_LANE}")
    a(f"v_cvt_f32_u32 v{t+24}, v{t+24}")
    a(f"v_and_b32 v{t+25}, 1, v{V_LANE}")
    a(f"v_cvt_f32_u32 v{t+25}, v{t+25}")
    a(f"v_fma_f32 v{t+2}, -v{t+6}, v{t+24}, v{t+25}")
    a(f"v_mul_f32 v{t+2}, {fhex(0.25)}, v{t+2}")
    a(f"v_fmamk_f32 v{t+26}, v{t+7}, {fhex(-16/512)}, v{t}")
    a(f"v_mul_f32 v{t+27}, {fhex(0.25)}, v{t+25}")
    a(f"v_cmp_eq_f32 vcc, v{t+7}, v{t+24}")
    a(f"v_cndmask_b32 v{t+5}, 0, 1.0, vcc")
    a(f"v_mov_b32 v{t+28}, {fhex(2 ** -0.5)}")
    a(f"v_cmp_eq_u32 vcc, 0, v{V_LANE}")
    a(f"v_cndmask_b32 v{t+26}, v{t+26}, 0.5, vcc")
    a(f"v_cndmask_b32 v{t+5}, v{t+5}, v{t+28}, vcc")
    a(f"v_cmp_eq_u32 vcc, 1, v{V_LANE}")
    a(f"v_cndmask_b32 v{t+27}, v{t+27}, 0, vcc")
    if zero_dc: a(f"v_cndmask_b32 v{t+5}, v{t+5}, 0, vcc")
    else: a(f"v_cndmask_b32 v{t+5}, v{t+5}, v{t+28}, vcc")
    a(f"s_lshl_b32 s5, s{S_W}, 2")
    a(f"v_cvt_f32_u32 v{t+29}, s5")
    a(f"v_fma_f32 v{t+3}, v{t+29}, v{t+1}, v{t}")
    a(f"s_cmp_eq_u32 s{S_W}, 0")
    a(f"s_cselect_b64 vcc, -1, 0")
    a(f"v_cndmask_b32 v{t+26}, v{t+3}, v{t+26}, vcc")
    a(f"v_cndmask_b32 v{t+27}, v{t+2}, v{t+27}, vcc")
    a(f"v_cndmask_b32 v{t+5}, 1.0, v{t+5}, vcc")
    for gg in range(4):
        om, ph = (t + 26, t + 27) if gg == 0 else (t + 3, t + 2)
        if gg: a(f"v_add_f32 v{t+3}, v{t+3}, v{t+1}")
        for j in range(16): a(f"v_fmamk_f32 v{t+8+j}, v{om}, {fhex(j)}, v{ph}")
        for j in range(16): a(f"v_cos_f32 v{t+8+j}, v{t+8+j}")
        if gg == 0:
            for j in range(16): a(f"v_mul_f32 v{t+8+j}, v{t+5}, v{t+8+j}")
        for j in range(8): a(f"v_cvt_pk_bf16_f32 v{V_M+8*gg+j}, v{t+8+2*j}, v{t+9+2*j}")

def stage1_exchange(a):
    for j in range(4):
        for ks in range(2):
            c = "0" if ks == 0 else vr(V_ACC + 16 * j, 16)
            a(f"v_mfma_f32_32x32x16_bf16 {vr(V_ACC+16*j,16)}, {vr(V_F32+4*ks,4)}, {vr(V_B+8*j+4*ks,4)}, {c}")
    for g in range(16):
        a(f"v_cvt_pk_bf16_f32 v{V_PK+2*g}, v{V_ACC+g}, v{V_ACC+16+g}")
    for g in range(16):
        a(f"v_cvt_pk_bf16_f32 v{V_PK+2*g+1}, v{V_ACC+32+g}, v{V_ACC+48+g}")
        a(f"ds_write_b64 v2, {vr(V_PK+2*g,2)} offset:{g*2048}")
    a("s_waitcnt lgkmcnt(0)")
    a("s_barrier")
    for i in range(8):
        a(f"ds_read_b128 {vr(V_B+4*i,4)}, v3 offset:{i*1024}")

def ex_addrs(a):
    a(f"s_lshr_b32 s5, s{S_W}, 1"); a("s_lshl_b32 s5, s5, 10")
    a(f"s_and_b32 s6, s{S_W}, 1"); a("s_lshl_b32 s6, s6, 3")
    a("s_add_u32 s5, s5, s6"); a(f"s_add_u32 s5, s5, {EX}")
    a(f"v_lshl_add_u32 v2, v{V_LANE}, 4, s5")
    a(f"s_lshl_b32 s5, s{S_W}, 13"); a(f"s_add_u32 s5, s5, {EX}")
    a(f"v_lshl_add_u32 v3, v{V_LANE}, 4, s5")

def stage2(a, y_is_a):
    for gg in range(4):
        for ks in range(2):
            c = "0" if ks == 0 else vr(V_ACC + 16 * gg, 16)
            y = vr(V_B + 8 * gg + 4 * ks, 4); m = vr(V_M + 8 * gg + 4 * ks, 4)
            A, B = (y, m) if y_is_a else (m, y)
            a(f"v_mfma_f32_32x32x16_bf16 {vr(V_ACC+16*gg,16)}, {A}, {B}, {c}")

def tr_addr(a, dst, rowstride, tmp, colperm):
    a(f"v_lshrrev_b32 v{tmp}, 5, v{V_LANE}")
    a(f"v_bfe_u32 v{tmp+1}, v{V_LANE}, 2, 2")
    a(f"v_lshl_add_u32 v{tmp}, v{tmp}, 2, v{tmp+1}")
    a(f"v_mul_u32_u24 v{dst}, {rowstride}, v{tmp}")
    if colperm:
        a(f"v_and_b32 v{tmp}, 1, v{V_LANE}")
        a(f"v_lshl_add_u32 v{dst}, v{tmp}, 4, v{dst}")
        a(f"v_bfe_u32 v{tmp}, v{V_LANE}, 1, 1")
        a(f"v_lshl_add_u32 v{dst}, v{tmp}, 3, v{dst}")
        a(f"v_bfe_u32 v{tmp}, v{V_LANE}, 4, 1")
        a(f"v_lshl_add_u32 v{dst}, v{tmp}, 5, v{dst}")
    else:
        a(f"v_and_b32 v{tmp}, 3, v{V_LANE}")
        a(f"v_lshl_add_u32 v{dst}, v{tmp}, 3, v{dst}")
        a(f"v_bfe_u32 v{tmp}, v{V_LANE}, 4, 1")
        a(f"v_lshl_add_u32 v{dst}, v{tmp}, 5, v{dst}")

def t12(a, is_t1, ST):
    if is_t1:
        srd(a, 8, 16, S * D * 2)
        a(f"s_and_b32 s5, s{S_B}, 1"); a("s_lshl_b32 s5, s5, 20")
        a(f"s_lshr_b32 s6, s{S_B}, 1"); a("s_lshl_b32 s6, s6, 10")
        a("s_add_u32 s5, s5, s6")
        a(f"s_lshr_b32 s6, s{S_W}, 1"); a("s_lshl_b32 s6, s6, 2"); a(f"s_and_b32 s7, s{S_W}, 1"); a("s_add_u32 s37, s6, s7")
        a("s_lshl_b32 s6, s37, 17"); a("s_add_u32 s5, s5, s6")
        offs = [(8 * (i // 4) + i % 4) * 32768 for i in range(8)]
    else:
        srd(a, 8, 28, F * D * 2)
        a(f"s_lshl_b32 s5, s{S_B}, 15"); a(f"s_lshl_b32 s6, s{S_W}, 13"); a("s_add_u32 s5, s5, s6")
        offs = [i * 1024 for i in range(8)]
    a(f"s_mul_i32 s6, s{S_W}, {8*RS}")
    a(f"v_lshlrev_b32 v4, 4, v{V_LANE}")
    for i in range(8):
        a(f"s_add_u32 m0, s6, {i*RS}")
        a(f"s_add_u32 s7, s5, {offs[i]}")
        a("buffer_load_dwordx4 v4, s[8:11], s7 offen lds")
    gen_f32(a)
    gen_m(a, False)
    ex_addrs(a)
    a(f"v_and_b32 v5, 31, v{V_LANE}"); a(f"v_mul_u32_u24 v5, {RS}, v5")
    a(f"v_lshrrev_b32 v6, 5, v{V_LANE}"); a("v_lshl_add_u32 v5, v6, 9, v5")
    a(f"s_lshl_b32 s5, s{S_W}, 3"); a("v_add_u32 v5, s5, v5")
    a("s_mov_b32 s12, 0x05040100"); a("s_mov_b32 s13, 0x07060302")
    a("s_waitcnt vmcnt(0)")
    a("s_barrier")
    for j in range(16): a(f"ds_read_b64 {vr(V_RAW+2*j,2)}, v5 offset:{j*32}")
    for ks in range(2):
        for i in range(4):
            ev, od = V_RAW + 2 * (8 * ks + 2 * i), V_RAW + 2 * (8 * ks + 2 * i + 1)
            for j in range(4):
                a(f"v_perm_b32 v{V_B+8*j+4*ks+i}, v{od + j//2}, v{ev + j//2}, s{12 + j%2}")
    stage1_exchange(a)
    stage2(a, True)
    if is_t1:
        srd(a, 8, 34, S * D * 2, WS_X0)
        a(f"v_and_b32 v4, 31, v{V_LANE}"); a("v_lshlrev_b32 v4, 7, v4")
        a(f"v_lshrrev_b32 v6, 5, v{V_LANE}"); a("v_lshl_add_u32 v4, v6, 4, v4")
        a(f"s_lshl_b32 s5, s{S_W}, 14"); a(f"s_lshr_b32 s6, s{S_B}, 1"); a("s_lshl_b32 s6, s6, 16"); a("s_add_u32 s5, s5, s6")
        a(f"s_and_b32 s6, s{S_B}, 1"); a("s_lshl_b32 s6, s6, 6"); a("s_add_u32 s5, s5, s6")
        step, second = 4096, 32
    else:
        srd(a, 8, 34, 16 * NG * 1024, WS_WDP)
        a(f"s_mul_i32 s5, s{S_W}, {4*NG*1024}"); a(f"s_lshl_b32 s6, s{S_B}, 11"); a("s_add_u32 s5, s5, s6")
        step, second = NG * 1024, 1024
    for gg in range(4):
        for j in range(8): a(f"v_cvt_pk_bf16_f32 v{V_PK+8*gg+j}, v{V_ACC+16*gg+2*j}, v{V_ACC+16*gg+2*j+1}")
        a(f"buffer_store_dwordx4 {vr(V_PK+8*gg,4)}, v4, s[8:11], s5 offen {ST}")
        a(f"buffer_store_dwordx4 {vr(V_PK+8*gg+4,4)}, v4, s[8:11], s5 offen offset:{second} {ST}")
        if gg < 3: a(f"s_add_u32 s5, s5, {step}")
    if is_t1:
        a(f"v_lshrrev_b32 v5, 3, v{V_LANE}"); a(f"v_mul_u32_u24 v6, {RS}, v5")
        a(f"v_and_b32 v7, 7, v{V_LANE}"); a("v_lshl_add_u32 v6, v7, 4, v6")
        a(f"s_mul_i32 s6, s{S_W}, {8*RS}"); a("v_add_u32 v6, s6, v6")
        for i in range(8): a(f"ds_read_b128 {vr(V_RAW+4*i,4)}, v6 offset:{i*128}")
        t = V_T
        for i in range(4): a(f"v_mov_b32 v{t+i}, 0")
        a(f"v_mov_b32 v{t+4}, 0x3f803f80")
        for i in range(32):
            a(f"v_dot2c_f32_bf16 v{t + i%2}, v{V_RAW+i}, v{V_RAW+i}")
            a(f"v_dot2c_f32_bf16 v{t + 2 + i%2}, v{V_RAW+i}, v{t+4}")
        a(f"v_add_f32 v{t}, v{t}, v{t+1}"); a(f"v_add_f32 v{t+2}, v{t+2}, v{t+3}")
        for m in ("quad_perm:[1,0,3,2]", "quad_perm:[2,3,0,1]", "row_half_mirror"):
            a(f"v_add_f32_dpp v{t}, v{t}, v{t} {m} row_mask:0xf bank_mask:0xf")
            a(f"v_add_f32_dpp v{t+2}, v{t+2}, v{t+2} {m} row_mask:0xf bank_mask:0xf")
        a(f"v_mul_f32 v{t+2}, v{t+2}, v{t+2}")
        a(f"v_fmamk_f32 v{t}, v{t+2}, {fhex(-1/512)}, v{t}")
        a(f"v_max_f32 v{t}, 0, v{t}")
        a("v_and_b32 v6, 3, v5"); a("v_lshrrev_b32 v5, 2, v5"); a("v_lshl_add_u32 v6, v5, 3, v6")
        a("v_lshlrev_b32 v6, 2, v6")
        a(f"s_lshl_b32 s5, s{S_B}, 7"); a(f"s_lshl_b32 s6, s37, 4"); a("s_add_u32 s5, s5, s6")
        srd(a, 8, 34, 8192, WS_SS0)
        a("v_cmp_eq_u32 vcc, 0, v7")
        a("s_and_saveexec_b64 s[14:15], vcc")
        a(f"buffer_store_dword v{t}, v6, s[8:11], s5 offen {ST}")
        a("s_mov_b64 exec, s[14:15]")
    else:
        tr_addr(a, 5, RS, V_T, True)
        a(f"s_lshl_b32 s5, s{S_W}, 8"); a("v_add_u32 v5, s5, v5")
        for q in range(4):
            for aa in range(2):
                for rho in range(2):
                    a(f"ds_read_b64_tr_b16 {vr(V_RAW+8*q+4*aa+2*rho,2)}, v5 offset:{(16*aa+8*rho)*RS + 64*q}")
        srd(a, 8, 34, 16 * 118 * 1024, WS_WDF)
        a(f"s_mul_i32 s5, s{S_W}, {4*118*1024}"); a(f"s_lshl_b32 s6, s{S_B}, 11"); a("s_add_u32 s5, s5, s6")
        for q in range(4):
            for aa in range(2):
                a(f"buffer_store_dwordx4 {vr(V_RAW+8*q+4*aa,4)}, v4, s[8:11], s5 offen offset:{aa*1024} {ST}")
            if q < 3: a(f"s_add_u32 s5, s5, {118*1024}")

def t3(a, ST):
    a(f"s_and_b32 s36, s{S_B}, 1"); a(f"s_lshr_b32 s{S_B}, s{S_B}, 1")
    a("s_cmp_eq_u32 s36, 0")
    a("s_cselect_b32 s8, s24, s26"); a("s_cselect_b32 s9, s25, s27")
    a(f"s_mov_b32 s10, {D*F*2}"); a("s_mov_b32 s11, 0x20000")
    a(f"v_lshrrev_b32 v4, 2, v{V_LANE}"); a(f"v_mul_u32_u24 v4, {16*2752}, v4")
    a(f"v_and_b32 v5, 3, v{V_LANE}"); a("v_lshl_add_u32 v4, v5, 4, v4")
    a(f"s_mul_i32 s5, s{S_W}, {4*2752}"); a(f"s_lshl_b32 s6, s{S_B}, 6"); a("s_add_u32 s5, s5, s6")
    a(f"s_lshl_b32 s6, s{S_W}, 13")
    for i in range(8):
        a(f"s_add_u32 m0, s6, {i*1024}")
        a(f"s_add_u32 s7, s5, {((i%2)*256 + i//2)*2752}")
        a("buffer_load_dwordx4 v4, s[8:11], s7 offen lds")
    gen_f32(a)
    gen_m(a, True)
    ex_addrs(a)
    a(f"v_lshrrev_b32 v5, 5, v{V_LANE}"); a("v_lshlrev_b32 v5, 10, v5")
    a(f"v_bfe_u32 v6, v{V_LANE}, 2, 2"); a("v_lshl_add_u32 v5, v6, 6, v5")
    a(f"v_bfe_u32 v6, v{V_LANE}, 4, 1"); a("v_lshl_add_u32 v5, v6, 5, v5")
    a(f"v_and_b32 v6, 3, v{V_LANE}"); a("v_lshl_add_u32 v5, v6, 3, v5")
    a(f"s_lshl_b32 s5, s{S_W}, 13"); a("v_add_u32 v5, s5, v5")
    a("s_waitcnt vmcnt(0)")
    for j in range(4):
        for ks in range(2):
            for rho in range(2):
                a(f"ds_read_b64_tr_b16 {vr(V_B+8*j+4*ks+2*rho,2)}, v5 offset:{j*2048 + (8*ks+4*rho)*64}")
    stage1_exchange(a)
    stage2(a, False)
    srd(a, 8, 34, NG * 32768, WS_W1F)
    a(f"v_bfe_u32 v4, v{V_LANE}, 4, 1"); a("v_lshlrev_b32 v4, 15, v4")
    a(f"v_lshrrev_b32 v6, 5, v{V_LANE}"); a("v_lshl_add_u32 v4, v6, 9, v4")
    a(f"v_and_b32 v6, 15, v{V_LANE}"); a("v_lshl_add_u32 v4, v6, 4, v4")
    a(f"s_lshl_b32 s5, s{S_B}, 16"); a("s_lshl_b32 s6, s36, 8"); a("s_add_u32 s5, s5, s6")
    a(f"s_lshl_b32 s6, s{S_W}, 13"); a("s_add_u32 s5, s5, s6")
    a("s_add_u32 s6, s5, 4096")
    for gg in range(4):
        for j in range(8): a(f"v_cvt_pk_bf16_f32 v{V_PK+8*gg+j}, v{V_ACC+16*gg+2*j}, v{V_ACC+16*gg+2*j+1}")
        so = "s5" if gg < 2 else "s6"
        a(f"buffer_store_dwordx4 {vr(V_PK+8*gg,4)}, v4, s[8:11], {so} offen offset:{(gg%2)*2048} {ST}")
        a(f"buffer_store_dwordx4 {vr(V_PK+8*gg+4,4)}, v4, s[8:11], {so} offen offset:{(gg%2)*2048+1024} {ST}")

def t4(a, ST):
    srd(a, 8, 18, S * 257 * 2); srd(a, 12, 20, S * 257 * 2)
    a(f"s_bfe_u32 s5, s{S_B}, 0x20002"); a("s_lshl_b32 s5, s5, 3")
    a(f"s_bfe_u32 s6, s{S_B}, 0x10004"); a("s_lshl_b32 s6, s6, 2"); a("s_add_u32 s5, s5, s6")
    a(f"s_and_b32 s6, s{S_B}, 35"); a("s_add_u32 s5, s5, s6")
    a("s_mul_i32 s5, s5, 514")
    a("v_add_u32 v2, 1, v0")
    a("v_lshlrev_b32 v3, 1, v2")
    R, I = 16, 48
    for k2 in range(32):
        t2, q, r = k2 // 16, (k2 // 4) % 4, k2 % 4
        idx = q * 8 + t2 * 4 + r
        a(f"buffer_load_ushort v{R+idx}, v3, s[8:11], s5 offen")
        a(f"buffer_load_ushort v{I+idx}, v3, s[12:15], s5 offen")
        if k2 < 31: a(f"s_add_u32 s5, s5, {64*514}")
    a("v_and_b32 v4, 31, v2"); a("v_bfe_u32 v5, v2, 5, 3")
    a("v_sub_u32 v6, 32, v4"); a("v_and_b32 v6, 15, v6")
    a("v_cmp_gt_u32 vcc, 16, v4")
    a("v_cndmask_b32 v6, v6, v4, vcc")
    a("v_bfe_u32 v4, v2, 4, 1"); a("v_lshl_add_u32 v5, v4, 3, v5")
    a("v_lshl_add_u32 v5, v6, 4, v5")
    a(f"v_mul_u32_u24 v5, {WTS}, v5")
    srd(a, 36, 34, 256 * WTS, WS_WT)
    a(f"s_lshl_b32 s5, s{S_B}, 7")
    order = sorted(range(8), key=lambda c: (c % 2, c // 2))
    for c in order:
        for r in range(4): a(f"v_lshl_or_b32 v{R+4*c+r}, v{I+4*c+r}, 16, v{R+4*c+r}")
        a(f"buffer_store_dwordx4 {vr(R+4*c,4)}, v5, s[36:39], s5 offen offset:{16*c} {ST}")

def t5(a, ST):
    srd(a, 8, 34, 16 * 118 * 1024, WS_WDF)
    a(f"v_and_b32 v2, 19, v{V_LANE}"); a(f"v_bfe_u32 v3, v{V_LANE}, 3, 1"); a("v_lshl_add_u32 v2, v3, 2, v2")
    a(f"v_bfe_u32 v3, v{V_LANE}, 2, 1"); a("v_lshl_add_u32 v2, v3, 3, v2")
    a(f"s_lshl_b32 s5, s{S_B}, 5"); a("v_add_u32 v2, s5, v2")
    a(f"v_lshrrev_b32 v3, 5, v{V_LANE}"); a("v_lshlrev_b32 v3, 6, v3")
    a(f"v_lshlrev_b32 v4, 4, v{V_LANE}")
    a(f"s_mul_i32 s5, s{S_B}, {118*1024}"); a(f"s_lshl_b32 s6, s{S_W}, 13"); a("s_add_u32 s5, s5, s6"); a(f"s_add_u32 s5, s5, {86*1024}")
    a(f"s_lshl_b32 s6, s{S_W}, 2")
    a("s_add_u32 s14, s6, 4")
    lp = a.newlabel("t5")
    a.label(lp, 2)
    a("s_cmp_eq_u32 s6, 0"); a("s_cselect_b32 s7, 16, s6"); a("s_sub_u32 s7, 32, s7")
    for aa in range(2):
        for j in range(4):
            t = 16 + 8 * aa + 2 * j
            a(f"s_add_u32 s12, s{6 + aa}, {32 * (4 * (j // 2) + j % 2)}")
            a(f"v_add_u32 v{t}, s12, v3")
            a(f"v_mul_u32_u24 v{t}, v{t}, v2")
            a(f"v_and_b32 v{t}, 511, v{t}")
            a(f"v_cvt_f32_u32 v{t}, v{t}")
            a(f"v_mul_f32 v{t}, {fhex(1/512)}, v{t}")
            a(f"v_sin_f32 v{t+1}, v{t}")
            a(f"v_cos_f32 v{t}, v{t}")
            a(f"v_mul_f32 v{t+1}, {fhex(-1/16)}, v{t+1}")
            a(f"v_mul_f32 v{t}, {fhex(1/16)}, v{t}")
    a("s_cmp_eq_u32 s6, 0"); a("s_cselect_b32 vcc_lo, -1, 0"); a("s_mov_b32 vcc_hi, 0")
    a(f"v_mov_b32 v5, {fhex(1/16/2**0.5)}")
    a("v_lshlrev_b32 v6, 31, v2"); a("v_xor_b32 v6, v6, v5")
    a("v_cndmask_b32 v16, v16, v6, vcc"); a("v_cndmask_b32 v17, v17, v5, vcc")
    for j in range(8): a(f"v_cvt_pk_bf16_f32 v{8+j}, v{16+2*j}, v{17+2*j}")
    a(f"buffer_store_dwordx4 v[8:11], v4, s[8:11], s5 offen {ST}")
    a(f"buffer_store_dwordx4 v[12:15], v4, s[8:11], s5 offen offset:1024 {ST}")
    a("s_add_u32 s5, s5, 2048"); a("s_add_u32 s6, s6, 1")
    a("s_cmp_lt_u32 s6, s14")
    a(f"s_cbranch_scc1 {lp}")
    srd(a, 8, 34, 8192, WS_SS2)
    a("v_mov_b32 v8, 0"); a("v_lshlrev_b32 v9, 2, v0"); a(f"s_lshl_b32 s5, s{S_B}, 10")
    a(f"buffer_store_dword v8, v9, s[8:11], s5 offen {ST}")

def emit_p1(a, end, ST=""):
    a(f"v_and_b32 v{V_LANE}, 63, v0")
    a("v_lshrrev_b32 v2, 6, v0")
    a(f"v_readfirstlane_b32 s{S_W}, v2")
    a("s_waitcnt lgkmcnt(0)")
    labs = {k: a.newlabel("p1" + k) for k in ("t3", "t2", "t4", "t5")}
    st = a.save()
    a(f"s_cmp_ge_u32 s2, {T3_B}"); a(f"s_cbranch_scc1 {labs['t3']}")
    a(f"s_mov_b32 s{S_B}, s2"); t12(a, True, ST); end(a)
    a.restore(st); a.label(labs["t3"])
    a(f"s_cmp_ge_u32 s2, {T2_B}"); a(f"s_cbranch_scc1 {labs['t2']}")
    a(f"s_sub_u32 s{S_B}, s2, {T3_B}"); t3(a, ST); end(a)
    a.restore(st); a.label(labs["t2"])
    a(f"s_cmp_ge_u32 s2, {T4_B}"); a(f"s_cbranch_scc1 {labs['t4']}")
    a(f"s_sub_u32 s{S_B}, s2, {T2_B}"); t12(a, False, ST); end(a)
    a.restore(st); a.label(labs["t4"])
    a(f"s_cmp_ge_u32 s2, {T5_B}"); a(f"s_cbranch_scc1 {labs['t5']}")
    a(f"s_sub_u32 s{S_B}, s2, {T4_B}"); t4(a, ST); end(a)
    a.restore(st); a.label(labs["t5"])
    a(f"s_sub_u32 s{S_B}, s2, {T5_B}"); t5(a, ST); end(a)
```

```python
from asmdsl import *
from maps import *
from p1 import srd
LDS_F = 0
LDS_Z = 24576
LDS_C = 32768
LDS = 40960
S_W = 3; S_P = 4; S_K = 44
L = 1
V_IN = 8
V_SS = 16
V_RES = 24
V_WF = 32
V_CS = 40; V_SN = 48; V_NS = 56
V_C32 = 64; V_S32 = 72; V_N32 = 80
V_T1C = 88; V_T1S = 96; V_T2C = 104; V_T2S = 112
V_P = 120; V_Q = 152
V_Z = 184
V_A = 216
V_T = 232
V_XO = 255
V_WR = 184; V_WI = 192
V_RF = 200

def mf(a, d, A, B, first):
    a(f"v_mfma_f32_16x16x32_bf16 {vr(d,4)}, {vr(A,4)}, {vr(B,4)}, {'0' if first else vr(d,4)}")

def loads(a, x_off, ss_off, LD):
    srd(a, 8, 34, S * D * 2, x_off)
    srd(a, 12, 34, 8192, ss_off)
    a(f"s_lshl_b32 s5, s{S_P}, 8")
    a(f"s_and_b32 s6, s{S_W}, 1"); a("s_lshl_b32 s36, s6, 12"); a("s_lshl_b32 s6, s6, 20")
    a("s_add_u32 s5, s5, s6")
    a(f"s_lshr_b32 s7, s{S_W}, 1")
    a("s_lshl_b32 s37, s7, 6"); a("s_add_u32 s37, s37, s5")
    a(f"buffer_load_dwordx4 {vr(V_IN,4)}, v{V_XO}, s[8:11], s37 offen {LD}")
    a(f"buffer_load_dwordx4 {vr(V_IN+4,4)}, v{V_XO}, s[8:11], s37 offen offset:128 {LD}")
    a("s_lshl_b32 s38, s7, 7"); a("s_add_u32 s36, s36, s38")
    a(f"buffer_load_dwordx4 {vr(V_SS,4)}, v5, s[12:15], s36 offen {LD}")
    a(f"buffer_load_dwordx4 {vr(V_SS+4,4)}, v5, s[12:15], s36 offen offset:16 {LD}")
    a("s_lshl_b32 s39, s7, 7"); a("s_add_u32 s39, s39, s5")
    a(f"buffer_load_dwordx4 {vr(V_RES,4)}, v{V_XO}, s[8:11], s39 offen {LD}")
    a(f"buffer_load_dwordx4 {vr(V_RES+4,4)}, v{V_XO}, s[8:11], s39 offen offset:64 {LD}")

def load_filter(a, LD):
    srd(a, 40, 34, 256 * WTS, WS_WT)
    a(f"s_mul_i32 s5, s{S_P}, {WTS}"); a(f"s_lshl_b32 s6, s{S_W}, 11"); a("s_add_u32 s5, s5, s6")
    a(f"buffer_load_dwordx4 {vr(V_WF,4)}, v4, s[40:43], s5 offen {LD}")
    a(f"buffer_load_dwordx4 {vr(V_WF+4,4)}, v4, s[40:43], s5 offen offset:16 {LD}")

def addrs(a):
    a(f"v_and_b32 v2, 15, v{L}"); a(f"v_lshrrev_b32 v3, 4, v{L}")
    a("v_lshlrev_b32 v4, 7, v2"); a("v_lshl_add_u32 v4, v3, 5, v4")
    a("v_lshlrev_b32 v5, 8, v2"); a("v_lshl_add_u32 v5, v3, 5, v5")
    a(f"v_lshlrev_b32 v{V_XO}, 16, v2"); a(f"v_lshl_add_u32 v{V_XO}, v3, 4, v{V_XO}")
    a(f"s_lshr_b32 s5, s{S_W}, 1"); a("s_lshl_b32 s5, s5, 5"); a(f"s_and_b32 s6, s{S_W}, 1"); a("s_lshl_b32 s6, s6, 2"); a(f"s_add_u32 s{S_K}, s5, s6")
    a(f"s_and_b32 s5, s2, 7"); a("s_lshl_b32 s5, s5, 5"); a(f"s_lshr_b32 s{S_P}, s2, 3"); a(f"s_add_u32 s{S_P}, s{S_P}, s5")

def tables(a):
    t = V_T; X = V_Z
    a(f"v_lshrrev_b32 v{t}, 2, v2"); a(f"v_and_b32 v{t+1}, 3, v2"); a(f"v_lshl_add_u32 v{t}, v{t}, 3, v{t+1}")
    a(f"v_add_u32 v{t}, s{S_K}, v{t}")
    a(f"v_cvt_f32_u32 v{t}, v{t}")
    a(f"v_cvt_f32_u32 v{t+1}, v3")
    a(f"v_cvt_f32_u32 v{t+2}, v2")
    a(f"v_mul_f32 v{t+3}, {fhex(1/64)}, v{t}")
    a(f"v_mul_f32 v{t+4}, v{t+1}, v{t+3}"); a(f"v_mul_f32 v{t+4}, {fhex(8)}, v{t+4}")
    for j in range(16): a(f"v_fmamk_f32 v{X+j}, v{t+3}, {fhex(32*(j//8)+j%8)}, v{t+4}")
    for j in range(16): a(f"v_sin_f32 v{X+16+j}, v{X+j}")
    for j in range(16): a(f"v_cos_f32 v{X+j}, v{X+j}")
    for j in range(8): a(f"v_cvt_pk_bf16_f32 v{V_SN+j}, v{X+16+2*j}, v{X+17+2*j}")
    for j in range(8): a(f"v_cvt_pk_bf16_f32 v{V_CS+j}, v{X+2*j}, v{X+1+2*j}")
    for j in range(8): a(f"v_xor_b32 v{V_NS+j}, 0x80008000, v{V_SN+j}")
    a(f"s_lshl_b32 s5, s{S_W}, 11"); a(f"v_lshl_add_u32 v6, v{L}, 4, s5")
    for kind, base in enumerate((V_CS, V_SN, V_NS)):
        for aa in range(2):
            a(f"ds_write_b128 v6, {vr(base+4*aa,4)} offset:{LDS_F + kind*8192 + aa*1024}")
    for t2 in range(2):
        a(f"v_fmaak_f32 v{t+5}, {fhex(1/32)}, v{t+2}, {fhex(1/32)}" if False else f"v_add_f32 v{t+5}, {fhex(16*t2)}, v{t+2}")
        a(f"v_mul_f32 v{t+5}, {fhex(1/32)}, v{t+5}")
        a(f"v_mul_f32 v{t+6}, v{t+1}, v{t+5}"); a(f"v_mul_f32 v{t+6}, 4.0, v{t+6}")
        for e in range(8): a(f"v_fmamk_f32 v{X+8*t2+e}, v{t+5}, {fhex(16*(e//4)+e%4)}, v{t+6}")
    for j in range(16): a(f"v_sin_f32 v{X+16+j}, v{X+j}")
    for j in range(16): a(f"v_cos_f32 v{X+j}, v{X+j}")
    for j in range(8): a(f"v_cvt_pk_bf16_f32 v{V_S32+j}, v{X+16+2*j}, v{X+17+2*j}")
    for j in range(8): a(f"v_cvt_pk_bf16_f32 v{V_C32+j}, v{X+2*j}, v{X+1+2*j}")
    for j in range(8): a(f"v_xor_b32 v{V_N32+j}, 0x80008000, v{V_S32+j}")
    a("s_waitcnt lgkmcnt(0)"); a("s_barrier")
    a(f"v_lshlrev_b32 v6, 4, v{L}")
    a(f"s_lshr_b32 s5, s{S_W}, 1"); a("s_lshl_b32 s5, s5, 13"); a("s_sub_u32 s5, 16384, s5"); a("v_add_u32 v7, s5, v6")
    for i in range(8): a(f"ds_read_b128 {vr(V_P+4*i,4)}, v6 offset:{LDS_F + i*1024}")
    for i in range(8): a(f"ds_read_b128 {vr(V_Q+4*i,4)}, v7 offset:{LDS_F + i*1024}")
    a(f"v_mul_f32 v{t+5}, {fhex(1/2048)}, v{t}")
    a(f"v_mul_f32 v{t+6}, v{t+1}, v{t+5}"); a(f"v_mul_f32 v{t+6}, 4.0, v{t+6}")
    for e in range(8): a(f"v_fmamk_f32 v{V_T1C+e}, v{t+5}, {fhex(16*(e//4)+e%4)}, v{t+6}")
    for e in range(8): a(f"v_sin_f32 v{V_T1S+e}, v{V_T1C+e}")
    for e in range(8): a(f"v_cos_f32 v{V_T1C+e}, v{V_T1C+e}")
    a(f"v_lshl_add_u32 v{t+7}, v3, 3, s{S_K}"); a(f"v_cvt_f32_u32 v{t+7}, v{t+7}")
    for tt in range(2):
        a(f"v_add_f32 v{t+5}, {fhex(16*tt)}, v{t+2}"); a(f"v_mul_f32 v{t+5}, {fhex(1/2048)}, v{t+5}")
        a(f"v_mul_f32 v{t+6}, v{t+7}, v{t+5}")
        for r in range(4): a(f"v_fmamk_f32 v{V_T2C+4*tt+r}, v{t+5}, {fhex(r)}, v{t+6}")
    for e in range(8): a(f"v_sin_f32 v{V_T2S+e}, v{V_T2C+e}")
    for e in range(8): a(f"v_cos_f32 v{V_T2C+e}, v{V_T2C+e}")
    for e in range(8): a(f"v_mul_f32 v{V_T2S+e}, {fhex(1/2048)}, v{V_T2S+e}")
    for e in range(8): a(f"v_mul_f32 v{V_T2C+e}, {fhex(1/2048)}, v{V_T2C+e}")

def cmul(a, re, im, c, s, sign, out):
    t = V_T
    for e in range(8):
        a(f"v_mul_f32 v{t+e}, v{re(e)}, v{c+e}")
        a(f"v_mul_f32 v{t+8+e}, v{im(e)}, v{c+e}")
    n1, n2 = ("-", "") if sign > 0 else ("", "-")
    for e in range(8):
        a(f"v_fma_f32 v{t+e}, {n1}v{im(e)}, v{s+e}, v{t+e}")
        a(f"v_fma_f32 v{t+8+e}, {n2}v{re(e)}, v{s+e}, v{t+8+e}")
    for j in range(8): a(f"v_cvt_pk_bf16_f32 v{out+j}, v{t+2*j}, v{t+2*j+1}")

def compute(a, out_off, ST):
    t = V_T
    a(f"v_mov_b32 v{t+16}, {fhex(1e-5)}")
    for i in range(8): a(f"v_fmamk_f32 v{V_SS+i}, v{V_SS+i}, {fhex(1/512)}, v{t+16}")
    for i in range(8): a(f"v_rsq_f32 v{V_SS+i}, v{V_SS+i}")
    for pl in range(2):
        for j in range(4):
            a(f"v_lshlrev_b32 v{t+8*pl+2*j}, 16, v{V_IN+4*pl+j}")
            a(f"v_and_b32 v{t+8*pl+2*j+1}, 0xffff0000, v{V_IN+4*pl+j}")
    for pl in range(2):
        for i in range(8): a(f"v_mul_f32 v{t+8*pl+i}, v{V_SS+i}, v{t+8*pl+i}")
    for j in range(8): a(f"v_cvt_pk_bf16_f32 v{V_IN+j}, v{t+2*j}, v{t+2*j+1}")
    a(f"s_cmp_eq_u32 s{S_P}, 0"); a("s_cselect_b32 s5, 0, -1")
    for j in range(4): a(f"v_and_b32 v{V_IN+4+j}, s5, v{V_IN+4+j}")
    a(f"s_and_b32 s5, s{S_W}, 1"); a("s_lshl_b32 s5, s5, 12"); a(f"s_lshr_b32 s6, s{S_W}, 1"); a("s_lshl_b32 s6, s6, 10"); a("s_add_u32 s5, s5, s6")
    a("v_add_u32 v7, s5, v6")
    a(f"ds_write_b128 v7, {vr(V_IN,4)} offset:{LDS_Z}")
    a(f"ds_write_b128 v7, {vr(V_IN+4,4)} offset:{LDS_Z+2048}")
    a("s_waitcnt lgkmcnt(0)"); a("s_barrier")
    for i in range(8): a(f"ds_read_b128 {vr(V_Z+4*i,4)}, v6 offset:{LDS_Z + i*1024}")
    Z = lambda tt, pl, aa: V_Z + 16 * tt + 8 * pl + 4 * aa
    for tt in range(2):
        for pl in range(2):
            for aa in range(2):
                first = (pl == 0 and aa == 0)
                mf(a, V_A + 4 * tt, Z(tt, pl, aa), (V_CS if pl == 0 else V_SN) + 4 * aa, first)
                mf(a, V_A + 8 + 4 * tt, Z(tt, pl, aa), (V_NS if pl == 0 else V_CS) + 4 * aa, first)
    re = lambda e: V_A + e; im = lambda e: V_A + 8 + e
    a(f"s_lshr_b32 s5, s{S_W}, 1"); a("s_lshl_b32 s5, s5, 10"); a(f"s_and_b32 s6, s{S_W}, 1"); a("s_lshl_b32 s7, s6, 3"); a("s_add_u32 s5, s5, s7")
    a("v_add_u32 v7, s5, v6")
    a("s_lshl_b32 s6, s6, 12"); a(f"s_lshr_b32 s5, s{S_W}, 1"); a("s_lshl_b32 s5, s5, 11"); a("s_add_u32 s5, s5, s6")
    a("v_add_u32 v2, s5, v6")
    a("v_xor_b32 v3, 2048, v2")
    cmul(a, re, im, V_T1C, V_T1S, -1, V_IN)
    for t2 in range(2):
        mf(a, V_A + 4 * t2, V_C32 + 4 * t2, V_IN, True)
        mf(a, V_A + 8 + 4 * t2, V_N32 + 4 * t2, V_IN, True)
    for t2 in range(2):
        mf(a, V_A + 4 * t2, V_S32 + 4 * t2, V_IN + 4, False)
        mf(a, V_A + 8 + 4 * t2, V_C32 + 4 * t2, V_IN + 4, False)
    for e in range(8):
        a(f"v_lshlrev_b32 v{V_WR+e}, 16, v{V_WF+e}")
        a(f"v_and_b32 v{V_WI+e}, 0xffff0000, v{V_WF+e}")
    cmul(a, re, im, V_WR, V_WI, +1, V_IN)
    for tt in range(2):
        mf(a, V_A + 4 * tt, V_IN, V_C32 + 4 * tt, True)
        mf(a, V_A + 8 + 4 * tt, V_IN, V_S32 + 4 * tt, True)
    for tt in range(2):
        mf(a, V_A + 4 * tt, V_IN + 4, V_N32 + 4 * tt, False)
        mf(a, V_A + 8 + 4 * tt, V_IN + 4, V_C32 + 4 * tt, False)
    for j in range(8):
        a(f"v_lshlrev_b32 v{V_RF+2*j}, 16, v{V_RES+j}")
        a(f"v_and_b32 v{V_RF+2*j+1}, 0xffff0000, v{V_RES+j}")
    cmul(a, re, im, V_T2C, V_T2S, +1, V_IN)
    for pl in range(2):
        for tt in range(2):
            a(f"ds_write_b64 v7, {vr(V_IN+4*pl+2*tt,2)} offset:{LDS_C + tt*4096 + pl*2048}")
    a("s_waitcnt lgkmcnt(0)"); a("s_barrier")
    B = V_Z
    for aa in range(2): a(f"ds_read_b128 {vr(B+4*aa,4)}, v2 offset:{LDS_C + aa*1024}")
    for aa in range(2): a(f"ds_read_b128 {vr(B+8+4*aa,4)}, v3 offset:{LDS_C + aa*1024}")
    srd(a, 8, 34, S * D * 2, out_off)
    skip = a.newlabel("colskip")
    a("s_and_b32 s5, s39, 0xffff"); a("s_cmp_eq_u32 s5, 128")
    a(f"s_cbranch_scc1 {skip}")
    for k in range(4):
        for mt in range(4):
            A = (V_P if k < 2 else V_Q) + 8 * mt + 4 * (k % 2)
            a(f"v_mfma_f32_16x16x32_bf16 {vr(V_RF+4*mt,4)}, {vr(A,4)}, {vr(B+4*k,4)}, {vr(V_RF+4*mt,4)}")
    a.label(skip)
    for j in range(8): a(f"v_cvt_pk_bf16_f32 v{V_IN+j}, v{V_RF+2*j}, v{V_RF+2*j+1}")
    a(f"buffer_store_dwordx4 {vr(V_IN,4)}, v{V_XO}, s[8:11], s39 offen {ST}")
    a(f"buffer_store_dwordx4 {vr(V_IN+4,4)}, v{V_XO}, s[8:11], s39 offen offset:64 {ST}")

def emit(a, end, x_off, ss_off, out_off):
    a(f"v_and_b32 v{L}, 63, v0"); a("v_lshrrev_b32 v2, 6, v0"); a(f"v_readfirstlane_b32 s{S_W}, v2")
    addrs(a)
    a("s_waitcnt lgkmcnt(0)")
    loads(a, x_off, ss_off, "")
    load_filter(a, "")
    tables(a)
    compute(a, out_off, "")
    end(a)
```

```python
from asmdsl import *
from maps import *
from p1 import srd
WGS = 256
NSLOT = 10
LDS = NSLOT * 16384
S_W = 3; S_RT = 44; S_FT = 45
L = 1
V_DMA = 4
V_L16 = 5
V_RD = 8
V_FR = 16
NF = 6
V_ACC = 40
V_T = 104
V_H = 120
A_W = 0

def task(a):
    a("s_and_b32 s5, s2, 7"); a("s_lshl_b32 s5, s5, 5"); a("s_lshr_b32 s6, s2, 3"); a("s_add_u32 s5, s5, s6")
    a(f"s_mul_i32 s{S_RT}, s5, 2850"); a(f"s_lshr_b32 s{S_RT}, s{S_RT}, 16")
    a(f"s_mul_i32 s6, s{S_RT}, 23"); a(f"s_sub_u32 s{S_FT}, s5, s6")
assert all((x * 2850) >> 16 == x // 23 for x in range(256))

def addrs(a):
    a(f"v_lshlrev_b32 v{V_L16}, 4, v{L}")
    a(f"v_bfe_u32 v7, v{L}, 4, 1"); a("v_lshlrev_b32 v7, 6, v7"); a(f"v_xor_b32 v{V_DMA}, v{V_L16}, v7")
    r = V_RD
    a(f"v_lshrrev_b32 v6, 5, v{L}"); a(f"v_bfe_u32 v7, v{L}, 2, 2"); a("v_lshl_add_u32 v6, v6, 2, v7"); a(f"v_lshlrev_b32 v{r}, 7, v6")
    a(f"v_bfe_u32 v6, v{L}, 3, 1"); a(f"v_lshl_add_u32 v{r}, v6, 6, v{r}")
    a(f"v_and_b32 v6, 1, v{L}"); a(f"v_lshl_add_u32 v{r}, v6, 4, v{r}")
    a(f"v_bfe_u32 v6, v{L}, 1, 1"); a(f"v_lshl_add_u32 v{r}, v6, 3, v{r}")
    a(f"v_bfe_u32 v6, v{L}, 4, 1"); a(f"v_lshl_add_u32 v{r}, v6, 5, v{r}")
    a(f"v_xor_b32 v{r+3}, 64, v{r}")
    for T in range(2):
        for seg in (1, 2): a(f"v_add_u32 v{r+3*T+seg}, {seg*65536}, v{r+3*T}")

def w_setup(a):
    srd(a, 12, 34, NG * 32768, WS_W1F)
    a(f"s_lshl_b32 s46, s{S_FT}, 2"); a(f"s_add_u32 s46, s46, s{S_W}")
    a("s_lshl_b32 s47, s46, 15")
def w_load(a, ks, LD=""):
    if ks and ks % 4 == 0: a("s_add_u32 s47, s47, 4096")
    return a(f"buffer_load_dwordx4 {ar(A_W+4*ks,4)}, v{V_L16}, s[12:15], s47 offen offset:{(ks%4)*1024} {LD}")

def x_setup(a, x_off):
    srd(a, 8, 34, S * D * 2, x_off)
    a(f"s_lshl_b32 s49, s{S_W}, 12")
    a(f"s_mul_i32 s48, s{S_RT}, {3*65536}"); a("s_add_u32 s48, s48, s49")
def x_dma(a, u, i, LD=""):
    if i == 0:
        a(f"s_add_u32 m0, s49, {(u % NSLOT) * 16384}")
        a(f"s_add_u32 s52, s48, {u * 16384}")
    return a(f"buffer_load_dwordx4 v{V_DMA}, s[8:11], s52 offen offset:{i*1024} {LD} lds")

def h_setup(a, h_off):
    srd(a, 40, 34, 64 * NG * 1024, h_off)
    a(f"s_cmp_ge_u32 s46, {NG}"); a("s_cselect_b32 s42, 0, s42")
    a(f"s_mul_i32 s50, s{S_RT}, {6*NG*1024}"); a("s_lshl_b32 s5, s46, 10"); a("s_add_u32 s50, s50, s5")

def epi_ops(P, ST):
    ops = []
    for T in range(2):
        acc = V_ACC + 32 * (P % 2) + 16 * T
        t = V_T + 8 * T
        for e in range(8): ops.append(f"v_max_f32 v{t+e}, 0, v{acc+e}")
        for e in range(8): ops.append(f"v_mul_f32 v{t+e}, v{t+e}, v{acc+8+e}")
        for j in range(4): ops.append(f"v_cvt_pk_bf16_f32 v{V_H+4*T+j}, v{t+2*j}, v{t+2*j+1}")
        ops.append(f"s_add_u32 s51, s50, {(2*P+T)*NG*1024}")
        ops.append(f"buffer_store_dwordx4 {vr(V_H+4*T,4)}, v{V_L16}, s[40:43], s51 offen {ST}")
    return ops

def mainloop(a, dma_ops, pending_dma, wops, ST, LD=""):
    NM = 192
    def rd(n):
        u, r = n // 16, n % 16
        ks, T = r // 2, r % 2
        base = (u % NSLOT) * 16384 + ks * 2048
        seg, off = base // 65536, base % 65536
        f = V_FR + 4 * (n % NF)
        for rho in range(2):
            a(f"ds_read_b64_tr_b16 {vr(f+2*rho,2)}, v{V_RD+3*T+seg} offset:{off + rho*1024}")
    def sync(u):
        a.wait_vm(dma_ops[u]); a("s_barrier")
    PD = NF - 1
    fill = []
    sync(0)
    for n in range(PD): rd(n)
    pend = list(pending_dma)
    for n in range(NM):
        u, r = n // 16, n % 16
        P = u // 4; ksg = (u % 4) * 8 + r // 2; T = r % 2
        acc = V_ACC + 32 * (P % 2) + 16 * T
        c = "0" if ksg == 0 else vr(acc, 16)
        a(f"v_mfma_f32_32x32x16_bf16 {vr(acc,16)}, {ar(A_W+4*ksg,4)}, {vr(V_FR+4*(n%NF),4)}, {c}")
        m = n + PD
        if m < NM:
            if m % 16 == 0: sync(m // 16)
            rd(m)
        if n % 64 == 3 and P > 0: fill = epi_ops(P - 1, ST)
        k = 0
        while fill and k < 2: a(fill.pop(0)); k += 1
        if pend and k == 0:
            pu, pi = pend[0]
            if pu < NSLOT or m >= (pu - NSLOT + 2) * 16:
                op = x_dma(a, pu, pi, LD); pend.pop(0)
                if pi == 3: dma_ops[pu] = op
    for o in epi_ops(2, ST): a(o)

def stats(a, x_off, r_off, ST, LD=""):
    srd(a, 8, 34, S * D * 2, x_off)
    a("v_lshlrev_b32 v4, 4, v0")
    a(f"s_mul_i32 s5, s{S_RT}, {3*65536}")
    R = 40; ACC = 8
    for i in range(48):
        a(f"buffer_load_dwordx4 {vr(R+4*i,4)}, v4, s[8:11], s5 offen {LD}")
        a(f"s_add_u32 s5, s5, 4096")
    for i in range(24): a(f"v_mov_b32 v{ACC+i}, 0")
    a("v_lshrrev_b32 v2, 3, v0"); a("v_cmp_eq_u32 vcc, 1, v2")
    for i in range(48):
        b = i // 16
        for j in range(4):
            if i % 16 == 0: a(f"v_cndmask_b32 v{R+4*i+j}, v{R+4*i+j}, 0, vcc")
            a(f"v_lshlrev_b32 v6, 16, v{R+4*i+j}"); a(f"v_and_b32 v7, 0xffff0000, v{R+4*i+j}")
            a(f"v_fmac_f32 v{ACC+8*b+2*j}, v6, v6"); a(f"v_fmac_f32 v{ACC+8*b+2*j+1}, v7, v7")
    a("v_mul_u32_u24 v4, 768, v2"); a("v_and_b32 v3, 7, v0"); a("v_lshl_add_u32 v4, v3, 5, v4")
    for b in range(3):
        a(f"ds_write_b128 v4, {vr(ACC+8*b,4)} offset:{b*256}"); a(f"ds_write_b128 v4, {vr(ACC+8*b+4,4)} offset:{b*256+16}")
    a("s_waitcnt lgkmcnt(0)"); a("s_barrier")
    a("v_lshlrev_b32 v4, 2, v0")
    for i in range(32): a(f"ds_read_b32 v{R+i}, v4 offset:{i*768}")
    for st in (16, 8, 4, 2, 1):
        for i in range(st): a(f"v_add_f32 v{R+i}, v{R+i}, v{R+i+st}")
    a(f"v_mov_b32 v6, {fhex(1e-5)}"); a(f"v_fmamk_f32 v{R}, v{R}, {fhex(1/512)}, v6"); a(f"v_rcp_f32 v{R}, v{R}")
    srd(a, 8, 34, 8192, r_off)
    a(f"s_mul_i32 s5, s{S_RT}, 768")
    a("v_mov_b32 v5, 0x400000")
    a("v_cmp_gt_u32 vcc, 192, v0"); a("v_cndmask_b32 v4, v5, v4, vcc")
    a(f"buffer_store_dword v{R}, v4, s[8:11], s5 offen {ST}")

def emit(a, end, x_off, h_off, r_off):
    a(f"v_and_b32 v{L}, 63, v0"); a("v_lshrrev_b32 v2, 6, v0"); a(f"v_readfirstlane_b32 s{S_W}, v2")
    task(a)
    addrs(a)
    a("s_waitcnt lgkmcnt(0)")
    lst, lend = a.newlabel("g1stats"), a.newlabel("g1end")
    st = a.save()
    a(f"s_cmp_ge_u32 s{S_RT}, 11"); a(f"s_cbranch_scc1 {lend}")
    a(f"s_cmp_eq_u32 s{S_FT}, 22"); a(f"s_cbranch_scc1 {lst}")
    x_setup(a, x_off); w_setup(a)
    dma = {}
    for u in range(4):
        for i in range(4): dma[u] = x_dma(a, u, i)
        for ks in range(8 * u, 8 * u + 8): w_load(a, ks)
    h_setup(a, h_off)
    mainloop(a, dma, [(u, i) for u in range(4, 12) for i in range(4)], None, "")
    end(a)
    a.restore(st); a.label(lst)
    stats(a, x_off, r_off, "")
    a.label(lend)
    end(a)
```

```python
from asmdsl import *
from maps import *
from p1 import srd
import p1
LDS_RED = 0
LDS_X = 49152
LDS = LDS_X + 65536
S_W = 3; S_JT = 53; S_TA = 54; S_TB = 55
L = 1
V_L16 = 5; V_LX = 6
V_RW = 7; V_RR = 8
V_XO = 9; V_RO = 10; V_AT = 11; V_MSK = 12; V_TR = 13; V_DM = 14
V_R = 16
V_RES = 32
V_T = 40
V_ACC = 56
V_HB = 120
V_CT = 120
V_XF = 184
A_HA = 0
def wreg(i, jj):
    n = 8 * i + 4 * jj
    return ar(128 + n, 4) if n < 128 else vr(208 + n - 128, 4)
def hreg(tile, i): return ar(A_HA + 4 * i, 4) if tile == 0 else vr(V_HB + 4 * i, 4)

def task(a):
    a("s_and_b32 s5, s2, 7"); a("s_lshl_b32 s5, s5, 2"); a("s_lshr_b32 s6, s2, 6"); a("s_add_u32 s5, s5, s6")
    a(f"s_bfe_u32 s{S_JT}, s2, 0x30003")
    a("s_mul_i32 s6, s5, 86"); a("s_lshr_b32 s6, s6, 8")
    a("s_mul_i32 s7, s6, 3"); a(f"s_add_u32 s{S_TA}, s5, s7")
    a("s_sub_u32 s7, s5, s7")
    a("s_cmp_eq_u32 s6, 10"); a("s_cselect_b32 s6, 2, 4")
    a("s_cmp_eq_u32 s7, 2"); a("s_cselect_b32 s6, 1, s6")
    a(f"s_add_u32 s{S_TB}, s{S_TA}, s6")
assert all((x * 86) >> 8 == x // 3 for x in range(32))

def addrs(a, final):
    a(f"v_lshlrev_b32 v{V_L16}, 4, v{L}")
    a(f"s_and_b32 s5, s{S_W}, 1"); a("s_lshl_b32 s6, s5, 8"); a(f"v_xor_b32 v{V_LX}, s6, v{V_L16}")
    a(f"s_mul_i32 s6, s{S_W}, 6144"); a(f"v_add_u32 v{V_RR}, s6, v{V_L16}")
    a(f"v_lshrrev_b32 v2, 5, v{L}"); a(f"v_and_b32 v3, 31, v{L}")
    a("s_lshl_b32 s5, s5, 5")
    if not final:
        a(f"v_lshlrev_b32 v{V_XO}, 7, v3"); a(f"v_lshl_add_u32 v{V_XO}, v2, 4, v{V_XO}"); a(f"v_add_u32 v{V_XO}, s5, v{V_XO}")
        a(f"s_lshl_b32 s5, s5, 1"); a(f"v_lshl_add_u32 v{V_RO}, v2, 5, s5")
        a(f"v_bfe_u32 v4, v{L}, 1, 3"); a(f"v_lshl_add_u32 v{V_AT}, v4, 2, v{V_RO}")
        a(f"v_and_b32 v4, 17, v{L}"); a("v_cmp_eq_u32 vcc, 0, v4"); a("v_mov_b32 v4, 0x400000"); a(f"v_cndmask_b32 v{V_AT}, v4, v{V_AT}, vcc")
        a(f"s_lshr_b32 s5, s{S_W}, 1"); a(f"s_or_b32 s5, s5, s{S_JT}"); a("s_lshl_b32 s5, s5, 5"); a("v_or_b32 v4, s5, v3")
        a("v_cmp_eq_u32 vcc, 1, v4"); a(f"v_cndmask_b32 v{V_MSK}, 1.0, 0, vcc")
    else:
        a("v_and_b32 v4, 19, v3"); a(f"v_bfe_u32 v{V_RO}, v3, 3, 1"); a(f"v_lshl_add_u32 v4, v{V_RO}, 2, v4")
        a(f"v_bfe_u32 v{V_RO}, v3, 2, 1"); a(f"v_lshl_add_u32 v4, v{V_RO}, 3, v4")
        a(f"v_lshlrev_b32 v{V_RO}, 2, v4")
        a(f"v_lshlrev_b32 v{V_XO}, 15, v4"); a(f"v_lshl_add_u32 v{V_XO}, v2, 4, v{V_XO}"); a(f"v_add_u32 v{V_XO}, s5, v{V_XO}")
        p1.tr_addr(a, V_TR, 64, V_T, True)
        a(f"s_lshl_b32 s5, s{S_W}, 14"); a(f"s_add_u32 s5, s5, {LDS_X}"); a(f"v_add_u32 v{V_TR}, s5, v{V_TR}")
        a(f"v_lshrrev_b32 v4, 2, v{L}"); a(f"v_lshlrev_b32 v{V_DM}, 7, v4"); a(f"v_and_b32 v4, 3, v{L}"); a(f"v_lshl_add_u32 v{V_DM}, v4, 4, v{V_DM}")

def w_setup(a, final):
    ngw = 118 if final else NG
    srd(a, 56, 34, 16 * ngw * 1024, WS_WDF if final else WS_WDP)
    a(f"s_lshr_b32 s5, s{S_W}, 1"); a(f"s_lshl_b32 s60, s{S_JT}, 1"); a("s_add_u32 s60, s60, s5")
    a("s_xor_b32 s6, s60, 1")
    a(f"s_mul_i32 s61, s60, {ngw*1024}"); a(f"s_mul_i32 s62, s6, {ngw*1024}")
    if final:
        a(f"s_lshl_b32 s5, s{S_W}, 13"); a(f"s_add_u32 s5, s5, {86*1024}"); a("s_add_u32 s63, s61, s5"); a("s_add_u32 s64, s62, s5")
    a(f"s_lshl_b32 s5, s{S_W}, 10"); a("s_add_u32 s61, s61, s5"); a("s_add_u32 s62, s62, s5")
def w_load(a, i, final, LD=""):
    v = V_LX if final else V_L16
    if i: a("s_add_u32 s61, s61, 4096"); a("s_add_u32 s62, s62, 4096")
    a(f"buffer_load_dwordx4 {wreg(i,0)}, v{v}, s[56:59], s61 offen {LD}")
    a(f"buffer_load_dwordx4 {wreg(i,1)}, v{v}, s[56:59], s62 offen {LD}")
def h_setup(a, h_off):
    srd(a, 40, 34, 64 * NG * 1024, h_off)
    a(f"s_lshl_b32 s5, s{S_W}, 10")
    for t in range(2):
        a(f"s_mul_i32 s{65+t}, s{S_TA+t}, {NG*1024}"); a(f"s_add_u32 s{65+t}, s{65+t}, s5")
def h_load(a, tile, i, final, LD=""):
    v = V_L16 if final else V_LX
    if i: a(f"s_add_u32 s{65+tile}, s{65+tile}, 4096")
    a(f"buffer_load_dwordx4 {hreg(tile,i)}, v{v}, s[40:43], s{65+tile} offen {LD}")
def xoff_setup(a, final):
    for t in range(2):
        a(f"s_lshr_b32 s5, s{S_TA+t}, 1"); a(f"s_and_b32 s6, s{S_TA+t}, 1")
        a(f"s_lshl_b32 s{67+t}, s5, 16"); a("s_lshl_b32 s7, s6, 6"); a(f"s_add_u32 s{67+t}, s{67+t}, s7")
        if final:
            a(f"s_lshl_b32 s{69+t}, s6, 20"); a("s_lshl_b32 s5, s5, 10"); a(f"s_add_u32 s{69+t}, s{69+t}, s5")
            a("s_lshl_b32 s5, s60, 6"); a(f"s_add_u32 s{69+t}, s{69+t}, s5")
        else:
            a("s_lshl_b32 s5, s60, 12"); a(f"s_add_u32 s{69+t}, s{67+t}, s5")
def r_load(a, r_off, final, LD=""):
    srd(a, 12, 34, 8192, r_off)
    for t in range(2):
        a(f"s_lshl_b32 s{71+t}, s{S_TA+t}, 7")
        if final: a(f"buffer_load_dword v{V_R+t}, v{V_RO}, s[12:15], s{71+t} offen {LD}")
        else:
            a(f"buffer_load_dwordx4 {vr(V_R+8*t,4)}, v{V_RO}, s[12:15], s{71+t} offen {LD}")
            a(f"buffer_load_dwordx4 {vr(V_R+8*t+4,4)}, v{V_RO}, s[12:15], s{71+t} offen offset:16 {LD}")

def ct_loads(a, LD=""):
    srd(a, 8, 34, S * D * 2, WS_X3)
    a(f"s_lshl_b32 s5, s{S_W}, 14")
    op = None
    for t in range(2):
        a(f"s_add_u32 s6, s{67+t}, s5")
        for i in range(8):
            a(f"s_add_u32 m0, s5, {LDS_X + t*8192 + i*1024}")
            op = a(f"buffer_load_dwordx4 v{V_DM}, s[8:11], s6 offen {LD} lds")
            if i < 7: a("s_add_u32 s6, s6, 2048")
    for k in range(8):
        for jj in range(2):
            if k == 4: a(f"s_add_u32 s{63+jj}, s{63+jj}, 4096")
            a(f"buffer_load_dwordx4 {vr(V_CT+8*k+4*jj,4)}, v{V_LX}, s[56:59], s{63+jj} offen offset:{(k%4)*1024}")
    return op
def ct_compute(a, op):
    a.wait_vm(op)
    def rd(n):
        t, k = n // 8, n % 8
        for rho in range(2): a(f"ds_read_b64_tr_b16 {vr(V_XF+4*(n%4)+2*rho,2)}, v{V_TR} offset:{t*8192 + k*1024 + rho*512}")
    for n in range(3): rd(n)
    for n in range(16):
        t, k = n // 8, n % 8
        for jj in range(2):
            acc = vr(V_ACC + 32 * t + 16 * jj, 16)
            a(f"v_mfma_f32_32x32x16_bf16 {acc}, {vr(V_CT+8*k+4*jj,4)}, {vr(V_XF+4*(n%4),4)}, {'0' if k == 0 else acc}")
        if n + 3 < 16: rd(n + 3)
def ct_scale(a, t):
    a(f"v_rcp_f32 v{V_R+2+t}, v{V_R+t}")
    for r in range(32): a(f"v_mul_f32 v{V_ACC+32*t+r}, v{V_R+2+t}, v{V_ACC+32*t+r}")

def mm(a, tile, final, hook=None):
    skip = a.newlabel("g2skip")
    for i in range(22):
        if i == 21:
            a(f"s_cmp_ge_u32 s{S_W}, 2"); a(f"s_cbranch_scc1 {skip}")
            st = a.save()
        for jj in range(2):
            acc = vr(V_ACC + 32 * tile + 16 * jj, 16)
            c = "0" if (i == 0 and not final) else acc
            A, B = (wreg(i, jj), hreg(tile, i)) if final else (hreg(tile, i), wreg(i, jj))
            a(f"v_mfma_f32_32x32x16_bf16 {acc}, {A}, {B}, {c}")
        if hook and i < 21: hook(i)
    hist = a.hist
    a.restore(st); a.hist = hist
    a.label(skip)

def reduce_write(a, tile):
    acc = V_ACC + 32 * tile
    for qq in range(1, 4):
        a(f"s_xor_b32 s5, s{S_W}, {qq}"); a("s_mul_i32 s5, s5, 6144"); a(f"v_add_u32 v{V_RW}, s5, v{V_L16}")
        for k in range(2):
            a(f"ds_write_b128 v{V_RW}, {vr(acc+8*qq+4*k,4)} offset:{LDS_RED + tile*24576 + (qq-1)*2048 + k*1024}")
    a("s_waitcnt lgkmcnt(0)"); a("s_barrier")
    for k in range(6): a(f"ds_read_b128 {vr(acc+8+4*k,4)}, v{V_RR} offset:{LDS_RED + tile*24576 + k*1024}")
    for e in range(8): a(f"v_add_f32 v{acc+e}, v{acc+e}, v{acc+8+e}")
    for e in range(8): a(f"v_add_f32 v{acc+16+e}, v{acc+16+e}, v{acc+24+e}")
    for e in range(8): a(f"v_add_f32 v{acc+e}, v{acc+e}, v{acc+16+e}")

def epi4(a, tile, ST):
    acc = V_ACC + 32 * tile; t = V_T
    for j in range(4):
        a(f"v_lshlrev_b32 v{t+2*j}, 16, v{V_RES+4*tile+j}"); a(f"v_and_b32 v{t+2*j+1}, 0xffff0000, v{V_RES+4*tile+j}")
    for e in range(8): a(f"v_fmac_f32 v{t+e}, v{acc+e}, v{V_R+8*tile+e}")
    for j in range(4): a(f"v_cvt_pk_bf16_f32 v{acc+8+j}, v{t+2*j}, v{t+2*j+1}")
    a(f"buffer_store_dwordx4 {vr(acc+8,4)}, v{V_XO}, s[76:79], s{69+tile} offen {ST}")
    for e in range(8): a(f"v_mul_f32 v{t+8+e}, v{V_MSK}, v{t+e}")
    for e in range(8): a(f"v_mul_f32 v{t+e}, v{t+8+e}, v{t+e}")
    for e in range(4):
        a(f"v_add_f32_dpp v{t+8+e}, v{t+e}, v{t+e} row_mirror row_mask:0xf bank_mask:0x3")
        a(f"v_add_f32_dpp v{t+8+e}, v{t+4+e}, v{t+4+e} row_mirror row_mask:0xf bank_mask:0xc")
    for e in range(2):
        a(f"v_add_f32_dpp v{t+e}, v{t+8+e}, v{t+8+e} row_half_mirror row_mask:0xf bank_mask:0x5")
        a(f"v_add_f32_dpp v{t+e}, v{t+10+e}, v{t+10+e} row_half_mirror row_mask:0xf bank_mask:0xa")
    for m in ("quad_perm:[1,0,3,2]", "quad_perm:[2,3,0,1]"):
        for e in range(2): a(f"v_add_f32_dpp v{t+e}, v{t+e}, v{t+e} {m} row_mask:0xf bank_mask:0xf")
    a("s_mov_b32 vcc_lo, 0xcccccccc"); a("s_mov_b32 vcc_hi, 0xcccccccc")
    a(f"v_cndmask_b32 v{t}, v{t}, v{t+1}, vcc")
    a(f"v_mov_b32 v{t+1}, v{t}")
    a(f"v_permlane16_swap_b32 v{t}, v{t+1}")
    a(f"v_add_f32 v{t}, v{t}, v{t+1}")
    a(f"buffer_atomic_add_f32 v{t}, v{V_AT}, s[80:83], s{71+tile} offen")

def epi7(a, tile):
    acc = V_ACC + 32 * tile
    for e in range(8): a(f"v_mul_f32 v{acc+e}, v{V_R+tile}, v{acc+e}")
    for j in range(4): a(f"v_cvt_pk_bf16_f32 v{acc+8+j}, v{acc+2*j}, v{acc+2*j+1}")
    a(f"buffer_store_dwordx4 {vr(acc+8,4)}, v{V_XO}, s[76:79], s{69+tile} offen")

def emit(a, end, final):
    a(f"v_and_b32 v{L}, 63, v0"); a("v_lshrrev_b32 v2, 6, v0"); a(f"v_readfirstlane_b32 s{S_W}, v2")
    task(a); addrs(a, final)
    a("s_waitcnt lgkmcnt(0)")
    w_setup(a, final); xoff_setup(a, final)
    if final: op = ct_loads(a)
    r_load(a, WS_R3 if final else WS_R1, final)
    h_setup(a, WS_H2 if final else WS_H1)
    if not final:
        srd(a, 8, 34, S * D * 2, WS_X1)
        for t in range(2): a(f"buffer_load_dwordx4 {vr(V_RES+4*t,4)}, v{V_XO}, s[8:11], s{69+t} offen")
        srd(a, 76, 34, S * D * 2, WS_X2); srd(a, 80, 34, 8192, WS_SS2)
    else: srd(a, 76, 30, S * D * 2)
    n0 = 9 if final else 18
    for i in range(n0): w_load(a, i, final); h_load(a, 0, i, final)
    if final:
        ct_compute(a, op)
        for i in range(n0, 18): w_load(a, i, final); h_load(a, 0, i, final)
        ct_scale(a, 0); ct_scale(a, 1)
    rest = [("w", i) for i in range(18, 22)] + [("b", i) for i in range(22)]
    def hook(i):
        for _ in range(2):
            if rest:
                k, j = rest.pop(0)
                if k == "w": w_load(a, j, final); h_load(a, 0, j, final); break
                h_load(a, 1, j, final)
    mm(a, 0, final, hook)
    assert not rest
    reduce_write(a, 0)
    epi7(a, 0) if final else epi4(a, 0, "")
    mm(a, 1, final)
    reduce_write(a, 1)
    epi7(a, 1) if final else epi4(a, 1, "")
    end(a)
```

```python
import sys
from asmdsl import *
from maps import *
import p1

STAMPS = "--stamps" in sys.argv
HDR = open("interleave_layers__spectral_gfnet__glu_gated_reglu__prompt.s.ref").read().split("; Override launch")[0]

def kernel_begin(a, name, nwg):
    a.reset()
    a.raw(f".globl {name}\n.p2align 8\n.type {name},@function\n{name}:")
    if STAMPS: a("s_memrealtime s[96:97]")
    a("s_load_dwordx16 s[16:31], s[0:1], 0")
    a("s_load_dwordx4 s[32:35], s[0:1], 64")
    a(f"s_cmp_ge_u32 s2, {nwg}")
    a(f"s_cbranch_scc1 {name}_exit")

def make_end(idx):
    def end(a):
        if STAMPS:
            a("s_memrealtime s[98:99]")
            a("s_waitcnt vmcnt(0)")
            a("s_memrealtime s[100:101]")
            a("s_waitcnt lgkmcnt(0)")
            a("s_lshl_b32 s5, s2, 6"); a(f"s_add_u32 s5, s5, {WS_STAMP + idx * 512 * 64}")
            a("v_mov_b32 v1, s5")
            for i in range(6): a(f"v_mov_b32 v{2+i}, s{96+i}")
            a("v_cmp_eq_u32 vcc, 0, v0"); a("s_and_saveexec_b64 s[14:15], vcc")
            a("global_store_dwordx4 v1, v[2:5], s[34:35]")
            a("global_store_dwordx2 v1, v[6:7], s[34:35] offset:16")
        a("s_endpgm")
    return end

def desc(name, vgpr, acc_off):
    return f""".p2align 6
.amdhsa_kernel {name}
  .amdhsa_next_free_vgpr {vgpr}
  .amdhsa_next_free_sgpr 102
  .amdhsa_accum_offset {acc_off}
  .amdhsa_group_segment_fixed_size 0
  .amdhsa_kernarg_size 80
  .amdhsa_user_sgpr_count 2
  .amdhsa_user_sgpr_kernarg_segment_ptr 1
  .amdhsa_system_sgpr_workgroup_id_x 1
  .amdhsa_float_denorm_mode_32 3
.end_amdhsa_kernel"""

def main():
    ks = []
    ks.append(("p1_kernel", p1.P1_WGS, p1.P1_LDS, 240, 240, lambda a, e: p1.emit_p1(a, e)))
    try:
        import pcol
        ks.append(("p2_kernel", 256, pcol.LDS, 256, 256, lambda a, e: pcol.emit(a, e, WS_X0, WS_SS0, WS_X1)))
        import pg1
        ks.append(("p3_kernel", pg1.WGS, pg1.LDS, 512, 256, lambda a, e: pg1.emit(a, e, WS_X1, WS_H1, WS_R1)))
        import pg2
        ks.append(("p4_kernel", 256, pg2.LDS, 512, 256, lambda a, e: pg2.emit(a, e, False)))
        ks.append(("p5_kernel", 256, pcol.LDS, 256, 256, lambda a, e: pcol.emit(a, e, WS_X2, WS_SS2, WS_X3)))
        ks.append(("p6_kernel", pg1.WGS, pg1.LDS, 512, 256, lambda a, e: pg1.emit(a, e, WS_X3, WS_H2, WS_R3)))
        ks.append(("p7_kernel", 256, pg2.LDS, 512, 256, lambda a, e: pg2.emit(a, e, True)))
    except ImportError as ex:
        print("; partial:", ex, file=sys.stderr)
    out = [HDR.rstrip("\n")]
    for k in ks: out.append(f"; @launch kernel={k[0]} grid=({k[1]},1,1) block=(256,1,1) lds={k[2]}")
    out.append('.amdgcn_target "amdgcn-amd-amdhsa--gfx950"\n.text')
    a = Asm()
    for i, k in enumerate(ks):
        kernel_begin(a, k[0], k[1])
        k[5](a, make_end(i))
        a.raw(f"{k[0]}_exit:\n    s_endpgm")
    out.append(a.text())
    out.append('.section .rodata,"a"')
    for k in ks: out.append(desc(k[0], k[3], k[4]))
    print("\n".join(out))
main()
```

```python
import re, copy, struct

def f2u(x):
    return struct.unpack("<I", struct.pack("<f", x))[0]
def fhex(x):
    return "0x%08x" % f2u(x)

_REG = re.compile(r"^(-?)(?:abs\(|\|)?([vas])(?:(\d+)|\[(\d+):(\d+)\])\)?\|?$")
def regs_of(tok):
    tok = tok.strip()
    if tok in ("vcc",): return {("s", "vcc")}
    if tok in ("vcc_lo", "vcc_hi"): return {("s", "vcc")}
    if tok in ("exec", "exec_lo", "exec_hi"): return {("s", "exec")}
    if tok == "m0": return {("s", "m0")}
    m = _REG.match(tok)
    if not m: return set()
    k = m.group(2)
    if m.group(3) is not None: return {(k, int(m.group(3)))}
    return {(k, i) for i in range(int(m.group(4)), int(m.group(5)) + 1)}

TRANS = ("v_exp_f32", "v_log_f32", "v_rcp_f32", "v_rsq_f32", "v_sqrt_f32", "v_sin_f32", "v_cos_f32", "v_rcp_iflag_f32")

def split_ops(s):
    out, depth, cur = [], 0, ""
    for ch in s:
        if ch in "[(": depth += 1
        if ch in "])": depth -= 1
        if ch == "," and depth == 0:
            out.append(cur.strip()); cur = ""
        else: cur += ch
    if cur.strip(): out.append(cur.strip())
    return out

class Ins:
    __slots__ = ("text", "mn", "w", "r", "cls", "ws", "passes", "srcc", "ab", "dpp", "widestore", "data")
    def __init__(self, text):
        self.text = text
        t = text.split(";")[0].strip()
        parts = t.split(None, 1)
        mn = parts[0]; self.mn = mn
        ops = split_ops(parts[1]) if len(parts) > 1 else []
        mods = ""
        if ops:
            l = ops[-1].split(None, 1)
            ops[-1] = l[0]
            if len(l) > 1: mods = l[1]
        R = [regs_of(o) for o in ops]
        self.w, self.r = set(), set()
        self.ws = 1; self.passes = 0; self.srcc = set(); self.ab = set(); self.dpp = False; self.widestore = False; self.data = set()
        U = lambda l: set().union(*l) if l else set()
        if mn == "s_nop":
            self.cls = "nop"; self.ws = int(ops[0], 0) + 1
        elif mn.startswith("v_mfma"):
            self.cls = "mfma"; self.w = R[0]; self.ab = R[1] | R[2]; self.srcc = R[3]; self.r = self.ab | self.srcc
            self.passes = 8 if "32x32x16" in mn else 4 if "16x16x32" in mn else None
            assert self.passes, mn
        elif mn.startswith("v_"):
            base = re.sub(r"_(e32|e64|dpp|sdwa)$", "", mn)
            self.cls = "trans" if base in TRANS else "valu"
            self.dpp = mn.endswith("_dpp")
            if base.startswith("v_permlane") or base == "v_swap_b32":
                self.w = R[0] | R[1]; self.r = R[0] | R[1]
            elif base.startswith("v_cmpx"):
                self.w = R[0] | {("s", "exec")}; self.r = U(R[1:])
            elif base in ("v_add_co_u32", "v_sub_co_u32", "v_addc_co_u32", "v_subb_co_u32", "v_subrev_co_u32", "v_mad_u64_u32"):
                self.w = R[0] | R[1]; self.r = U(R[2:])
            else:
                self.w = R[0]; self.r = U(R[1:])
                if base in ("v_fmac_f32", "v_dot2c_f32_bf16", "v_pk_fmac_f16", "v_writelane_b32") or self.dpp or mn.endswith("_sdwa"):
                    self.r |= R[0]
            if base.startswith("v_dot"): self.cls = "dot"
        elif mn.startswith("ds_"):
            self.cls = "ds"
            if mn.startswith("ds_read") or mn.startswith("ds_bpermute") or mn.startswith("ds_swizzle") or mn.startswith("ds_permute"):
                self.w = R[0]; self.r = U(R[1:])
            else: self.r = U(R)
        elif mn.startswith("buffer_") or mn.startswith("global_"):
            self.cls = "vm"
            islds = (" lds" in (" " + mods)) or "load_lds" in mn
            if mn in ("buffer_inv", "buffer_wbl2"): pass
            elif islds: self.r = U(R) | {("s", "m0")}; self.cls = "vm"
            elif "_load_" in mn: self.w = R[0]; self.r = U(R[1:])
            elif "atomic" in mn and "sc0" in mods.split():
                self.w = R[0]; self.r = U(R) if mn.startswith("buffer_") else U(R[1:])
            else:
                self.r = U(R)
                if "dwordx4" in mn or "dwordx3" in mn:
                    self.widestore = True; self.data = R[0] if mn.startswith("buffer_") else R[1]
        elif mn.startswith("s_load") or mn.startswith("s_memtime") or mn.startswith("s_memrealtime") or mn.startswith("s_buffer_load"):
            self.cls = "smem"; self.w = R[0]; self.r = U(R[1:])
        elif mn.startswith("s_"):
            self.cls = "salu"
            if mn.startswith(("s_cmp", "s_cbranch", "s_branch", "s_waitcnt", "s_barrier", "s_endpgm", "s_sleep", "s_setprio", "s_bitcmp", "s_setpc")):
                self.r = U(R)
            elif "saveexec" in mn: self.w = R[0] | {("s", "exec")}; self.r = U(R[1:]) | {("s", "exec")}
            else: self.w = R[0]; self.r = U(R[1:])
        else:
            raise ValueError("unknown instr: " + text)

def isv(regs): return {x for x in regs if x[0] in "va"}
def iss(regs): return {x for x in regs if x[0] == "s"}
VALUISH = ("valu", "trans", "dot")

def need(p, c):
    n = 0
    cbase = re.sub(r"_(e32|e64|dpp|sdwa)$", "", c.mn)
    if p.cls in VALUISH:
        pw = isv(p.w); ps = iss(p.w)
        if c.cls == "mfma" and pw & c.r: n = max(n, 2)
        if c.cls == "mfma" and ("s", "exec") in ps: n = max(n, 4)
        if p.cls == "trans" and c.cls in ("valu", "dot") and pw & c.r: n = max(n, 1)
        if p.cls == "dot" and c.cls in VALUISH + ("mfma", "vm", "ds"):
            if pw & (c.r | c.w):
                same = (c.mn == p.mn)
                ops_ab = c.r - c.w
                if not (same and not (pw & ops_ab)): n = max(n, 3)
        if p.mn.endswith("_sdwa") and c.cls in VALUISH and pw & (c.r | c.w): n = max(n, 1)
        if ps:
            if c.cls in VALUISH and (ps & c.r): n = max(n, 4 if cbase in ("v_readlane_b32", "v_writelane_b32") else 2)
            if c.cls == "vm" and (ps & c.r): n = max(n, 5)
            if ("s", "exec") in ps:
                if c.dpp: n = max(n, 5)
                if cbase in ("v_readlane_b32", "v_readfirstlane_b32", "v_writelane_b32") or cbase.startswith("v_permlane"): n = max(n, 4)
            if c.cls == "salu" and (ps & c.r): n = max(n, 1)
        if pw & c.r:
            if cbase in ("v_readlane_b32", "v_readfirstlane_b32"): n = max(n, 1)
            if c.dpp: n = max(n, 2)
            if cbase.startswith("v_permlane"): n = max(n, 2)
    if p.cls == "mfma":
        P = p.passes
        if c.cls == "mfma":
            if p.w & c.ab: n = max(n, P + 4)
            if p.w & c.srcc:
                if not (p.w == c.srcc and c.passes == P): n = max(n, P + 2)
            if p.w & c.w and not (p.w == c.srcc): n = max(n, P + 2)
        elif c.cls in VALUISH:
            if p.w & (c.r | c.w): n = max(n, P + 4)
            if p.srcc & c.w: n = max(n, P - 1)
        elif c.cls in ("vm", "ds"):
            if p.w & (c.r | c.w): n = max(n, P + 4)
            if p.srcc & c.w: n = max(n, P - 1)
    if p.cls == "vm" and p.widestore and (p.data & c.w):
        n = max(n, 2 if c.cls in VALUISH + ("mfma",) else 1)
    if p.cls == "salu" and ("s", "m0") in p.w and c.cls in ("vm", "ds") and ("s", "m0") in c.r: n = max(n, 1)
    return n

class Asm:
    def __init__(self):
        self.lines = []
        self.hist = []
        self.vm = []
        self.lg = []
        self.smem = set()
        self.condid = 0; self.curcond = None
        self.nlab = 0
        self.auto = True
    def raw(self, s): self.lines.append(s)
    def comment(self, s): self.lines.append("    ; " + s)
    def newlabel(self, base="L"):
        self.nlab += 1; return f"{base}_{self.nlab}"
    def label(self, name, pad=0):
        self.lines.append(name + ":")
        if pad: self(f"s_nop {pad - 1}")
    def _younger(self, lst, idx):
        me = lst[idx]
        n = 0
        for o in lst[idx + 1:]:
            if o["cond"] is None or o["cond"] == self.curcond or o["cond"] == me["cond"]: n += 1
        return n
    def _emit_wait(self, vm=None, lg=None):
        if vm is not None: vm = min(vm, 63)
        if lg is not None: lg = min(lg, 15)
        s = "s_waitcnt"
        if vm is not None: s += f" vmcnt({vm})"
        if lg is not None: s += f" lgkmcnt({lg})"
        self._put(Ins(s))
        self._note_wait(vm, lg)
    def _trim(self, lst, n):
        for i in range(len(lst)):
            if self._younger(lst, i) < n: return lst[i:]
        return []
    def _note_wait(self, vm, lg):
        if vm is not None: self.vm = self._trim(self.vm, vm)
        if lg is not None:
            if lg == 0: self.smem = set()
            if not self.smem: self.lg = self._trim(self.lg, lg)
    def _put(self, ins):
        dist = 0; req = 0
        for p in reversed(self.hist):
            n = need(p, ins) - dist
            if n > req: req = n
            dist += p.ws
            if dist > 24: break
        while req > 0:
            k = min(req, 16)
            nop = Ins(f"s_nop {k - 1}")
            self.lines.append("    " + nop.text); self.hist.append(nop); req -= k
        self.lines.append("    " + ins.text)
        self.hist.append(ins)
        if len(self.hist) > 40: self.hist = self.hist[-30:]
    def __call__(self, text):
        if "\n" in text:
            r = None
            for l in text.split("\n"):
                if l.strip(): r = self(l.strip())
            return r
        text = text.strip()
        if text.startswith(";"):
            self.lines.append("    " + text); return None
        ins = Ins(text)
        if ins.mn == "s_waitcnt":
            m = re.search(r"vmcnt\((\d+)\)", text); vm = int(m.group(1)) if m else None
            m = re.search(r"lgkmcnt\((\d+)\)", text); lg = int(m.group(1)) if m else None
            self._put(ins); self._note_wait(vm, lg); return None
        if self.auto:
            touch = ins.r | ins.w
            wv = wl = None
            for i in range(len(self.vm) - 1, -1, -1):
                if self.vm[i]["w"] & touch:
                    wv = self._younger(self.vm, i); break
            for i in range(len(self.lg) - 1, -1, -1):
                if self.lg[i]["w"] & touch:
                    wl = self._younger(self.lg, i); break
            if self.smem & touch: wl = 0
            if wl is not None and self.smem: wl = 0
            if wv is not None or wl is not None:
                self._emit_wait(wv, wl)
        self._put(ins)
        if ins.cls == "vm":
            op = dict(w=set(ins.w), cond=self.curcond); self.vm.append(op); return op
        if ins.cls == "ds":
            op = dict(w=set(ins.w), cond=self.curcond); self.lg.append(op); return op
        if ins.cls == "smem": self.smem |= ins.w
        return None
    def wait_vm(self, op):
        for i, o in enumerate(self.vm):
            if o is op:
                self._emit_wait(vm=self._younger(self.vm, i))
                return
    def wait_regs(self, tok):
        r = regs_of(tok)
        for i in range(len(self.vm) - 1, -1, -1):
            if self.vm[i]["w"] & r:
                self._emit_wait(vm=self._younger(self.vm, i)); return
    def wait_lg(self, op):
        for i, o in enumerate(self.lg):
            if o is op:
                n = 0 if self.smem else self._younger(self.lg, i)
                self._emit_wait(lg=n); return
    def cond_begin(self):
        self.condid += 1; self.curcond = self.condid
    def cond_end(self): self.curcond = None
    def save(self): return (list(self.hist), list(self.vm), list(self.lg), set(self.smem))
    def restore(self, st): self.hist, self.vm, self.lg, self.smem = list(st[0]), list(st[1]), list(st[2]), set(st[3])
    def reset(self): self.hist, self.vm, self.lg, self.smem = [], [], [], set()
    stamps = False
    stampop = 's_memrealtime'
    nst = 0
    def stamp(self, name=""):
        if not self.stamps: return
        assert self.nst < 6
        self(f"{self.stampop} s[{84+2*self.nst}:{85+2*self.nst}]"); self.nst += 1
    def flush(self, n=None):
        if not self.stamps: return
        self("s_waitcnt lgkmcnt(0)")
        for i in range(self.nst):
            self(f"s_add_u32 m0, s100, {i}")
            self(f"v_writelane_b32 v15, s{84+2*i}, m0")
        self(f"s_add_u32 s100, s100, {n if n is not None else self.nst}")
        self.nst = 0
    def align8(self): self.lines.append("    .p2align 3, , 4")
    def text(self): return "\n".join(self.lines) + "\n"

def vr(base, n=1, k="v"):
    return f"{k}{base}" if n == 1 else f"{k}[{base}:{base + n - 1}]"
def ar(base, n=1): return vr(base, n, "a")
def sr(base, n=1): return vr(base, n, "s")
```

```python
import numpy as np
S, D, F = 2048, 512, 1376
NG = 86
def kappa(h, e): return 8 * (e // 4) + 4 * h + e % 4
def sigma(m): return (m & 16) + 8 * ((m >> 2) & 1) + 4 * ((m >> 3) & 1) + (m & 3)
def s_of_sp(sp): return 32 * (sp % 64) + sp // 64
def freq(p):
    g, i = p // 16, p % 16
    if p == 0: return 256
    if i < 8: return g + 32 * i
    return 32 * (i - 7) - (g if g else 16)
MB = 1 << 20
HSZ = 64 * NG * 1024
TSZ = NG * 1024
def hpos(T):
    rt, t = T // 6, T % 6
    return 2 * rt + t - 4 if t >= 4 else 20 + 4 * rt + t
WS_X = 0; WS_WT = 2 * MB; WS_SS0 = 4 * MB
WS_W1F = 4 * MB + 0x10000
WS_FILL = 7 * MB
WS_R1 = WS_FILL; WS_R3 = WS_R1 + 8192; WS_SS2 = WS_R3 + 8192; WS_H = WS_SS2 + 32768
FILL_SIZE = WS_H + 20 * TSZ - WS_FILL
WS_WDP = 13 * MB
WS_WDF = WS_WDP + 16 * TSZ
WS_FLAG = 16 * MB + 0x80000
WS_STAMP = 30 * MB
assert WS_W1F + NG * 32768 <= WS_FILL and WS_H + HSZ <= WS_WDP
```

```python
from asmdsl import *
from maps import *
from regs import *
import sync

V_FU = 216
LDS_ST = 32 * 1040 + 32768
NTI = 'nt'
RS = 1040
EX = 32 * RS
S_B = 47; S_TY = 48; S_MAT = 49; S_SG = 50
V_LANE = 1
V_F32 = 16; V_M = 24; V_T = 56; V_RAW = 88; V_B = 120; V_ACC = 152; V_PK = 88

def gen_f32(a):
    t = V_T
    a(f"v_and_b32 v{t}, 3, v{V_LANE}")
    a(f"v_bfe_u32 v{t+1}, v{V_LANE}, 3, 2")
    a(f"v_lshl_add_u32 v{t}, v{t+1}, 2, v{t}")
    a(f"v_bfe_u32 v{t+1}, v{V_LANE}, 2, 1")
    a(f"v_cvt_f32_u32 v{t+2}, v{t}")
    a(f"v_mul_f32 v{t+2}, {fhex(1/32)}, v{t+2}")
    a(f"v_cvt_f32_u32 v{t+3}, v{t+1}")
    a(f"v_mul_f32 v{t+3}, {fhex(0.25)}, v{t+3}")
    a(f"v_and_b32 v{t+4}, 31, v{V_LANE}")
    a(f"v_cmp_eq_u32 vcc, 4, v{t+4}")
    a(f"v_lshrrev_b32 v{t+4}, 1, v{V_LANE}")
    a(f"v_and_b32 v{t+4}, 16, v{t+4}")
    a(f"v_cndmask_b32 v{t+2}, v{t+2}, 0.5, vcc")
    a(f"v_cndmask_b32 v{t+3}, v{t+3}, 0, vcc")
    a(f"v_cvt_f32_u32 v{t+4}, v{t+4}")
    a(f"v_fma_f32 v{t+8}, v{t+4}, v{t+2}, v{t+3}")
    for j in range(1, 16): a(f"v_add_f32 v{t+8+j}, v{t+7+j}, v{t+2}")
    for j in range(16): a(f"v_cos_f32 v{t+8+j}, v{t+8+j}")
    a(f"s_mov_b32 s5, {fhex(1/16)}")
    for j in range(16): a(f"v_mul_f32 v{t+8+j}, s5, v{t+8+j}")
    for j in range(8): a(f"v_cvt_pk_bf16_f32 v{V_F32+j}, v{t+8+2*j}, v{t+9+2*j}")

def gen_m(a):
    t = V_T
    a(f"v_bfe_u32 v{t+6}, v{V_LANE}, 1, 3")
    a(f"v_bfe_u32 v{t+7}, v{V_LANE}, 4, 1")
    a(f"v_add_u32 v{t+6}, v{t+6}, v{t+7}")
    a(f"v_cvt_f32_u32 v{t}, v{t+6}")
    a(f"v_mul_f32 v{t}, {fhex(1/16)}, v{t}")
    a(f"v_cvt_f32_u32 v{t+7}, v{t+7}")
    a(f"v_fma_f32 v{t+6}, v{t+7}, -2.0, 1.0")
    a(f"v_mul_f32 v{t+1}, {fhex(1/512)}, v{t+6}")
    a(f"v_lshrrev_b32 v{t+24}, 5, v{V_LANE}")
    a(f"v_cvt_f32_u32 v{t+24}, v{t+24}")
    a(f"v_and_b32 v{t+25}, 1, v{V_LANE}")
    a(f"v_cvt_f32_u32 v{t+25}, v{t+25}")
    a(f"v_fma_f32 v{t+2}, -v{t+6}, v{t+24}, v{t+25}")
    a(f"v_mul_f32 v{t+2}, {fhex(0.25)}, v{t+2}")
    a(f"v_fmamk_f32 v{t+26}, v{t+7}, {fhex(-16/512)}, v{t}")
    a(f"v_mul_f32 v{t+27}, {fhex(0.25)}, v{t+25}")
    a(f"v_cmp_eq_f32 vcc, v{t+7}, v{t+24}")
    a(f"v_mov_b32 v{t+28}, {fhex(2 ** -0.5)}")
    a(f"s_cmp_eq_u32 s{S_TY}, 1"); a(f"s_cselect_b32 s5, 0, {fhex(2 ** -0.5)}")
    a(f"v_mov_b32 v{t+30}, s5")
    a(f"v_cndmask_b32 v{t+5}, 0, 1.0, vcc")
    a("s_mov_b64 vcc, 1")
    a(f"v_cndmask_b32 v{t+26}, v{t+26}, 0.5, vcc")
    a(f"v_cndmask_b32 v{t+5}, v{t+5}, v{t+28}, vcc")
    a("s_mov_b64 vcc, 2")
    a(f"v_cndmask_b32 v{t+27}, v{t+27}, 0, vcc")
    a(f"v_cndmask_b32 v{t+5}, v{t+5}, v{t+30}, vcc")
    a(f"s_lshl_b32 s5, s{S_W}, 2")
    a(f"v_cvt_f32_u32 v{t+29}, s5")
    a(f"v_fma_f32 v{t+3}, v{t+29}, v{t+1}, v{t}")
    a(f"s_cmp_eq_u32 s{S_W}, 0")
    a(f"s_cselect_b64 vcc, -1, 0")
    a(f"v_cndmask_b32 v{t+26}, v{t+3}, v{t+26}, vcc")
    a(f"v_cndmask_b32 v{t+27}, v{t+2}, v{t+27}, vcc")
    a(f"v_cndmask_b32 v{t+5}, 1.0, v{t+5}, vcc")
    for gg in range(4):
        om, ph = (t + 26, t + 27) if gg == 0 else (t + 3, t + 2)
        if gg: a(f"v_add_f32 v{t+3}, v{t+3}, v{t+1}")
        a(f"v_add_f32 v{t+9}, v{ph}, v{om}")
        for j in range(2, 16): a(f"v_add_f32 v{t+8+j}, v{t+7+j}, v{om}")
        a(f"v_cos_f32 v{t+8}, v{ph}")
        for j in range(1, 16): a(f"v_cos_f32 v{t+8+j}, v{t+8+j}")
        if gg == 0:
            for j in range(16): a(f"v_mul_f32 v{t+8+j}, v{t+5}, v{t+8+j}")
        for j in range(8): a(f"v_cvt_pk_bf16_f32 v{V_M+8*gg+j}, v{t+8+2*j}, v{t+9+2*j}")

def tr_addr(a, dst, rowstride, tmp):
    a(f"v_lshrrev_b32 v{tmp}, 5, v{V_LANE}")
    a(f"v_bfe_u32 v{tmp+1}, v{V_LANE}, 2, 2")
    a(f"v_lshl_add_u32 v{tmp}, v{tmp}, 2, v{tmp+1}")
    a(f"v_mul_u32_u24 v{dst}, {rowstride}, v{tmp}")
    a(f"v_and_b32 v{tmp}, 1, v{V_LANE}")
    a(f"v_lshl_add_u32 v{dst}, v{tmp}, 4, v{dst}")
    a(f"v_bfe_u32 v{tmp}, v{V_LANE}, 1, 1")
    a(f"v_lshl_add_u32 v{dst}, v{tmp}, 3, v{dst}")
    a(f"v_bfe_u32 v{tmp}, v{V_LANE}, 4, 1")
    a(f"v_lshl_add_u32 v{dst}, v{tmp}, 5, v{dst}")

def sel3(a, items):
    for d, v1, v3, v2 in items: a(f"s_mov_b32 s{d}, {v1}")
    a(f"s_cmp_eq_u32 s{S_TY}, 1")
    for d, v1, v3, v2 in items: a(f"s_cselect_b32 s{d}, {v3}, s{d}")
    a(f"s_cmp_eq_u32 s{S_TY}, 2")
    for d, v1, v3, v2 in items: a(f"s_cselect_b32 s{d}, {v2}, s{d}")

def pre(a):
    a("s_lshr_b32 s5, s2, 3"); a("s_and_b32 s52, s2, 7")
    a(f"s_mov_b32 s{S_TY}, 0"); a("s_mov_b32 s6, 0"); a("s_mov_b32 s7, 8"); a("s_mov_b32 s56, 64")
    for ty, first, per, lim in ((1, 8, 11, 86), (2, 19, 6, 43), (3, 25, 2, 16), (4, 27, 5, 40)):
        a(f"s_cmp_ge_u32 s5, {first}")
        a(f"s_cselect_b32 s{S_TY}, {ty}, s{S_TY}"); a(f"s_cselect_b32 s6, {first}, s6"); a(f"s_cselect_b32 s7, {per}, s7"); a(f"s_cselect_b32 s56, {lim}, s56")
    a(f"s_mul_i32 s{S_B}, s52, s7"); a(f"s_add_u32 s{S_B}, s{S_B}, s5"); a(f"s_sub_u32 s{S_B}, s{S_B}, s6")
    a(f"s_cmp_ge_u32 s{S_B}, s56"); a(f"s_cselect_b32 s{S_TY}, 5, s{S_TY}")
    a(f"s_and_b32 s{S_MAT}, s{S_B}, 1"); a(f"s_lshr_b32 s51, s{S_B}, 1")
    a(f"s_cmp_ge_u32 s{S_B}, 43"); a("s_cselect_b32 s6, 1, 0"); a("s_cselect_b32 s7, 43, 0"); a(f"s_sub_u32 s7, s{S_B}, s7")
    a(f"s_cmp_eq_u32 s{S_TY}, 1"); a(f"s_cselect_b32 s{S_MAT}, s6, s{S_MAT}"); a("s_cselect_b32 s51, s7, s51")
    a(f"s_lshr_b32 s6, s{S_W}, 1"); a("s_lshl_b32 s6, s6, 2"); a(f"s_and_b32 s7, s{S_W}, 1"); a(f"s_add_u32 s{S_SG}, s6, s7")
    a(f"s_lshl_b32 s56, s{S_MAT}, 20"); a("s_lshl_b32 s6, s51, 10"); a("s_add_u32 s56, s56, s6"); a(f"s_lshl_b32 s6, s{S_SG}, 17"); a("s_add_u32 s56, s56, s6")
    a(f"s_mul_i32 s57, s{S_W}, {4*2752}"); a("s_lshl_b32 s6, s51, 6"); a("s_add_u32 s57, s57, s6")
    a(f"s_lshl_b32 s58, s{S_B}, 15"); a(f"s_lshl_b32 s6, s{S_W}, 13"); a("s_add_u32 s58, s58, s6")
    sel3(a, [(60, "s56", "s57", "s58"), (61, 32768, 256 * 2752, 1024), (62, 65536, 2752, 2048), (63, 8 * 32768, 2 * 2752, 4096), (5, 64, 16 * 2752, 64)])
    a(f"v_lshrrev_b32 v4, 2, v{V_LANE}"); a("v_mul_u32_u24 v4, s5, v4")
    a(f"v_and_b32 v5, 3, v{V_LANE}"); a("v_lshl_add_u32 v4, v5, 4, v4")
    a("s_add_u32 s64, s60, s61"); a("s_add_u32 s65, s60, s62"); a("s_add_u32 s66, s64, s62")
    a(f"s_mul_i32 s59, s{S_W}, {8*RS}")

def dma(a):
    a(f"s_cmp_eq_u32 s{S_MAT}, 0"); a(f"s_cselect_b64 s[6:7], s[{K_WG}:{K_WG+1}], s[{K_WU}:{K_WU+1}]")
    a(f"s_cmp_eq_u32 s{S_TY}, 1"); a(f"s_cselect_b64 s[8:9], s[6:7], s[{K_X}:{K_X+1}]")
    a(f"s_cmp_eq_u32 s{S_TY}, 2"); a(f"s_cselect_b64 s[8:9], s[{K_WD}:{K_WD+1}], s[8:9]")
    a(f"s_cmp_eq_u32 s{S_TY}, 0"); a(f"s_mov_b32 s10, {F*D*2}"); a(f"s_cselect_b32 s10, {S*D*2}, s10"); a("s_mov_b32 s11, 0x20000")
    so = [60, 64, 65, 66]
    ops = []
    for i in range(8):
        a(f"s_add_u32 m0, s59, {i*RS}")
        if i >= 4: a(f"s_add_u32 s{so[i%4]}, s{so[i%4]}, s63")
        ops.append(a(f"buffer_load_dwordx4 v4, s[8:11], s{so[i%4]} offen {NTI} lds"))
    return ops[-1]

def nonce(a):
    a("s_waitcnt lgkmcnt(0)"); a(f"s_add_u32 s{S_NONCE}, s{S_NONCE}, 16")

def body(a, dma_op, done, stubs):
    gen_f32(a)
    gen_m(a)
    a(f"s_lshr_b32 s5, s{S_W}, 1"); a("s_lshl_b32 s5, s5, 10")
    a(f"s_and_b32 s6, s{S_W}, 1"); a("s_lshl_b32 s6, s6, 3")
    a("s_add_u32 s5, s5, s6"); a(f"s_add_u32 s5, s5, {EX}")
    a(f"v_lshl_add_u32 v2, v{V_LANE}, 4, s5")
    a(f"s_lshl_b32 s5, s{S_W}, 13"); a(f"s_add_u32 s5, s5, {EX}")
    a(f"v_lshl_add_u32 v3, v{V_LANE}, 4, s5")
    a(f"s_lshl_b32 s5, s51, 16")
    a(f"s_lshl_b32 s56, s{S_W}, 14"); a("s_add_u32 s56, s56, s5"); a(f"s_lshl_b32 s6, s{S_MAT}, 6"); a("s_add_u32 s56, s56, s6")
    a(f"s_lshl_b32 s57, s{S_W}, 13"); a("s_add_u32 s57, s57, s5"); a(f"s_lshl_b32 s6, s{S_MAT}, 8"); a("s_add_u32 s57, s57, s6")
    a(f"s_mul_i32 s58, s{S_W}, {4*NG*1024}"); a(f"s_lshl_b32 s6, s{S_B}, 11"); a("s_add_u32 s58, s58, s6")
    sel3(a, [(60, "s56", "s57", "s58"), (61, 4096, 2048, NG * 1024), (62, 128, 16, 16), (63, 32, 32768, 256), (64, 16, 512, 512),
             (65, 2048, 1024, 1024), (5, WS_X, WS_W1F, WS_WDP), (14, S * D * 2, NG * 32768, 16 * NG * 1024)])
    a(f"s_add_u32 s12, s{K_WS}, s5"); a(f"s_addc_u32 s13, s{K_WS+1}, 0"); a("s_mov_b32 s15, 0x20000")
    a(f"v_and_b32 v6, 15, v{V_LANE}"); a("v_mul_u32_u24 v6, s62, v6")
    a(f"v_bfe_u32 v7, v{V_LANE}, 4, 1"); a("v_mad_u32_u24 v6, v7, s63, v6")
    a(f"v_lshrrev_b32 v7, 5, v{V_LANE}"); a("v_mad_u32_u24 v6, v7, s64, v6")
    a("v_add_u32 v7, s65, v6")
    a(f"v_and_b32 v10, 31, v{V_LANE}"); a(f"v_lshlrev_b32 v10, 6, v10"); a(f"v_add_u32 v10, {LDS_ST}, v10")
    a(f"v_lshrrev_b32 v9, 5, v0"); a("v_lshl_add_u32 v9, v9, 3, v10")
    fu_store(a)
    l3, lj = a.newlabel("p1t3"), a.newlabel("p1j")
    t = V_T
    a(f"v_mov_b32 v{t}, 0"); a(f"v_mov_b32 v{t+2}, 0")
    a(f"s_cmp_eq_u32 s{S_TY}, 1"); a(f"s_cbranch_scc1 {l3}")
    st = a.save()
    def s1(ks, j):
        c = "0" if ks == 0 else vr(V_ACC + 16 * j, 16)
        a(f"v_mfma_f32_32x32x16_bf16 {vr(V_ACC+16*j,16)}, {vr(V_F32+4*ks,4)}, {vr(V_B+8*j+4*ks,4)}, {c}")
    a(f"v_and_b32 v5, 31, v{V_LANE}"); a(f"v_mul_u32_u24 v5, {RS}, v5")
    a(f"v_lshrrev_b32 v8, 5, v{V_LANE}"); a("v_lshl_add_u32 v5, v8, 9, v5")
    a(f"s_lshl_b32 s5, s{S_W}, 3"); a("v_add_u32 v5, s5, v5")
    a("s_mov_b32 s6, 0x05040100"); a("s_mov_b32 s7, 0x07060302")
    a.stamp(); a.wait_vm(dma_op); a("s_barrier"); a.stamp()
    for j in range(16): a(f"ds_read_b64 {vr(V_RAW+2*j,2)}, v5 offset:{j*32}")
    def perm(ks, j):
        for i in range(4):
            ev, od = V_RAW + 2 * (8 * ks + 2 * i), V_RAW + 2 * (8 * ks + 2 * i + 1)
            a(f"v_perm_b32 v{V_B+8*j+4*ks+i}, v{od + j//2}, v{ev + j//2}, s{6 + j%2}")
    seq = [(ks, j) for ks in range(2) for j in range(4)]
    perm(*seq[0])
    dots = list(range(32))
    for n in range(8):
        if n < 7: perm(*seq[n + 1])
        s1(*seq[n])
        for _ in range(2 if n < 7 else 18):
            i = dots.pop(0); a(f"v_dot2c_f32_bf16 v{t + 2*(i%2)}, v{V_RAW+i}, v{V_RAW+i}")
    a(f"s_branch {lj}")
    a.restore(st); a.nst = max(0, a.nst - 2)
    a.label(l3)
    a(f"v_lshrrev_b32 v5, 5, v{V_LANE}"); a(f"v_mul_u32_u24 v5, {RS}, v5")
    a(f"v_bfe_u32 v8, v{V_LANE}, 2, 2"); a("v_lshl_add_u32 v5, v8, 6, v5")
    a(f"v_bfe_u32 v8, v{V_LANE}, 4, 1"); a("v_lshl_add_u32 v5, v8, 5, v5")
    a(f"v_and_b32 v8, 3, v{V_LANE}"); a("v_lshl_add_u32 v5, v8, 3, v5")
    a("v_add_u32 v5, s59, v5")
    a.stamp(); a.wait_vm(dma_op); a.stamp()
    for ks, j in seq:
        for rho in range(2):
            a(f"ds_read_b64_tr_b16 {vr(V_B+8*j+4*ks+2*rho,2)}, v5 offset:{2*j*RS + (8*ks+4*rho)*64}")
    for ks, j in seq: s1(ks, j)
    a.label(lj, 3)
    for g in range(16): a(f"v_cvt_pk_bf16_f32 v{V_PK+2*g}, v{V_ACC+g}, v{V_ACC+16+g}")
    a(f"v_add_f32 v{t}, v{t}, v{t+2}"); a(f"v_add_f32 v{t+1}, v{V_ACC}, v{V_ACC+16}")
    for g in range(16):
        a(f"v_cvt_pk_bf16_f32 v{V_PK+2*g+1}, v{V_ACC+32+g}, v{V_ACC+48+g}")
        a(f"ds_write_b64 v2, {vr(V_PK+2*g,2)} offset:{g*2048}")
    a(f"v_add_f32 v{t+2}, v{V_ACC+32}, v{V_ACC+48}"); a(f"v_add_f32 v{t+1}, v{t+1}, v{t+2}")
    a(f"ds_write_b64 v9, {vr(t,2)}")
    a("s_waitcnt lgkmcnt(0)"); a("s_barrier")
    a.stamp()
    for i in range(8): a(f"ds_read_b128 {vr(V_B+4*i,4)}, v3 offset:{i*1024}")
    for i in range(4): a(f"ds_read_b128 {vr(t+4*i,4)}, v10 offset:{i*16}")
    def pack(gg):
        for j in range(8): a(f"v_cvt_pk_bf16_f32 v{V_PK+8*gg+j}, v{V_ACC+16*gg+2*j}, v{V_ACC+16*gg+2*j+1}")
    def store(gg):
        a(f"buffer_store_dwordx4 {vr(V_PK+8*gg,4)}, v6, s[12:15], s60 offen {ST}")
        a(f"buffer_store_dwordx4 {vr(V_PK+8*gg+4,4)}, v7, s[12:15], s60 offen {ST}")
        if gg < 3: a("s_add_u32 s60, s60, s61")
    def stage2(y_is_a):
        for gg in range(4):
            for ks in range(2):
                c = "0" if ks == 0 else vr(V_ACC + 16 * gg, 16)
                y = vr(V_B + 8 * gg + 4 * ks, 4); m = vr(V_M + 8 * gg + 4 * ks, 4)
                A, B = (y, m) if y_is_a else (m, y)
                a(f"v_mfma_f32_32x32x16_bf16 {vr(V_ACC+16*gg,16)}, {A}, {B}, {c}")
    l3, l23, l2 = a.newlabel("p1t3"), a.newlabel("p1t23"), a.newlabel("p1t2")
    a(f"s_cmp_eq_u32 s{S_TY}, 1"); a(f"s_cbranch_scc1 {l3}")
    st0 = a.save()
    stage2(True)
    a(f"s_cmp_eq_u32 s{S_TY}, 2"); a(f"s_cbranch_scc1 {l23}")
    st1 = a.save()
    for gg in range(4):
        pack(gg)
        for j in range(4): a(f"v_permlane16_swap_b32 v{V_PK+8*gg+j}, v{V_PK+8*gg+4+j}")
        for k in range(2): a(f"v_and_b32 v{V_PK+8*gg+4*k}, -2, v{V_PK+8*gg+4*k}")
        store(gg)
    for i in range(4): a(f"v_add_f32 v{t+4*i}, v{t+4*i}, v{t+4*i+2}")
    a(f"v_pk_add_f32 {vr(t,2)}, {vr(t,2)}, {vr(t+4,2)}"); a(f"v_pk_add_f32 {vr(t+8,2)}, {vr(t+8,2)}, {vr(t+12,2)}")
    a(f"v_pk_add_f32 {vr(t,2)}, {vr(t,2)}, {vr(t+8,2)}")
    a(f"v_mul_f32 v{t+1}, v{t+1}, v{t+1}")
    a(f"v_fma_f32 v{t}, v{t+1}, -0.5, v{t}")
    a(f"v_max_f32 v{t}, 0, v{t}")
    a(f"v_cvt_pk_bf16_f32 v{t+1}, v{t}, v{t}"); a(f"v_lshlrev_b32 v{t+2}, 16, v{t+1}"); a(f"v_sub_f32 v{t+2}, v{t}, v{t+2}")
    a(f"v_cvt_pk_bf16_f32 v{t+2}, v{t+2}, v{t+2}")
    a("s_mov_b32 vcc_lo, 0"); a("s_mov_b32 vcc_hi, -1"); a(f"v_cndmask_b32 v{t+1}, v{t+1}, v{t+2}, vcc")
    a(f"v_and_b32 v8, 19, v{V_LANE}"); a(f"v_bfe_u32 v5, v{V_LANE}, 3, 1"); a("v_lshl_add_u32 v8, v5, 2, v8")
    a(f"v_mov_b32_dpp v{t+2}, v{t+1} quad_perm:[1,1,3,3] row_mask:0xf bank_mask:0xf")
    a(f"v_bfe_u32 v5, v{V_LANE}, 2, 1"); a("v_lshl_add_u32 v8, v5, 3, v8"); a("v_lshlrev_b32 v8, 1, v8")
    a(f"v_bfi_b32 v{t+1}, s{S_HI}, v{t+2}, v{t+1}")
    a("v_lshrrev_b32 v5, 5, v0"); a("v_lshl_add_u32 v8, v5, 12, v8")
    a(f"v_and_b32 v5, 1, v{V_LANE}"); a("v_lshl_add_u32 v8, v5, 20, v8")
    srd(a, 8, K_WS, 8192, WS_SS0); a(f"s_lshl_b32 s5, s{S_B}, 6")
    a(f"buffer_store_dword v{t+1}, v8, s[8:11], s5 offen {ST}")
    a(f"s_branch {done}")
    a.restore(st0); a.label(l3)
    stage2(False)
    a.label(l23)
    for gg in range(4): pack(gg); store(gg)
    a(f"s_branch {done}")

def relayout(a, R, t):
    tr_addr(a, t, RS, t + 1)
    a(f"s_lshl_b32 s5, s{S_W}, 8"); a(f"v_add_u32 v{t}, s5, v{t}"); a(f"v_lshlrev_b32 v{t+3}, 4, v{V_LANE}")
    for q in range(4):
        for aa in range(2):
            for rho in range(2):
                a(f"ds_read_b64_tr_b16 {vr(R+8*q+4*aa+2*rho,2)}, v{t} offset:{(16*aa+8*rho)*RS + 64*q}")
    srd(a, 56, K_WS, 16 * 118 * 1024, WS_WDF)
    a(f"s_mul_i32 s5, s{S_W}, {4*118*1024}"); a(f"s_lshl_b32 s6, s{S_B}, 11"); a("s_add_u32 s5, s5, s6")
    for q in range(4):
        for aa in range(2):
            a(f"buffer_store_dwordx4 {vr(R+8*q+4*aa,4)}, v{t+3}, s[56:59], s5 offen offset:{aa*1024} {ST}")
        if q < 3: a(f"s_add_u32 s5, s5, {118*1024}")

def fu_pre(a):
    a("s_lshr_b32 s5, s2, 6"); a("s_lshl_b32 s73, s52, 2"); a("s_add_u32 s73, s73, s5"); a("s_lshl_b32 s73, s73, 1")
    a("s_bfe_u32 s5, s73, 0x20002"); a("s_lshl_b32 s5, s5, 3")
    a("s_bfe_u32 s6, s73, 0x10004"); a("s_lshl_b32 s6, s6, 2"); a("s_add_u32 s5, s5, s6")
    a("s_and_b32 s6, s73, 35"); a("s_add_u32 s5, s5, s6"); a("s_mul_i32 s67, s5, 514")
    a("s_bfe_u32 s5, s2, 0x30003"); a("s_lshl_b32 s5, s5, 2"); a(f"s_add_u32 s5, s5, s{S_W}"); a("s_lshl_b32 s5, s5, 3"); a("s_add_u32 s5, s5, 1")
    t = V_FU + 16
    a(f"v_lshrrev_b32 v{t+1}, 4, v{V_LANE}"); a(f"v_lshl_add_u32 v{t+1}, v{t+1}, 1, s5")
    a(f"v_and_b32 v{t}, 1, v{V_LANE}"); a(f"v_lshlrev_b32 v{t}, 10, v{t}"); a(f"v_bfe_u32 v{t+2}, v{V_LANE}, 1, 2"); a(f"v_lshl_add_u32 v{t}, v{t+2}, 8, v{t}")
    a(f"v_bfe_u32 v{t+2}, v{V_LANE}, 3, 1"); a(f"v_add_u32 v{t}, v{t}, v{t+2}"); a(f"v_mul_u32_u24 v{t}, 514, v{t}")
    a(f"v_lshl_add_u32 v{t}, v{t+1}, 1, v{t}")
def fu_load(a):
    srd(a, 68, K_WR, S * 257 * 2); srd(a, 76, K_WI, S * 257 * 2)
    for r in range(4):
        for mat in range(2):
            a(f"buffer_load_dword v{V_FU+2*r+mat}, v{V_FU+16}, s[{68+8*mat}:{71+8*mat}], s67 offen")
        if r < 3: a(f"s_add_u32 s67, s67, {64*514}")
def fu_store(a):
    t = V_FU + 16
    a(f"v_and_b32 v{t+2}, 15, v{V_LANE}"); a(f"v_lshlrev_b32 v{t+2}, 4, v{t+2}")
    x, y, z = V_FU + 8, V_FU + 9, V_FU + 10
    for e in range(2):
        a(f"v_add_u32 v{x}, {e}, v{t+1}")
        a(f"v_and_b32 v{y}, 31, v{x}"); a(f"v_sub_u32 v{z}, 32, v{y}"); a(f"v_min_u32 v{y}, v{y}, v{z}"); a(f"v_and_b32 v{y}, 15, v{y}")
        a(f"v_bfe_u32 v{z}, v{x}, 5, 3"); a(f"v_lshl_add_u32 v{y}, v{y}, 4, v{z}"); a(f"v_bfe_u32 v{z}, v{x}, 4, 1"); a(f"v_lshl_add_u32 v{y}, v{z}, 3, v{y}")
        a(f"v_lshl_add_u32 v{t+3*e}, v{y}, 13, v{t+2}")
    a("s_mov_b32 s6, 0x05040100"); a("s_mov_b32 s7, 0x07060302")
    srd(a, 68, K_WS, 2 * MB, WS_WT); a("s_lshl_b32 s73, s73, 7")
    for e in range(2):
        for r in range(4): a(f"v_perm_b32 v{V_FU+8+4*e+r}, v{V_FU+2*r+1}, v{V_FU+2*r}, s{6+e}")
        a(f"buffer_store_dwordx4 {vr(V_FU+8+4*e,4)}, v{t+3*e}, s[68:71], s73 offen {ST}")

def t5(a):
    a(f"s_mov_b32 s51, s{S_B}"); a(f"s_lshl_b32 s6, s{S_W}, 2")
    srd(a, 8, K_WS, 16 * 118 * 1024, WS_WDF)
    a(f"v_and_b32 v2, 19, v{V_LANE}"); a(f"v_bfe_u32 v3, v{V_LANE}, 3, 1"); a("v_lshl_add_u32 v2, v3, 2, v2")
    a(f"v_bfe_u32 v3, v{V_LANE}, 2, 1"); a("v_lshl_add_u32 v2, v3, 3, v2")
    a("s_lshl_b32 s5, s51, 5"); a("v_add_u32 v2, s5, v2")
    a(f"v_lshrrev_b32 v3, 5, v{V_LANE}"); a("v_lshlrev_b32 v3, 6, v3")
    a(f"v_lshlrev_b32 v4, 4, v{V_LANE}")
    a(f"s_mul_i32 s5, s51, {118*1024}"); a("s_lshl_b32 s7, s6, 11"); a("s_add_u32 s5, s5, s7"); a(f"s_add_u32 s5, s5, {86*1024}")
    a("s_add_u32 s14, s6, 4")
    lp = a.newlabel("t5")
    a.label(lp, 2)
    a("s_cmp_eq_u32 s6, 0"); a("s_cselect_b32 s7, 16, s6"); a("s_sub_u32 s7, 32, s7")
    for aa in range(2):
        for j in range(4):
            t = 32 + 8 * aa + 2 * j
            a(f"s_add_u32 s12, s{6 + aa}, {32 * (4 * (j // 2) + j % 2)}")
            a(f"v_add_u32 v{t}, s12, v3")
            a(f"v_mul_u32_u24 v{t}, v{t}, v2")
            a(f"v_and_b32 v{t}, 511, v{t}")
            a(f"v_cvt_f32_u32 v{t}, v{t}")
            a(f"v_mul_f32 v{t}, {fhex(1/512)}, v{t}")
            a(f"v_sin_f32 v{t+1}, v{t}")
            a(f"v_cos_f32 v{t}, v{t}")
            a(f"v_mul_f32 v{t+1}, {fhex(-1/16)}, v{t+1}")
            a(f"v_mul_f32 v{t}, {fhex(1/16)}, v{t}")
    a("s_cmp_eq_u32 s6, 0"); a("s_cselect_b32 vcc_lo, -1, 0"); a("s_mov_b32 vcc_hi, 0")
    a(f"v_mov_b32 v5, {fhex(1/16/2**0.5)}")
    a("v_lshlrev_b32 v6, 31, v2"); a("v_xor_b32 v6, v6, v5")
    a("v_cndmask_b32 v32, v32, v6, vcc"); a("v_cndmask_b32 v33, v33, v5, vcc")
    for j in range(8): a(f"v_cvt_pk_bf16_f32 v{16+j}, v{32+2*j}, v{33+2*j}")
    a(f"buffer_store_dwordx4 v[16:19], v4, s[8:11], s5 offen {ST}")
    a(f"buffer_store_dwordx4 v[20:23], v4, s[8:11], s5 offen offset:1024 {ST}")
    a("s_add_u32 s5, s5, 2048"); a("s_add_u32 s6, s6, 1")
    a("s_cmp_lt_u32 s6, s14")
    a(f"s_cbranch_scc1 {lp}")
```

```python
from asmdsl import *
from maps import *
from regs import *
import sync
LDS_F = 81920
LDS_Z = LDS_F + 24576
LDS_C = LDS_Z + 8192
L = 1
V_XO = 8; V_SO = 9; V_L16 = 10; V_AD = 11; V_CR = 12; V_WO = 13; V_CK = 14
V_IN = 16; V_WF = 24
V_CS = 32; V_SN = 40; V_NS = 48
V_C32 = 56; V_S32 = 64; V_N32 = 72
V_T1C = 80; V_T1S = 88; V_T2C = 96; V_T2S = 104
V_P = 112
V_RF = 160
V_Z = 176
V_A = 208
V_T = 224
V_SEL = 240
V_PL = 248
V_SP = V_P

def mf(a, d, A, B, first):
    a(f"v_mfma_f32_16x16x32_bf16 {vr(d,4)}, {vr(A,4)}, {vr(B,4)}, {'0' if first else vr(d,4)}")

def task(a):
    a(f"s_and_b32 s5, s2, 7"); a("s_lshl_b32 s5, s5, 5"); a(f"s_lshr_b32 s{S_P}, s2, 3"); a(f"s_add_u32 s{S_P}, s{S_P}, s5")
    a(f"s_lshr_b32 s5, s{S_W}, 1"); a("s_lshl_b32 s5, s5, 5"); a(f"s_and_b32 s6, s{S_W}, 1"); a("s_lshl_b32 s6, s6, 2"); a(f"s_add_u32 s{S_KB}, s5, s6")

def addrs(a, layer):
    a(f"v_and_b32 v2, 15, v{L}"); a(f"v_lshrrev_b32 v3, 4, v{L}")
    a(f"v_lshlrev_b32 v{V_WO}, 7, v2"); a(f"v_lshl_add_u32 v{V_SO}, v3, 4, v{V_WO}"); a(f"v_lshl_add_u32 v{V_WO}, v3, 5, v{V_WO}")
    a(f"v_lshlrev_b32 v{V_XO}, 16, v2"); a(f"v_lshl_add_u32 v{V_XO}, v3, 4, v{V_XO}")
    a(f"v_lshlrev_b32 v{V_L16}, 4, v{L}"); a(f"v_add_u32 v{V_L16}, {LDS_F}, v{V_L16}")
    a(f"s_and_b32 s6, s{S_W}, 1"); a(f"s_lshr_b32 s7, s{S_W}, 1"); a("s_lshl_b32 s7, s7, 6")
    a("s_lshl_b32 s66, s6, 11"); a("s_add_u32 s66, s66, s7")
    a(f"s_lshl_b32 s65, s{S_P}, 8"); a("s_lshl_b32 s6, s6, 20"); a("s_add_u32 s65, s65, s6"); a("s_add_u32 s65, s65, s7")
    a(f"s_lshl_b32 s67, s{S_P}, 13"); a(f"s_lshl_b32 s6, s{S_W}, 11"); a("s_add_u32 s67, s67, s6")
    srd(a, 8, K_WS, S * D * 2, WS_X)
    srd(a, 12, K_WS, 32768, (WS_SS0, WS_SS2)[layer])
    srd(a, 68, K_WS, 2 * MB, WS_WT)

def loads(a, layer):
    a(f"buffer_load_dwordx4 {vr(V_IN,4)}, v{V_XO}, s[8:11], s65 offen {LD}")
    a(f"buffer_load_dwordx4 {vr(V_IN+4,4)}, v{V_XO}, s[8:11], s65 offen offset:128 {LD}")
    for i in range((2, 8)[layer]):
        if i: a(f"s_add_u32 s7, s66, {4096*i}")
        a(f"buffer_load_dwordx4 {vr(V_Z+4*i,4)}, v{V_SO}, s[12:15], {'s7' if i else 's66'} offen {LD}")
def load_filter(a):
    a(f"buffer_load_dwordx4 {vr(V_WF,4)}, v{V_WO}, s[68:71], s67 offen {LD}")
    a(f"buffer_load_dwordx4 {vr(V_WF+4,4)}, v{V_WO}, s[68:71], s67 offen offset:16 {LD}")

def tables1(a):
    X = V_Z; u = V_T
    a(f"v_lshrrev_b32 v4, 2, v2"); a(f"v_and_b32 v5, 3, v2"); a(f"v_lshl_add_u32 v4, v4, 3, v5"); a(f"v_add_u32 v4, s{S_KB}, v4")
    a("v_cvt_f32_u32 v4, v4"); a("v_cvt_f32_u32 v5, v3"); a("v_cvt_f32_u32 v6, v2")
    a(f"v_mul_f32 v{u}, {fhex(1/64)}, v4")
    a(f"v_mul_f32 v{X}, v5, v{u}"); a(f"v_mul_f32 v{X}, {fhex(8)}, v{X}")
    a(f"v_fmamk_f32 v{X+8}, v{u}, {fhex(32)}, v{X}")
    for j in range(1, 8):
        a(f"v_add_f32 v{X+j}, v{X+j-1}, v{u}"); a(f"v_add_f32 v{X+8+j}, v{X+7+j}, v{u}")
    for j in range(16): a(f"v_sin_f32 v{X+16+j}, v{X+j}")
    for j in range(16): a(f"v_cos_f32 v{X+j}, v{X+j}")
    for j in range(8): a(f"v_cvt_pk_bf16_f32 v{V_SN+j}, v{X+16+2*j}, v{X+17+2*j}")
    for j in range(8): a(f"v_cvt_pk_bf16_f32 v{V_CS+j}, v{X+2*j}, v{X+1+2*j}")
    a("s_mov_b32 s72, 0x80008000")
    for j in range(8): a(f"v_xor_b32 v{V_NS+j}, s72, v{V_SN+j}")
    a(f"s_lshl_b32 s5, s{S_W}, 11"); a(f"v_add_u32 v7, s5, v{V_L16}")
    for kind, base in enumerate((V_CS, V_SN, V_NS)):
        for aa in range(2):
            a(f"ds_write_b128 v7, {vr(base+4*aa,4)} offset:{kind*8192 + aa*1024}")
    a("s_waitcnt lgkmcnt(0)")

def seq8(a, dst, om):
    a(f"v_fmamk_f32 v{dst+4}, v{om}, {fhex(16)}, v{dst}")
    for j in (1, 2, 3):
        a(f"v_add_f32 v{dst+j}, v{dst+j-1}, v{om}"); a(f"v_add_f32 v{dst+4+j}, v{dst+3+j}, v{om}")

def tables2(a, hook):
    X = V_A; u = V_RF
    a(f"s_lshr_b32 s5, s{S_W}, 1"); a("s_lshl_b32 s5, s5, 12"); a(f"v_add_u32 v7, s5, v{V_L16}")
    for kind in range(3):
        for i in range(4): a(f"ds_read_b128 {vr(V_P+16*kind+4*i,4)}, v7 offset:{kind*8192 + i*1024}")
    a(f"v_mul_f32 v5, 4.0, v5")
    for t2 in range(2):
        if t2 == 0: a(f"v_mul_f32 v{u}, {fhex(1/32)}, v6")
        else: a(f"v_add_f32 v{u}, 0.5, v{u}")
        a(f"v_mul_f32 v{X+8*t2}, v5, v{u}")
        seq8(a, X + 8 * t2, u)
    for j in range(16): a(f"v_sin_f32 v{X+16+j}, v{X+j}")
    for j in range(16): a(f"v_cos_f32 v{X+j}, v{X+j}")
    for j in range(8): a(f"v_cvt_pk_bf16_f32 v{V_S32+j}, v{X+16+2*j}, v{X+17+2*j}")
    for j in range(8): a(f"v_cvt_pk_bf16_f32 v{V_C32+j}, v{X+2*j}, v{X+1+2*j}")
    for j in range(8): a(f"v_xor_b32 v{V_N32+j}, s72, v{V_S32+j}")
    a(f"s_mov_b32 s5, {fhex(1/2048)}")
    a(f"v_mul_f32 v{u}, s5, v4"); a(f"v_mul_f32 v{V_T1C}, v5, v{u}")
    seq8(a, V_T1C, u)
    for e in range(8): a(f"v_sin_f32 v{V_T1S+e}, v{V_T1C+e}")
    for e in range(8): a(f"v_cos_f32 v{V_T1C+e}, v{V_T1C+e}")
    a(f"v_lshl_add_u32 v{u+2}, v3, 3, s{S_KB}"); a(f"v_cvt_f32_u32 v{u+2}, v{u+2}")
    a(f"v_mul_f32 v{u}, s5, v6"); a(f"v_add_f32 v{u+1}, {fhex(16/2048)}, v{u}")
    for tt in range(2): a(f"v_mul_f32 v{V_T2C+4*tt}, v{u+2}, v{u+tt}")
    for r in range(1, 4):
        for tt in range(2): a(f"v_add_f32 v{V_T2C+4*tt+r}, v{V_T2C+4*tt+r-1}, v{u+tt}")
    for e in range(8): a(f"v_sin_f32 v{V_T2S+e}, v{V_T2C+e}")
    for e in range(8): a(f"v_cos_f32 v{V_T2C+e}, v{V_T2C+e}")
    a(f"v_and_b32 v{u}, 1, v2"); a(f"v_lshlrev_b32 v{u}, 4, v{u}"); a(f"v_mov_b32 v{u+1}, 0x3f80"); a(f"v_lshlrev_b32 v{u}, v{u}, v{u+1}")
    a(f"v_lshrrev_b32 v{u+1}, 1, v2"); a(f"v_lshlrev_b32 v{u+2}, 1, v3")
    a(f"v_cmp_eq_u32 vcc, v{u+1}, v{u+2}"); a(f"v_add_u32 v{u+2}, 1, v{u+2}")
    for i in range(2, 6): a(f"v_mov_b32 v{V_SEL+i}, 0")
    a(f"v_cndmask_b32 v{V_SEL}, 0, v{u}, vcc"); a(f"v_cndmask_b32 v{V_SEL+6}, 0, v{u}, vcc")
    a(f"v_cmp_eq_u32 vcc, v{u+1}, v{u+2}")
    a(f"s_and_b32 s6, s{S_W}, 1"); a(f"s_lshr_b32 s7, s{S_W}, 1")
    a(f"v_cndmask_b32 v{V_SEL+1}, 0, v{u}, vcc"); a(f"v_cndmask_b32 v{V_SEL+7}, 0, v{u}, vcc")
    a("s_lshl_b32 s5, s6, 2"); a("s_add_u32 s5, s5, s7"); a("s_lshl_b32 s5, s5, 10"); a(f"v_add_u32 v7, s5, v{V_L16}")
    a("s_lshl_b32 s5, s7, 7"); a("s_add_u32 s5, s5, s6"); a("s_lshl_b32 s5, s5, 3"); a(f"v_add_u32 v{V_AD}, s5, v{V_L16}")
    a("s_lshl_b32 s5, s6, 12"); a(f"v_add_u32 v{V_CR}, s5, v{V_L16}")
    a(f"v_mov_b32 v2, {fhex(1e-5 * 2**22)}"); a(f"v_mov_b32 v3, v2"); a(f"v_mov_b32 v4, {fhex(2**22/512)}"); a("v_mov_b32 v5, v4")
    a(f"s_cmp_eq_u32 s{S_P}, 0"); a("s_cselect_b32 s73, 0, -1")

def cmul(a, c, s, sign, out):
    t = V_T; re = V_A; im = V_A + 8
    p = lambda b, j: vr(b + 2 * j, 2)
    neg = "neg_lo:[1,0,0] neg_hi:[1,0,0]"
    n1, n2 = (neg, "") if sign > 0 else ("", neg)
    for j in range(4):
        a(f"v_pk_mul_f32 {p(t,j)}, {p(re,j)}, {p(c,j)}"); a(f"v_pk_mul_f32 {p(t+8,j)}, {p(im,j)}, {p(c,j)}")
    for j in range(4): a(f"v_pk_fma_f32 {p(t,j)}, {p(im,j)}, {p(s,j)}, {p(t,j)} {n1}")
    for j in range(4): a(f"v_cvt_pk_bf16_f32 v{out+j}, v{t+2*j}, v{t+2*j+1}")
    for j in range(4): a(f"v_pk_fma_f32 {p(t+8,j)}, {p(re,j)}, {p(s,j)}, {p(t+8,j)} {n2}")
    for j in range(4): a(f"v_cvt_pk_bf16_f32 v{out+4+j}, v{t+8+2*j}, v{t+9+2*j}")

def compute(a, layer, hook, stubs, before_c=None):
    t = V_T; ZO = LDS_Z - LDS_F; CO = LDS_C - LDS_F
    NP = (2, 8)[layer]
    def bad(a):
        sync.fold(a, V_CK, [V_Z + 4 * i for i in range(8)], "max")
        a(f"v_bitop3_b32 v{V_T}, v{V_IN}, v{V_IN+4}, 1 bitop3:0x7e")
        a(f"v_cmp_eq_u32 s[6:7], -1, v{V_CK}")
        a(f"v_and_b32 v{V_T}, s{S_TM}, v{V_T}"); a(f"v_cmp_ne_u32 vcc, 0, v{V_T}")
        a("s_or_b64 vcc, vcc, s[6:7]")
    if layer: sync.check(a, bad, lambda a: loads(a, layer), stubs)
    else: a.wait_regs(f"v{V_Z+4}")
    a.stamp()
    unp = []
    for pl in range(2):
        for j in range(4):
            unp.append(f"v_lshlrev_b32 v{V_RF+8*pl+2*j}, 16, v{V_IN+4*pl+j}")
            unp.append(f"v_and_b32 v{V_RF+8*pl+2*j+1}, s{S_HI}, v{V_IN+4*pl+j}")
    for i in range(NP):
        for j in range(2):
            mf(a, V_A + 4 * j, V_SEL + 4 * j, V_Z + 4 * i, i == 0)
            if NP == 8 and len(unp) > 8 and j: a(unp.pop(0))
    for o in unp: a(o)
    for j in range(4): a(f"v_pk_fma_f32 {vr(V_A+2*j,2)}, {vr(V_A+2*j,2)}, v[4:5], v[2:3]")
    for i in range(8): a(f"v_rsq_f32 v{V_A+i}, v{V_A+i}")
    for pl in range(2):
        for j in range(4): a(f"v_pk_mul_f32 {vr(t+8*pl+2*j,2)}, {vr(V_A+2*j,2)}, {vr(V_RF+8*pl+2*j,2)}")
        for j in range(4): a(f"v_cvt_pk_bf16_f32 v{V_IN+4*pl+j}, v{t+8*pl+2*j}, v{t+8*pl+2*j+1}")
        if pl:
            for j in range(4): a(f"v_and_b32 v{V_IN+4+j}, s73, v{V_IN+4+j}")
        a(f"ds_write_b128 v7, {vr(V_IN+4*pl,4)} offset:{ZO + 2048*pl}")
    hook(0)
    a("s_waitcnt lgkmcnt(0)"); a("s_barrier")
    for i in range(8): a(f"ds_read_b128 {vr(V_Z+4*i,4)}, v{V_L16} offset:{ZO + i*1024}")
    hook(1)
    Z = lambda tt, pl, aa: V_Z + 16 * tt + 8 * pl + 4 * aa
    for tt in range(2):
        for pl in range(2):
            for aa in range(2):
                first = (pl == 0 and aa == 0)
                mf(a, V_A + 4 * tt, Z(tt, pl, aa), (V_CS if pl == 0 else V_SN) + 4 * aa, first)
                mf(a, V_A + 8 + 4 * tt, Z(tt, pl, aa), (V_NS if pl == 0 else V_CS) + 4 * aa, first)
    hook(2)
    cmul(a, V_T1C, V_T1S, -1, V_IN)
    for t2 in range(2):
        mf(a, V_A + 4 * t2, V_C32 + 4 * t2, V_IN, True)
        mf(a, V_A + 8 + 4 * t2, V_N32 + 4 * t2, V_IN, True)
    WS_ = V_Z
    un = []
    for e in range(8):
        un.append(f"v_lshlrev_b32 v{WS_+e}, 16, v{V_WF+e}"); un.append(f"v_and_b32 v{WS_+8+e}, s{S_HI}, v{V_WF+e}")
    for t2 in range(2):
        mf(a, V_A + 4 * t2, V_S32 + 4 * t2, V_IN + 4, False); a(un.pop(0)); a(un.pop(0))
        mf(a, V_A + 8 + 4 * t2, V_C32 + 4 * t2, V_IN + 4, False); a(un.pop(0)); a(un.pop(0))
    for o in un: a(o)
    cmul(a, WS_, WS_ + 8, +1, V_IN)
    for tt in range(2):
        mf(a, V_A + 4 * tt, V_IN, V_C32 + 4 * tt, True)
        mf(a, V_A + 8 + 4 * tt, V_IN, V_S32 + 4 * tt, True)
    for tt in range(2):
        mf(a, V_A + 4 * tt, V_IN + 4, V_N32 + 4 * tt, False)
        mf(a, V_A + 8 + 4 * tt, V_IN + 4, V_C32 + 4 * tt, False)
    hook(3)
    cmul(a, V_T2C, V_T2S, +1, V_IN)
    for pl in range(2):
        for tt in range(2):
            a(f"ds_write_b64 v{V_AD}, {vr(V_IN+4*pl+2*tt,2)} offset:{CO + tt*4096 + pl*2048}")
    if before_c: before_c()
    a("s_waitcnt lgkmcnt(0)"); a("s_barrier")
    B = V_Z
    for i in range(4): a(f"ds_read_b128 {vr(B+4*i,4)}, v{V_CR} offset:{CO + i*1024}")
    P = lambda kind, mm, ks: V_P + 16 * kind + 8 * mm + 4 * ks
    def last(pl):
        for ip in range(2):
            for ks in range(2):
                for mm in range(2):
                    kind = 0 if ip == pl else (2 if pl == 0 else 1)
                    d = V_RF + 8 * pl + 4 * mm
                    a(f"v_mfma_f32_16x16x32_bf16 {vr(d,4)}, {vr(P(kind,mm,ks),4)}, {vr(B+8*ip+4*ks,4)}, {vr(d,4)}")
    last(0)
    skip = a.newlabel("colskip")
    a(f"s_cmp_eq_u32 s{S_P}, 0"); a(f"s_cbranch_scc1 {skip}")
    last(1)
    a.label(skip, 1)
    op = None
    for pl in range(2):
        if pl == 0: a("s_nop 4")
        for j in range(4): a(f"v_cvt_pk_bf16_f32 v{V_IN+4*pl+j}, v{V_RF+8*pl+2*j}, v{V_RF+8*pl+2*j+1}")
        a(f"v_and_b32 v{V_IN+4*pl}, s{S_NTM}, v{V_IN+4*pl}" if layer else f"v_or_b32 v{V_IN+4*pl}, s{S_TM}, v{V_IN+4*pl}")
        op = a(f"buffer_store_dwordx4 {vr(V_IN+4*pl,4)}, v{V_XO}, s[8:11], s65 offen offset:{128*pl} {ST}")
    return op
```

```python
from asmdsl import *
from maps import *
from regs import *
import sync
NSLOT = 10
L = 1
V_DMA = 4; V_L16 = 5; V_CA = 6; V_FO = 7
V_RD = 8
V_FR = 16; NF = 6
V_ACC = 40
V_H = 104
V_FL = 112; V_FV = 113; V_PA = 114; V_P1 = 115; V_P2 = 116
V_CK = 120
A_W = 0
SRD_W1 = 76

def task(a):
    a("s_bfe_u32 s5, s2, 0x20001"); a("s_lshl_b32 s5, s5, 5"); a("s_lshr_b32 s6, s2, 3"); a("s_add_u32 s5, s5, s6")
    a("s_mul_i32 s6, s5, 2850"); a("s_lshr_b32 s6, s6, 16")
    a("s_mul_i32 s7, s6, 23"); a("s_sub_u32 s5, s5, s7")
    a("s_and_b32 s7, s2, 1")
    a("s_lshl_b32 s6, s6, 1")
    a("s_cmp_ge_u32 s5, 12"); a(f"s_cselect_b32 s{S_RT}, 1, 0"); a(f"s_cselect_b32 s{S_FT}, 12, 1"); a(f"s_sub_u32 s{S_FT}, s5, s{S_FT}")
    a(f"s_mul_i32 s{S_GAM}, s7, 11"); a(f"s_add_u32 s{S_FT}, s{S_FT}, s{S_GAM}")
    a("s_cmp_eq_u32 s5, 0"); a(f"s_cselect_b32 s{S_RT}, s7, s{S_RT}"); a(f"s_cselect_b32 s{S_FT}, 22, s{S_FT}")
    a(f"s_add_u32 s{S_RT}, s{S_RT}, s6")
    a(f"s_cmp_ge_u32 s{S_RT}, 11"); a(f"s_cselect_b32 s{S_FT}, 22, s{S_FT}")
    a(f"s_lshl_b32 s{S_GAM}, s{S_FT}, 2"); a(f"s_add_u32 s{S_GAM}, s{S_GAM}, s{S_W}")
assert all((x * 2850) >> 16 == x // 23 for x in range(256))

def w_setup(a):
    srd(a, SRD_W1, K_WS, NG * 32768, WS_W1F)
    a(f"s_lshl_b32 s80, s{S_GAM}, 15")
def w_load(a, ks, vl16, force=False):
    if ks % 4 == 0 or force: a(f"s_add_u32 s81, s80, {(ks // 4) * 4096}")
    return a(f"buffer_load_dwordx4 {ar(A_W+4*ks,4)}, v{vl16}, s[{SRD_W1}:{SRD_W1+3}], s81 offen offset:{(ks%4)*1024} {LD}")
def addrs(a, layer):
    a(f"v_lshlrev_b32 v{V_L16}, 4, v{L}")
    a(f"v_bfe_u32 v2, v{L}, 4, 1"); a("v_lshlrev_b32 v2, 6, v2"); a(f"v_xor_b32 v{V_DMA}, v{V_L16}, v2")
    r = V_RD
    a(f"v_lshrrev_b32 v2, 5, v{L}"); a(f"v_bfe_u32 v3, v{L}, 2, 2"); a("v_lshl_add_u32 v2, v2, 2, v3"); a(f"v_lshlrev_b32 v{r}, 7, v2")
    a(f"v_bfe_u32 v2, v{L}, 3, 1"); a(f"v_lshl_add_u32 v{r}, v2, 6, v{r}")
    a(f"v_and_b32 v2, 1, v{L}"); a(f"v_lshl_add_u32 v{r}, v2, 4, v{r}")
    a(f"v_bfe_u32 v2, v{L}, 1, 1"); a(f"v_lshl_add_u32 v{r}, v2, 3, v{r}")
    a(f"v_bfe_u32 v2, v{L}, 4, 1"); a(f"v_lshl_add_u32 v{r}, v2, 5, v{r}")
    a(f"v_xor_b32 v{r+3}, 64, v{r}")
    for T in range(2):
        for seg in (1, 2): a(f"v_add_u32 v{r+3*T+seg}, {seg*65536}, v{r+3*T}")
    a(f"s_lshl_b32 s49, s{S_W}, 12")
    a(f"v_add_u32 v3, s49, v{V_L16}")
    a(f"s_mul_i32 s48, s{S_RT}, {3*65536}"); a("s_add_u32 s48, s48, s49")
    srd(a, 12, K_WS, HSZ, WS_H)
    a(f"s_cmp_ge_u32 s{S_GAM}, {NG}"); a("s_cselect_b32 s14, 0, s14")
    a(f"s_mul_i32 s47, s{S_RT}, {2*TSZ}"); a(f"s_lshl_b32 s5, s{S_GAM}, 10"); a("s_add_u32 s50, s47, s5"); a("s_add_u32 s47, s47, s50")
    a(f"s_cmp_eq_u32 s{S_RT}, 10"); a(f"s_cselect_b32 s50, {OOB}, s50"); a(f"s_cselect_b32 s73, 0, s{S_TM}")
    a(f"s_mul_i32 s5, s{S_RT}, 88"); a(f"s_add_u32 s5, s5, s{S_GAM}"); a("s_lshl_b32 s5, s5, 6"); a(f"s_add_u32 s5, s5, {sync.FL_H}")
    a(f"v_mov_b32 v{V_FL}, {OOB}"); a(f"v_writelane_b32 v{V_FL}, s5, 0")
    a(f"s_mul_i32 s5, s{S_RT2}, 88"); a(f"s_add_u32 s5, s5, s{S_W}"); a("s_lshl_b32 s5, s5, 6"); a(f"s_add_u32 s5, s5, {sync.FL_H}")
    a(f"v_min_u32 v{V_PA}, 21, v{L}"); a(f"v_lshl_add_u32 v{V_PA}, v{V_PA}, 8, s5")

def x_dma(a, u, i, so=52):
    if i == 0: a(f"s_add_u32 s{so}, s48, {u * 16384}")
    a(f"s_add_u32 m0, s49, {(u % NSLOT) * 16384}")
    return a(f"buffer_load_dwordx4 v{V_DMA}, s[8:11], s{so} offen offset:{i*1024} {LD} lds")

def epi_ops(P, layer):
    ops = []
    for T in range(2):
        acc = V_ACC + 32 * (P % 2) + 16 * T
        for e in range(8): ops.append(f"v_max_f32 v{acc+e}, 0, v{acc+e}")
        for j in range(4): ops.append(f"v_pk_mul_f32 {vr(acc+2*j,2)}, {vr(acc+2*j,2)}, {vr(acc+8+2*j,2)}")
        for j in range(4): ops.append(f"v_cvt_pk_bf16_f32 v{V_H+4*T+j}, v{acc+2*j}, v{acc+2*j+1}")
        ops.append(f"v_or_b32 v{V_H+4*T}, 1, v{V_H+4*T}" if layer else f"v_and_b32 v{V_H+4*T}, -2, v{V_H+4*T}")
        ops.append(f"s_add_u32 s51, s50, {T*TSZ}" if P == 2 else f"s_add_u32 s51, s47, {(20+2*P+T)*TSZ}")
        ops.append(f"buffer_store_dwordx4 {vr(V_H+4*T,4)}, v{V_L16}, s[12:15], s51 offen {ST}")
    return ops

def post_h(a, k, op):
    a(f"s_add_u32 s5, s{S_NONCE}, {k}"); a(f"v_mov_b32 v{V_FV}, s5")
    a.wait_vm(op)
    a(f"buffer_store_dword v{V_FV}, v{V_FL}, s[{SRD_FL}:{SRD_FL+3}], 0 offen sc1")

def mainloop(a, layer, extra, stubs, first=None, LA=3):
    NM = 192
    dma = {}
    for u in range(2):
        for i in range(4): dma[u] = x_dma(a, u, i)
    if first: first()
    def rd(n):
        u, r = n // 16, n % 16
        ks, T = r // 2, r % 2
        base = (u % NSLOT) * 16384 + ks * 2048
        seg, off = base // 65536, base % 65536
        f = V_FR + 4 * (n % NF)
        for rho in range(2):
            a(f"ds_read_b64_tr_b16 {vr(f+2*rho,2)}, v{V_RD+3*T+seg} offset:{off + rho*1024}")
    def ck_read(a):
        for i in range(4): a(f"ds_read_b128 {vr(V_CK+4*i,4)}, v{V_CA} offset:{1024*i}")
    def ck1(u):
        a(f"v_add_u32 v{V_CA}, {(u % NSLOT) * 16384}, v3")
        a.wait_vm(dma[u]); ck_read(a)
    def ck2(u):
        state = {"n": 0}
        def gather(a):
            if state["n"]: ck_read(a)
            state["n"] += 1
            sync.bad_tag(a, V_CK, range(V_CK, V_CK + 16, 4), layer == 0, "s73" if u >= 8 else f"s{S_TM}")
        def reload(a):
            for i in range(4): x_dma(a, u, i, 7)
        sync.check(a, gather, reload, stubs, masked=False)
        a("s_barrier")
    PD = NF - 1
    fill = []; last = None; extra = list(extra)
    pend = [(u, i) for u in range(2, 12) for i in range(4)]
    a.stamp(); ck1(0); ck2(0); a.stamp()
    for n in range(PD): rd(n)
    for n in range(NM):
        u, r = n // 16, n % 16
        P = u // 4; ksg = (u % 4) * 8 + r // 2; T = r % 2
        acc = V_ACC + 32 * (P % 2) + 16 * T
        c = "0" if ksg == 0 else vr(acc, 16)
        a(f"v_mfma_f32_32x32x16_bf16 {vr(acc,16)}, {ar(A_W+4*ksg,4)}, {vr(V_FR+4*(n%NF),4)}, {c}")
        m = n + PD
        if n in (63, 127, 191): a.stamp()
        busy = False
        if m < NM:
            if (m + 4) % 16 == 0 and m + 4 < NM: ck1((m + 4) // 16); busy = True
            if m % 16 == 0: ck2(m // 16); busy = True
            rd(m)
        if n % 64 == 3 and P > 0: fill = epi_ops(P - 1, layer)
        if n in (105, 161): post_h(a, 2 * layer + P, last); busy = True
        if n == 149: sync.poll_issue(a, V_P1, V_PA); busy = True
        if n == 183: sync.poll_issue(a, V_P2, V_PA); busy = True
        if busy: continue
        if fill and n < 160 and P == 2:
            for _ in range(3):
                if fill:
                    o = a(fill.pop(0))
                    if o is not None: last = o
            continue
        if pend and pend[0][0] <= u + LA and (n % 2 == 0 or u == 0):
            pu, pi = pend.pop(0); dma[pu] = x_dma(a, pu, pi)
        elif extra and extra[0][0] <= n and (n % 2 == 0 or not fill): extra.pop(0)[1]()
        else:
            for _ in range(3):
                if fill:
                    o = a(fill.pop(0))
                    if o is not None: last = o
    assert not extra and not fill and not pend, (len(extra), len(fill), len(pend))
    for o in epi_ops(2, layer):
        o = a(o)
        if o is not None: last = o
    return last

def stats(a, layer, stubs):
    a("v_lshlrev_b32 v4, 4, v0")
    a(f"s_mul_i32 s48, s{S_RT}, {3*65536}")
    R = 40; ACC = 16
    a("v_lshrrev_b32 v2, 3, v0"); a("v_cmp_eq_u32 s[50:51], 1, v2")
    a("v_mul_u32_u24 v8, 768, v2"); a("v_and_b32 v3, 7, v0"); a("v_lshl_add_u32 v8, v3, 5, v8")
    a("s_mov_b32 s49, 0")
    lp = a.newlabel("stat")
    a.label(lp, 1)
    def ld(a):
        for i in range(16):
            a(f"s_add_u32 s7, s48, {4096*i}")
            a(f"buffer_load_dwordx4 {vr(R+4*i,4)}, v4, s[8:11], s7 offen {LD}")
    ld(a)
    for i in range(8): a(f"v_mov_b32 v{ACC+i}, 0")
    a(f"s_cmp_ge_u32 s48, {S*D*2}"); a(f"s_cselect_b32 s73, 0, s{S_TM}")
    sync.check(a, lambda a: sync.bad_tag(a, 9, [R + 4 * i for i in range(16)], layer == 0, "s73"), ld, stubs)
    for i in range(16):
        for j in range(4):
            if i == 0: a(f"v_cndmask_b32 v{R+j}, v{R+j}, 0, s[50:51]")
            a(f"v_lshlrev_b32 v10, 16, v{R+4*i+j}"); a(f"v_and_b32 v11, s{S_HI}, v{R+4*i+j}")
            a(f"v_pk_fma_f32 {vr(ACC+2*j,2)}, v[10:11], v[10:11], {vr(ACC+2*j,2)}")
    a(f"ds_write_b128 v8, {vr(ACC,4)}"); a(f"ds_write_b128 v8, {vr(ACC+4,4)} offset:16")
    a("v_add_u32 v8, 256, v8"); a("s_add_u32 s48, s48, 65536")
    a("s_waitcnt lgkmcnt(0)")
    a("s_add_u32 s49, s49, 1"); a("s_cmp_lt_u32 s49, 3"); a(f"s_cbranch_scc1 {lp}")
    a("s_barrier")
    a("v_lshlrev_b32 v4, 2, v0")
    for i in range(32): a(f"ds_read_b32 v{R+i}, v4 offset:{i*768}")
    for st in (16, 8, 4, 2, 1):
        for i in range(st): a(f"v_add_f32 v{R+i}, v{R+i}, v{R+i+st}")
    a(f"v_mov_b32 v6, {fhex(1e-5)}"); a(f"v_fmamk_f32 v{R}, v{R}, {fhex(1/512)}, v6"); a(f"v_rcp_f32 v{R}, v{R}")
    srd(a, 12, K_WS, 8192, (WS_R1, WS_R3)[layer])
    a(f"s_mul_i32 s5, s{S_RT}, 768")
    a(f"v_mov_b32 v6, {OOB}"); a(f"v_min_u32 v{R}, s{S_SAN}, v{R}")
    a("v_cmp_gt_u32 vcc, 192, v0"); a("v_cndmask_b32 v4, v6, v4, vcc")
    a(f"buffer_store_dword v{R}, v4, s[12:15], s5 offen {ST}")
```

```python
from asmdsl import *
from maps import *
from regs import *
import p1, sync
LDS_RED = 0
LDS_X = 49152
LDS_SS = 49152
L = 1
V_L16 = 5; V_RW = 6; V_RR = 9; V_XO = 10; V_RO = 11; V_AT = 12; V_MSK = 2; V_TR = 12; V_DM = 2; V_CK = 3; V_SR = 4; V_SO = 13
V_WL = 14
V_R = 16; V_RES = 32; V_T = 40; V_ACC = 56; V_H = 120
V_XF = 24
A_CT = 0
def wreg(i, jj):
    n = 8 * i + 4 * jj
    return ar(128 + n, 4) if n < 128 else vr(208 + n - 128, 4)
def hreg(i): return vr(V_H + 4 * i, 4)

def task(a):
    a("s_and_b32 s5, s2, 7"); a("s_lshl_b32 s5, s5, 2"); a("s_lshr_b32 s6, s2, 6"); a("s_add_u32 s5, s5, s6")
    a(f"s_bfe_u32 s{S_JT}, s2, 0x30003")
    a(f"s_mul_i32 s{S_RT2}, s5, 86"); a(f"s_lshr_b32 s{S_RT2}, s{S_RT2}, 8")
    a(f"s_mul_i32 s7, s{S_RT2}, 3"); a("s_sub_u32 s7, s5, s7")
    a("s_cmp_eq_u32 s5, 31"); a("s_cselect_b32 s7, 2, s7")
    a(f"s_mul_i32 s{S_TA}, s{S_RT2}, 6"); a(f"s_add_u32 s{S_TA}, s{S_TA}, s7")
    a(f"s_lshr_b32 s{S_PK}, s7, 1"); a(f"s_add_u32 s{S_PK}, s{S_PK}, 1")
    a(f"s_lshl_b32 s{S_HA}, s{S_RT2}, 2"); a(f"s_add_u32 s{S_HA}, s{S_HA}, s7"); a(f"s_add_u32 s{S_HA}, s{S_HA}, 20")
    a(f"s_lshl_b32 s6, s{S_RT2}, 1"); a("s_add_u32 s6, s6, s7")
    a("s_cmp_eq_u32 s5, 30"); a("s_cselect_b32 s7, 2, s7"); a("s_cmp_eq_u32 s7, 2")
    a("s_cselect_b32 s7, 1, 4"); a(f"s_cselect_b32 s5, s{S_HA}, s6"); a("s_cselect_b32 s6, 1, 0"); a("s_add_u32 s5, s5, s6")
    a(f"s_add_u32 s{S_TB}, s{S_TA}, s7")
    a("s_lshl_b32 s5, s5, 8"); a(f"s_or_b32 s{S_HA}, s{S_HA}, s5")
assert all((x * 86) >> 8 == x // 3 for x in range(32))

def w_setup(a, final):
    ngw = (118 if final else NG) * 1024
    srd(a, 56, K_WS, 16 * ngw, WS_WDF if final else WS_WDP)
    a(f"s_lshr_b32 s5, s{S_W}, 1"); a(f"s_lshl_b32 s60, s{S_JT}, 1"); a("s_add_u32 s60, s60, s5")
    a("s_xor_b32 s6, s60, 1")
    a(f"s_mul_i32 s61, s60, {ngw}"); a(f"s_mul_i32 s62, s6, {ngw}")
    if final:
        a(f"s_lshl_b32 s5, s{S_W}, 13"); a(f"s_add_u32 s5, s5, {86*1024}"); a("s_add_u32 s63, s61, s5"); a("s_add_u32 s64, s62, s5")
    a(f"s_lshl_b32 s5, s{S_W}, 10"); a("s_add_u32 s61, s61, s5"); a("s_add_u32 s62, s62, s5")
def wl_setup(a, v):
    a(f"s_and_b32 s5, s{S_W}, 1"); a("s_lshl_b32 s5, s5, 8")
    a(f"v_lshlrev_b32 v{v}, 4, v{L}"); a(f"v_xor_b32 v{v}, s5, v{v}")
def w_load(a, i, jj, v=V_WL):
    if i: a(f"s_add_u32 s{61+jj}, s{61+jj}, 4096")
    a(f"buffer_load_dwordx4 {wreg(i,jj)}, v{v}, s[56:59], s{61+jj} offen {LD}")

def saddrs(a, final):
    for t in range(2):
        a(f"s_bfe_u32 s5, s{S_HA}, {0x80000 + 8*t}"); a(f"s_mul_i32 s5, s5, {TSZ}"); a(f"s_add_u32 s5, s5, {WS_H}")
        srd(a, 16 + 4 * t, K_WS, NG * 1024, "s5")
        a(f"s_lshr_b32 s5, s{S_TA+t}, 1"); a(f"s_and_b32 s6, s{S_TA+t}, 1")
        a(f"s_lshl_b32 s{82+t}, s5, 16"); a("s_lshl_b32 s7, s6, 6"); a(f"s_add_u32 s{82+t}, s{82+t}, s7")
        if final:
            a(f"s_lshl_b32 s{74+t}, s6, 20"); a("s_lshl_b32 s5, s5, 10"); a(f"s_add_u32 s{74+t}, s{74+t}, s5")
            a("s_lshl_b32 s5, s60, 6"); a(f"s_add_u32 s{74+t}, s{74+t}, s5")
        else:
            a("s_lshl_b32 s5, s60, 12"); a(f"s_add_u32 s{74+t}, s{82+t}, s5")
        a(f"s_lshl_b32 s{28+t}, s{S_TA+t}, 7")
    a(f"s_lshl_b32 s42, s{S_W}, 10")
    if final: srd(a, 24, K_OUT, S * D * 2)
    a(f"s_cmp_ge_u32 s{S_W}, 2"); a("s_cselect_b32 s72, 1, 0")

def addrs(a, final):
    a(f"s_mul_i32 s6, s{S_W}, 6144"); a(f"v_add_u32 v{V_RR}, s6, v{V_L16}")
    for qq in range(1, 4):
        a(f"s_xor_b32 s5, s{S_W}, {qq}"); a("s_mul_i32 s5, s5, 6144"); a(f"v_add_u32 v{V_RW+qq-1}, s5, v{V_L16}")
    h, u, x = V_T, V_T + 1, V_T + 2
    a(f"s_and_b32 s5, s{S_W}, 1")
    srd(a, 68, K_WS, 8192, WS_R3 if final else WS_R1)
    if not final:
        a(f"v_bfe_u32 v{h}, v{L}, 4, 1"); a(f"v_lshrrev_b32 v{x}, 5, v{L}"); a(f"v_lshl_add_u32 v{h}, v{h}, 1, v{x}")
        a(f"v_and_b32 v{u}, 15, v{L}"); a(f"v_lshl_add_u32 v{u}, s5, 4, v{u}")
        a(f"v_lshlrev_b32 v{V_XO}, 7, v{u}"); a(f"v_lshl_add_u32 v{V_XO}, v{h}, 4, v{V_XO}")
        a(f"v_lshlrev_b32 v{V_RO}, 5, v{h}")
        a(f"v_bfe_u32 v{x}, v{L}, 1, 3"); a(f"v_lshl_add_u32 v{V_AT}, v{x}, 2, v{V_RO}")
        a("s_lshl_b32 s5, s60, 5"); a(f"v_or_b32 v{x}, s5, v{u}")
        a(f"v_cmp_eq_u32 vcc, 1, v{x}"); a(f"v_cndmask_b32 v{V_MSK}, 1.0, 0, vcc")
        a(f"v_and_b32 v{V_SR}, 3, v0"); a(f"v_lshlrev_b32 v{V_SR}, 5, v{V_SR}")
        a(f"v_lshlrev_b32 v{V_SO}, 4, v0"); a(f"v_mov_b32 v{x}, {OOB}"); a("v_cmp_gt_u32 vcc, 4, v0"); a(f"v_cndmask_b32 v{V_SO}, v{x}, v{V_SO}, vcc")
        srd(a, 12, K_WS, 32768, WS_SS2)
    else:
        a(f"v_lshrrev_b32 v{h}, 5, v{L}"); a(f"v_and_b32 v{u}, 31, v{L}"); a("s_lshl_b32 s5, s5, 5")
        a(f"v_and_b32 v{x}, 19, v{u}"); a(f"v_bfe_u32 v{V_RO}, v{u}, 3, 1"); a(f"v_lshl_add_u32 v{x}, v{V_RO}, 2, v{x}")
        a(f"v_bfe_u32 v{V_RO}, v{u}, 2, 1"); a(f"v_lshl_add_u32 v{x}, v{V_RO}, 3, v{x}")
        a(f"v_lshlrev_b32 v{V_RO}, 2, v{x}")
        a(f"v_lshlrev_b32 v{V_XO}, 15, v{x}"); a(f"v_lshl_add_u32 v{V_XO}, v{h}, 4, v{V_XO}"); a(f"v_add_u32 v{V_XO}, s5, v{V_XO}")
        p1.tr_addr(a, V_TR, 64, V_T)
        a(f"s_lshl_b32 s5, s{S_W}, 14"); a(f"s_add_u32 s5, s5, {LDS_X}"); a(f"v_add_u32 v{V_TR}, s5, v{V_TR}")
        a(f"v_lshrrev_b32 v{x}, 2, v{L}"); a(f"v_lshlrev_b32 v{V_DM}, 7, v{x}"); a(f"v_and_b32 v{x}, 3, v{L}"); a(f"v_lshl_add_u32 v{V_DM}, v{x}, 4, v{V_DM}")

def h_load(a, tile, i):
    a(f"s_add_u32 s7, s42, {4096*i}")
    a(f"buffer_load_dwordx4 {hreg(i)}, v{V_L16}, s[{16+4*tile}:{19+4*tile}], s7 offen {LD}")
def r_load(a, final):
    for t in range(2):
        if final: a(f"buffer_load_dword v{V_R+t}, v{V_RO}, s[68:71], s{28+t} offen {LD}")
        else:
            a(f"buffer_load_dwordx4 {vr(V_R+8*t,4)}, v{V_RO}, s[68:71], s{28+t} offen {LD}")
            a(f"buffer_load_dwordx4 {vr(V_R+8*t+4,4)}, v{V_RO}, s[68:71], s{28+t} offen offset:16 {LD}")
            a(f"buffer_load_dwordx4 {vr(V_RES+4*t,4)}, v{V_XO}, s[8:11], s{74+t} offen {LD}")
def r_check(a, final, stubs):
    def bad(a):
        if final: sync.bad_fill(a, V_CK, [V_R, V_R + 1]); return
        sync.bad_fill(a, V_CK, range(V_R, V_R + 16)); a("s_mov_b64 s[6:7], vcc")
        sync.bad_tag(a, V_CK, [V_RES, V_RES + 4], True, f"s{S_TM}"); a("s_or_b64 vcc, vcc, s[6:7]")
    sync.check(a, bad, lambda a: r_load(a, final), stubs)

def ct_x(a):
    a(f"s_lshl_b32 s5, s{S_W}, 14")
    op = None
    for t in range(2):
        a(f"s_add_u32 s6, s{82+t}, s5")
        for i in range(8):
            a(f"s_add_u32 m0, s5, {LDS_X + t*8192 + i*1024}")
            op = a(f"buffer_load_dwordx4 v{V_DM}, s[8:11], s6 offen {LD} lds")
            if i < 7: a("s_add_u32 s6, s6, 2048")
    return op
def ct_w(a, k, jj):
    if k == 4: a(f"s_add_u32 s{63+jj}, s{63+jj}, 4096")
    a(f"buffer_load_dwordx4 {ar(A_CT+8*k+4*jj,4)}, v{V_WL}, s[56:59], s{63+jj} offen offset:{(k%4)*1024} {LD}")
def ct_compute(a, t, first, hook=None):
    def rd(k):
        for rho in range(2): a(f"ds_read_b64_tr_b16 {vr(V_XF+4*(k%4)+2*rho,2)}, v{V_TR} offset:{t*8192 + k*1024 + rho*512}")
    for k in range(3): rd(k)
    for k in range(8):
        for jj in range(2):
            acc = vr(V_ACC + 32 * t + 16 * jj, 16)
            a(f"v_mfma_f32_32x32x16_bf16 {acc}, {ar(A_CT+8*k+4*jj,4)}, {vr(V_XF+4*(k%4),4)}, {'0' if (k == 0 and first) else acc}")
        if k + 3 < 8: rd(k + 3)
        if hook: hook(k)
def scale(a, t, r):
    a(f"v_mov_b32 v{V_T}, v{r}"); a(f"v_mov_b32 v{V_T+1}, v{r}")
    for j in range(16): a(f"v_pk_mul_f32 {vr(V_ACC+32*t+2*j,2)}, {vr(V_T,2)}, {vr(V_ACC+32*t+2*j,2)}")

GR = [(0, 4), (4, 10), (10, 16), (16, 22)]
def mm(a, tile, final, first, stubs, hook=None):
    skip = a.newlabel("g2skip")
    def chk(g):
        lo, hi = GR[g]
        def reload(a):
            for i in range(lo, hi): h_load(a, tile, i)
        def bad(a):
            if final and hi == 22: a(f"v_or_b32 v{V_H+84}, s72, v{V_H+84}")
            sync.bad_tag(a, V_CK, [V_H + 4 * i for i in range(lo, hi)], final, 1)
        sync.check(a, bad, reload, stubs)
    if tile: chk(0)
    for i in range(22):
        if i == 21:
            a.wait_regs(hreg(21))
            a(f"s_cmp_ge_u32 s{S_W}, 2"); a(f"s_cbranch_scc1 {skip}")
        for jj in range(2):
            acc = vr(V_ACC + 32 * tile + 16 * jj, 16)
            c = "0" if (i == 0 and first) else acc
            A, B = (wreg(i, jj), hreg(i)) if final else (hreg(i), wreg(i, jj))
            a(f"v_mfma_f32_32x32x16_bf16 {acc}, {A}, {B}, {c}")
        for g in range(1, 4):
            if tile and i == GR[g][0] - 1: chk(g)
        if hook and i < 21: hook(i)
    a.label(skip)

def reduce(a, tile, swap, hook=None):
    acc = V_ACC + 32 * tile
    def wr(qq):
        for k in range(2):
            a(f"ds_write_b128 v{V_RW+qq-1}, {vr(acc+8*qq+4*k,4)} offset:{LDS_RED + tile*24576 + (qq-1)*2048 + k*1024}")
    if swap:
        for e in range(8): a(f"v_permlane16_swap_b32 v{acc+e}, v{acc+8+e}")
        wr(1)
        for e in range(8): a(f"v_permlane16_swap_b32 v{acc+16+e}, v{acc+24+e}")
        wr(2); wr(3)
    else:
        wr(1); wr(2); wr(3)
    if hook: hook()
    a("s_waitcnt lgkmcnt(0)"); a("s_barrier")
    for k in range(6): a(f"ds_read_b128 {vr(acc+8+4*k,4)}, v{V_RR} offset:{LDS_RED + tile*24576 + k*1024}")
    for q in range(1, 4):
        for j in range(4): a(f"v_pk_add_f32 {vr(acc+2*j,2)}, {vr(acc+2*j,2)}, {vr(acc+8*q+2*j,2)}")

def unres(a, tile):
    for j in range(4):
        a(f"v_lshlrev_b32 v{V_T+2*j}, 16, v{V_RES+4*tile+j}"); a(f"v_and_b32 v{V_T+2*j+1}, s{S_HI}, v{V_RES+4*tile+j}")
def epi4(a, tile):
    acc = V_ACC + 32 * tile; t = V_T
    for j in range(4): a(f"v_pk_fma_f32 {vr(t+2*j,2)}, {vr(acc+2*j,2)}, {vr(V_R+8*tile+2*j,2)}, {vr(t+2*j,2)}")
    for j in range(4): a(f"v_cvt_pk_bf16_f32 v{acc+8+j}, v{t+2*j}, v{t+2*j+1}")
    a(f"v_and_or_b32 v{acc+8}, v{acc+8}, s{S_NTM}, 1")
    a(f"buffer_store_dwordx4 {vr(acc+8,4)}, v{V_XO}, s[8:11], s{74+tile} offen {ST}")
    for j in range(4): a(f"v_pk_mul_f32 {vr(t+2*j,2)}, {vr(t+2*j,2)}, {vr(t+2*j,2)}")
    for e in range(8): a(f"v_mul_f32 v{t+e}, v{V_MSK}, v{t+e}")
    for e in range(4): a(f"v_add_f32_dpp v{t+8+e}, v{t+e}, v{t+e} row_mirror row_mask:0xf bank_mask:0x3")
    for e in range(4): a(f"v_add_f32_dpp v{t+8+e}, v{t+4+e}, v{t+4+e} row_mirror row_mask:0xf bank_mask:0xc")
    for e in range(2): a(f"v_add_f32_dpp v{t+e}, v{t+8+e}, v{t+8+e} row_half_mirror row_mask:0xf bank_mask:0x5")
    for e in range(2): a(f"v_add_f32_dpp v{t+e}, v{t+10+e}, v{t+10+e} row_half_mirror row_mask:0xf bank_mask:0xa")
    a("s_mov_b32 vcc_lo, 0xcccccccc"); a("s_mov_b32 vcc_hi, 0xcccccccc")
    for e in range(2): a(f"v_add_f32_dpp v{t+e}, v{t+e}, v{t+e} quad_perm:[2,3,0,1] row_mask:0xf bank_mask:0xf")
    a(f"v_cndmask_b32 v{t}, v{t}, v{t+1}, vcc")
    a(f"ds_add_f32 v{V_AT}, v{t} offset:{LDS_SS + 128*tile}")
def ss_out(a, tile):
    t = V_ACC + 32 * tile + 16
    a(f"ds_read_b128 {vr(t,4)}, v{V_SR} offset:{LDS_SS + 128*tile}"); a(f"ds_read_b128 {vr(t+4,4)}, v{V_SR} offset:{LDS_SS + 128*tile + 16}")
    a(f"s_lshl_b32 s5, s{S_JT}, 12"); a(f"s_lshr_b32 s6, s{28+tile}, 1"); a("s_add_u32 s5, s5, s6")
    for j in range(4): a(f"v_cvt_pk_bf16_f32 v{t+8+j}, v{t+2*j}, v{t+2*j+1}")
    a(f"v_min_u32 v{t+8}, s{S_SAN}, v{t+8}")
    a(f"buffer_store_dwordx4 {vr(t+8,4)}, v{V_SO}, s[12:15], s5 offen {ST}")

def epi7(a, tile, r):
    acc = V_ACC + 32 * tile
    if r is not None:
        for e in range(8): a(f"v_mul_f32 v{acc+e}, v{r}, v{acc+e}")
    for j in range(4): a(f"v_cvt_pk_bf16_f32 v{acc+8+j}, v{acc+2*j}, v{acc+2*j+1}")
    a(f"buffer_store_dwordx4 {vr(acc+8,4)}, v{V_XO}, s[24:27], s{74+tile} offen")

def body(a, final, stubs, BSTART=8):
    for i in range(9): h_load(a, 0, i)
    addrs(a, final)
    a("s_barrier")
    if not final:
        a(f"v_mov_b32 v{V_T}, 0"); a(f"v_lshlrev_b32 v{V_T+1}, 2, v{L}"); a(f"ds_write_b32 v{V_T+1}, v{V_T} offset:{LDS_SS}")
    r_load(a, final)
    for i in range(9, 22): h_load(a, 0, i)
    a.stamp()
    bl = list(range(22))
    if final:
        r_check(a, final, stubs)
        xop = ct_x(a)
        mm(a, 0, final, True, stubs)
        a.stamp()
        for _ in range(9): h_load(a, 1, bl.pop(0))
        scale(a, 0, V_R)
        a(f"v_rcp_f32 v{V_R+2}, v{V_R+1}")
        a.wait_vm(xop)
        def hk(k):
            if bl: h_load(a, 1, bl.pop(0))
        ct_compute(a, 0, False, hk); ct_compute(a, 1, True, hk)
        assert not bl
        reduce(a, 0, False); epi7(a, 0, None)
        scale(a, 1, V_R + 2)
        a.stamp()
        mm(a, 1, final, False, stubs)
        a.stamp()
        reduce(a, 1, False); epi7(a, 1, V_R + 1)
    else:
        def hk(i):
            if i >= BSTART:
                for _ in range(2):
                    if bl and bl[0] < i: h_load(a, 1, bl.pop(0))
        mm(a, 0, final, True, stubs, hk)
        a.stamp()
        while bl: h_load(a, 1, bl.pop(0))
        r_check(a, final, stubs)
        reduce(a, 0, True, lambda: unres(a, 0)); epi4(a, 0)
        a("s_waitcnt lgkmcnt(0)"); a("s_barrier")
        ss_out(a, 0)
        a.stamp()
        mm(a, 1, final, True, stubs)
        a.stamp()
        reduce(a, 1, True, lambda: unres(a, 1)); epi4(a, 1)
        a("s_waitcnt lgkmcnt(0)"); a("s_barrier")
        ss_out(a, 1)
    a.stamp()
```

```python
S_WG = 2; S_W = 3; S_P = 4
K_X = 16; K_WR = 18; K_WI = 20; K_WG = 24; K_WU = 26; K_WD = 28; K_OUT = 30; K_DBG = 32; K_WS = 34
S_NONCE = 36; S_SAN = 37; S_HI = 38
S_TM = 40; S_NTM = 41
S_CNT = 39
S_KB = 43
S_RT = 44; S_FT = 45; S_GAM = 46
S_RT2 = 101; S_PK = 33; S_HA = 32
S_JT = 53; S_TA = 54; S_TB = 55
SRD_FL = 96
ST = "sc1"; LD = "sc1"
OOB = 0x1000000
SPIN = 1 << 17
def srd(a, d, base, size, off=0):
    if isinstance(off, str) or off:
        a(f"s_add_u32 s{d}, s{base}, {off}"); a(f"s_addc_u32 s{d+1}, s{base+1}, 0")
    else:
        a(f"s_mov_b32 s{d}, s{base}"); a(f"s_mov_b32 s{d+1}, s{base+1}")
    a(f"s_mov_b32 s{d+2}, {size}"); a(f"s_mov_b32 s{d+3}, 0x20000")
```

```python
from asmdsl import *
from maps import *
from regs import *
FL_H = 256 * 64
FL_NONCE = FL_H + 11 * 88 * 64
FL_SIZE = FL_NONCE + 128
BACKOFF = 3

def post(a, t, k):
    a(f"s_lshl_b32 s5, s{S_WG}, 6"); a(f"s_add_u32 s6, s{S_NONCE}, {k}")
    a(f"v_mov_b32 v{t}, {OOB}"); a(f"v_mov_b32 v{t+1}, s6")
    a("v_cmp_eq_u32 vcc, 0, v0"); a(f"v_cndmask_b32 v{t}, v{t}, 0, vcc")
    a(f"buffer_store_dword v{t+1}, v{t}, s[{SRD_FL}:{SRD_FL+3}], s5 offen sc1")

def poll_issue(a, t, addr):
    return a(f"buffer_load_dword v{t}, v{addr}, s[{SRD_FL}:{SRD_FL+3}], 0 offen sc1")

def poll_check(a, t, addr, k, stubs, t2=None):
    back, slow = a.newlabel("pback"), a.newlabel("pslow")
    a(f"s_add_u32 s6, s{S_NONCE}, {k}")
    a(f"v_subrev_u32 v{t}, s6, v{t}")
    a(f"v_cmp_le_u32 vcc, 8, v{t}")
    n2 = None
    if t2 is not None:
        for i in range(len(a.vm) - 1, -1, -1):
            if ("v", t2) in a.vm[i]["w"]: n2 = a._younger(a.vm, i); break
    a(f"s_cbranch_vccnz {slow}")
    a.label(back)
    def stub(a):
        lp, out = a.newlabel("ploop"), a.newlabel("pout")
        a.label(slow); a(f"s_mov_b32 s{S_CNT}, 0")
        if t2 is not None:
            if n2 is not None: a(f"s_waitcnt vmcnt({n2})")
            a(f"v_subrev_u32 v{t}, s6, v{t2}"); a(f"v_cmp_le_u32 vcc, 8, v{t}"); a(f"s_cbranch_vccz {back}")
        a.label(lp)
        a("s_mov_b64 exec, vcc")
        a(f"buffer_load_dword v{t}, v{addr}, s[{SRD_FL}:{SRD_FL+3}], 0 offen sc1")
        a(f"s_add_u32 s{S_CNT}, s{S_CNT}, 1")
        a("s_waitcnt vmcnt(0)")
        a(f"v_subrev_u32 v{t}, s6, v{t}")
        a(f"v_cmp_le_u32 vcc, 8, v{t}")
        a(f"s_cbranch_vccz {out}")
        a(f"s_sleep {BACKOFF}")
        a(f"s_cmp_lt_u32 s{S_CNT}, {SPIN}"); a(f"s_cbranch_scc1 {lp}")
        a.label(out); a("s_mov_b64 exec, -1")
        a(f"s_branch {back}")
    stubs.append(stub)

def fold(a, t, regs, kind):
    op2 = {"max": "v_max_u32", "or": "v_or_b32", "and": "v_and_b32"}[kind]
    op3 = {"max": "v_max3_u32 {}", "or": "v_or3_b32 {}", "and": "v_bitop3_b32 {} bitop3:0x80"}[kind]
    regs = list(regs)
    if len(regs) == 1: a(f"v_mov_b32 v{t}, v{regs[0]}"); return
    if len(regs) == 2: a(f"{op2} v{t}, v{regs[0]}, v{regs[1]}"); return
    a(op3.format(f"v{t}, v{regs[0]}, v{regs[1]}, v{regs[2]}")); regs = regs[3:]
    while len(regs) >= 2:
        a(op3.format(f"v{t}, v{t}, v{regs[0]}, v{regs[1]}")); regs = regs[2:]
    if regs: a(f"{op2} v{t}, v{t}, v{regs[0]}")
def bad_fill(a, t, regs):
    fold(a, t, regs, "max"); a(f"v_cmp_eq_u32 vcc, -1, v{t}")
def bad_tag(a, t, regs, ones, mask):
    fold(a, t, regs, "and" if ones else "or")
    a(f"v_and_b32 v{t}, {mask}, v{t}")
    a(f"v_cmp_ne_u32 vcc, {mask if ones else 0}, v{t}")

def check(a, gather, reload, stubs, masked=True):
    back, slow = a.newlabel("cback"), a.newlabel("cslow")
    gather(a)
    a(f"s_cbranch_vccnz {slow}")
    a.label(back)
    def stub(a):
        lp, out = a.newlabel("cloop"), a.newlabel("cout")
        a.label(slow); a(f"s_mov_b32 s{S_CNT}, 0")
        a("s_waitcnt vmcnt(0) lgkmcnt(0)"); a("s_nop 7"); a("s_nop 7")
        a.label(lp)
        if masked: a("s_mov_b64 exec, vcc")
        reload(a)
        a(f"s_add_u32 s{S_CNT}, s{S_CNT}, 1")
        a("s_waitcnt vmcnt(0)")
        gather(a)
        a(f"s_cbranch_vccz {out}")
        a(f"s_sleep {BACKOFF}")
        a(f"s_cmp_lt_u32 s{S_CNT}, {SPIN}"); a(f"s_cbranch_scc1 {lp}")
        a.label(out)
        if masked: a("s_mov_b64 exec, -1")
        a("s_waitcnt lgkmcnt(0)"); a("s_nop 1")
        a(f"s_branch {back}")
    stubs.append(stub)

def fill_loop(a, off, size, sidx, n, vdata, voff):
    srd(a, 68, K_WS, size, off)
    a(f"s_lshl_b32 s72, s{sidx}, 12")
    lp = a.newlabel("fill"); a.label(lp)
    a(f"buffer_store_dwordx4 {vr(vdata,4)}, v{voff}, s[68:71], s72 offen sc1")
    a(f"s_add_u32 s72, s72, {n*4096}"); a(f"s_cmp_lt_u32 s72, {size}"); a(f"s_cbranch_scc1 {lp}")

def poll_block(a, t, addr, k, stubs):
    poll_issue(a, t, addr); poll_check(a, t, addr, k, stubs)
```

```python
import sys
from asmdsl import *
from maps import *
from regs import *
import p1, pcol, pg1, pg2, sync

STAMPS = "--stamps" in sys.argv
NAME = "interleave_layers__spectral_gfnet__glu_gated_reglu__prompt_kernel"
HDR = open("interleave_layers__spectral_gfnet__glu_gated_reglu__prompt.s.ref").read().split("; Override launch")[0]
CODE_KB = 64

def zero_stamps(a, lo, hi):
    if STAMPS:
        for i in range(lo, hi): a(f"s_mov_b32 s{84+2*i}, 0")

def layer(a, l, stubs):
    final = l == 1
    pcol.addrs(a, l)
    if final: pcol.load_filter(a)
    pcol.tables1(a)
    if final: pg2.w_setup(a, True); pg2.wl_setup(a, 250)
    else: pg1.w_setup(a); a("v_lshlrev_b32 v250, 4, v1"); a("v_lshlrev_b32 v251, 6, v0")
    a.stamp()
    a("s_waitcnt vmcnt(0)"); a("s_barrier")
    a.stamp()
    if not final:
        sync.post(a, pcol.V_PL, 0)
        a(f"s_cmp_lg_u32 s{p1.S_TY}, 2"); a("s_cbranch_scc1 L_norelay")
        a.cond_begin(); p1.relayout(a, pcol.V_Z, pcol.V_IN); a.cond_end()
        a.label("L_norelay", 2)
        wl = [(lambda ks=ks: pg1.w_load(a, ks, 250)) for ks in range(32)]
        plan = {-1: 3, 0: 5, 1: 3, 2: 4, 3: 5}
    else:
        pcol.loads(a, l)
        wl = [(lambda i=i, jj=jj: pg2.w_load(a, i, jj, 250)) for i in range(16) for jj in range(2)]
        plan = {-1: 0, 0: 5, 1: 3, 2: 4, 3: 4}
    def hook(k):
        for _ in range(plan[k]): wl.pop(0)()
    pcol.tables2(a, hook)
    if not final:
        sync.poll_block(a, pcol.V_PL, 251, 0, stubs); a("s_barrier")
        pcol.loads(a, l); pcol.load_filter(a); hook(-1)
    a.stamp()
    op = pcol.compute(a, l, hook, stubs)
    a.stamp()
    if not final:
        for _ in range(8): wl.pop(0)()
    pg1.addrs(a, l)
    if not final: pg2.w_setup(a, False)
    pg2.wl_setup(a, pg2.V_WL)
    pg2.saddrs(a, final)
    a.wait_vm(op); a("s_barrier")
    a.stamp(); a.flush()
    lst, lg2 = f"L_g1stats{l}", f"L_g2{l}"
    a(f"s_cmp_eq_u32 s{S_FT}, 22"); a(f"s_cbranch_scc1 {lst}")
    st = a.save()
    done = 32 - len(wl) if final else 0
    rest = [(lambda i=n // 2, jj=n % 2: pg2.w_load(a, i, jj)) for n in range(done, 44)]
    cts = [(lambda k=k, jj=jj: pg2.ct_w(a, k, jj)) for k in range(8) for jj in range(2)] if final else []
    if final: extra = [(16 + 4 * i, f) for i, f in enumerate(rest)] + [(max(132 + 2 * i, 140), f) for i, f in enumerate(cts)]
    else: extra = [(32 + 3 * i, f) for i, f in enumerate(rest)]
    def first():
        if not final:
            for f in wl: f()
    pg1.mainloop(a, l, extra, stubs, first)
    a(f"s_add_u32 s7, s{S_PK}, {2*l}")
    sync.poll_check(a, pg1.V_P1, pg1.V_PA, "s7", stubs, pg1.V_P2)
    a(f"s_branch {lg2}")
    nst_end = a.nst
    a.restore(st); a.label(lst)
    if not final:
        a(f"v_mov_b32 v16, {OOB}"); a(f"v_mov_b32 v17, s{S_NONCE}")
        a("s_lshl_b32 s5, s2, 8"); a("v_or_b32 v18, s5, v0"); a("v_cmp_eq_u32 vcc, 0, v18"); a("v_cndmask_b32 v16, v16, 0, vcc")
        a(f"s_mov_b32 s5, {sync.FL_NONCE}")
        a(f"buffer_store_dword v17, v16, s[{SRD_FL}:{SRD_FL+3}], s5 offen sc1")
    pg1.stats(a, l, stubs)
    for f in rest + cts: f()
    sync.poll_issue(a, pg1.V_P1, pg1.V_PA)
    a(f"s_add_u32 s7, s{S_PK}, {2*l}")
    sync.poll_check(a, pg1.V_P1, pg1.V_PA, "s7", stubs)
    zero_stamps(a, 0, nst_end)
    a.label(lg2, 2)
    a.vm = []; a.lg = []
    a.flush()
    pg2.body(a, final, stubs)
    a.flush()

def main():
    a = Asm(); a.stamps = STAMPS
    stubs = []
    if "--cyc" in sys.argv: a.stampop = "s_memtime"
    a.raw(f".globl {NAME}\n.p2align 8\n.type {NAME},@function\n{NAME}:")
    a("s_load_dwordx16 s[16:31], s[0:1], 0")
    a("s_load_dwordx4 s[32:35], s[0:1], 64")
    a("s_cmp_ge_u32 s2, 256"); a("s_cbranch_scc1 L_exit")
    if STAMPS: a("s_mov_b32 s100, 0"); a("v_mov_b32 v15, 0")
    a.stamp()
    a("s_getpc_b64 s[6:7]"); a("s_lshr_b32 s5, s2, 3"); a("s_lshl_b32 s5, s5, 7")
    a("v_and_b32 v2, 15, v0"); a("v_lshl_add_u32 v2, v2, 12, s5")
    a("global_load_dword v236, v2, s[6:7]")
    a("v_and_b32 v1, 63, v0"); a("v_lshrrev_b32 v2, 6, v0"); a(f"v_readfirstlane_b32 s{S_W}, v2")
    p1.pre(a); p1.fu_pre(a)
    a("s_waitcnt lgkmcnt(0)")
    a.stamp()
    p1.fu_load(a)
    l5, l6, ldone = "L_p1t5", "L_p1t6", "L_p1done"
    a(f"s_cmp_ge_u32 s{p1.S_TY}, 3"); a(f"s_cbranch_scc1 {l5}")
    st = a.save(); nst = a.nst
    def consts(a):
        srd(a, SRD_FL, K_WS, sync.FL_SIZE, WS_FLAG)
        a(f"s_load_dword s{S_NONCE}, s[{SRD_FL}:{SRD_FL+1}], {sync.FL_NONCE}")
        a(f"s_mov_b32 s{S_SAN}, -2"); a(f"s_mov_b32 s{S_HI}, 0xffff0000"); a(f"s_mov_b32 s{S_TM}, 0x00010001"); a(f"s_mov_b32 s{S_NTM}, 0xfffefffe")
    op = p1.dma(a)
    consts(a)
    p1.body(a, op, ldone, stubs)
    nst_end = a.nst
    a.restore(st); a.label(l5)
    zero_stamps(a, nst, nst_end)
    consts(a)
    p1.fu_store(a)
    a(f"s_cmp_eq_u32 s{p1.S_TY}, 5"); a(f"s_cbranch_scc1 {ldone}")
    a(f"s_cmp_eq_u32 s{p1.S_TY}, 4"); a(f"s_cbranch_scc1 {l6}")
    p1.t5(a)
    a(f"s_branch {ldone}")
    a.label(l6, 2)
    a("v_lshlrev_b32 v2, 4, v0")
    for i in range(4): a(f"v_mov_b32 v{4+i}, -1")
    sync.fill_loop(a, WS_FILL, FILL_SIZE, p1.S_B, 40, 4, 2)
    a.label(ldone, 2)
    a.vm = []; a.lg = []
    p1.nonce(a)
    a.stamp(); a.flush()
    pcol.task(a); pg1.task(a); pg2.task(a)
    layer(a, 0, stubs)
    layer(a, 1, stubs)
    if STAMPS:
        a("s_waitcnt vmcnt(0)"); a.stamp(); a.flush()
        a("s_lshl_b32 s5, s2, 10"); a(f"s_add_u32 s5, s5, {WS_STAMP}")
        a("v_lshl_add_u32 v1, v0, 2, s5")
        a(f"global_store_dword v1, v15, s[{K_WS}:{K_WS+1}]")
    a.raw("L_exit:\n    s_endpgm")
    for s in stubs:
        a.reset(); s(a)
    a.raw(f"L_codeend:\n.fill ({CODE_KB*1024} + 256 - (L_codeend - {NAME})) / 4, 4, 0xbf810000")
    out = [HDR.rstrip("\n"), "; @launch grid=(256,1,1) block=(256,1,1) lds=163840", '.amdgcn_target "amdgcn-amd-amdhsa--gfx950"\n.text', a.text(), '.section .rodata,"a"', f""".p2align 6
.amdhsa_kernel {NAME}
  .amdhsa_next_free_vgpr 512
  .amdhsa_next_free_sgpr 102
  .amdhsa_accum_offset 256
  .amdhsa_group_segment_fixed_size 0
  .amdhsa_kernarg_size 80
  .amdhsa_user_sgpr_count 2
  .amdhsa_user_sgpr_kernarg_segment_ptr 1
  .amdhsa_system_sgpr_workgroup_id_x 1
  .amdhsa_float_denorm_mode_32 3
.end_amdhsa_kernel"""]
    print("\n".join(out))
main()
```

```python
import re, copy, struct

def f2u(x):
    return struct.unpack("<I", struct.pack("<f", x))[0]
def fhex(x):
    return "0x%08x" % f2u(x)

_REG = re.compile(r"^(-?)(?:abs\(|\|)?([vas])(?:(\d+)|\[(\d+):(\d+)\])\)?\|?$")
def regs_of(tok):
    tok = tok.strip()
    if tok in ("vcc",): return {("s", "vcc")}
    if tok in ("vcc_lo", "vcc_hi"): return {("s", "vcc")}
    if tok in ("exec", "exec_lo", "exec_hi"): return {("s", "exec")}
    if tok == "m0": return {("s", "m0")}
    m = _REG.match(tok)
    if not m: return set()
    k = m.group(2)
    if m.group(3) is not None: return {(k, int(m.group(3)))}
    return {(k, i) for i in range(int(m.group(4)), int(m.group(5)) + 1)}

TRANS = ("v_exp_f32", "v_log_f32", "v_rcp_f32", "v_rsq_f32", "v_sqrt_f32", "v_sin_f32", "v_cos_f32", "v_rcp_iflag_f32")

def split_ops(s):
    out, depth, cur = [], 0, ""
    for ch in s:
        if ch in "[(": depth += 1
        if ch in "])": depth -= 1
        if ch == "," and depth == 0:
            out.append(cur.strip()); cur = ""
        else: cur += ch
    if cur.strip(): out.append(cur.strip())
    return out

class Ins:
    __slots__ = ("text", "mn", "w", "r", "cls", "ws", "passes", "srcc", "ab", "dpp", "widestore", "data")
    def __init__(self, text):
        self.text = text
        t = text.split(";")[0].strip()
        parts = t.split(None, 1)
        mn = parts[0]; self.mn = mn
        ops = split_ops(parts[1]) if len(parts) > 1 else []
        mods = ""
        if ops:
            l = ops[-1].split(None, 1)
            ops[-1] = l[0]
            if len(l) > 1: mods = l[1]
        R = [regs_of(o) for o in ops]
        self.w, self.r = set(), set()
        self.ws = 1; self.passes = 0; self.srcc = set(); self.ab = set(); self.dpp = False; self.widestore = False; self.data = set()
        U = lambda l: set().union(*l) if l else set()
        if mn == "s_nop":
            self.cls = "nop"; self.ws = int(ops[0], 0) + 1
        elif mn.startswith("v_mfma"):
            self.cls = "mfma"; self.w = R[0]; self.ab = R[1] | R[2]; self.srcc = R[3]; self.r = self.ab | self.srcc
            self.passes = 8 if "32x32x16" in mn else 4 if "16x16x32" in mn else None
            assert self.passes, mn
        elif mn.startswith("v_"):
            base = re.sub(r"_(e32|e64|dpp|sdwa)$", "", mn)
            self.cls = "trans" if base in TRANS else "valu"
            self.dpp = mn.endswith("_dpp")
            if base.startswith("v_permlane") or base == "v_swap_b32":
                self.w = R[0] | R[1]; self.r = R[0] | R[1]
            elif base.startswith("v_cmpx"):
                self.w = R[0] | {("s", "exec")}; self.r = U(R[1:])
            elif base in ("v_add_co_u32", "v_sub_co_u32", "v_addc_co_u32", "v_subb_co_u32", "v_subrev_co_u32", "v_mad_u64_u32"):
                self.w = R[0] | R[1]; self.r = U(R[2:])
            else:
                self.w = R[0]; self.r = U(R[1:])
                if base in ("v_fmac_f32", "v_dot2c_f32_bf16", "v_pk_fmac_f16", "v_writelane_b32") or self.dpp or mn.endswith("_sdwa"):
                    self.r |= R[0]
            if base.startswith("v_dot"): self.cls = "dot"
        elif mn.startswith("ds_"):
            self.cls = "ds"
            if mn.startswith("ds_read") or mn.startswith("ds_bpermute") or mn.startswith("ds_swizzle") or mn.startswith("ds_permute"):
                self.w = R[0]; self.r = U(R[1:])
            else: self.r = U(R)
        elif mn.startswith("buffer_") or mn.startswith("global_"):
            self.cls = "vm"
            islds = (" lds" in (" " + mods)) or "load_lds" in mn
            if mn in ("buffer_inv", "buffer_wbl2"): pass
            elif islds: self.r = U(R) | {("s", "m0")}; self.cls = "vm"
            elif "_load_" in mn: self.w = R[0]; self.r = U(R[1:])
            elif "atomic" in mn and "sc0" in mods.split():
                self.w = R[0]; self.r = U(R) if mn.startswith("buffer_") else U(R[1:])
            else:
                self.r = U(R)
                if "dwordx4" in mn or "dwordx3" in mn:
                    self.widestore = True; self.data = R[0] if mn.startswith("buffer_") else R[1]
        elif mn.startswith("s_load") or mn.startswith("s_memtime") or mn.startswith("s_memrealtime") or mn.startswith("s_buffer_load"):
            self.cls = "smem"; self.w = R[0]; self.r = U(R[1:])
        elif mn.startswith("s_"):
            self.cls = "salu"
            if mn.startswith(("s_cmp", "s_cbranch", "s_branch", "s_waitcnt", "s_barrier", "s_endpgm", "s_sleep", "s_setprio", "s_bitcmp", "s_setpc")):
                self.r = U(R)
            elif "saveexec" in mn: self.w = R[0] | {("s", "exec")}; self.r = U(R[1:]) | {("s", "exec")}
            else: self.w = R[0]; self.r = U(R[1:])
        else:
            raise ValueError("unknown instr: " + text)

def isv(regs): return {x for x in regs if x[0] in "va"}
def iss(regs): return {x for x in regs if x[0] == "s"}
VALUISH = ("valu", "trans", "dot")

def need(p, c):
    n = 0
    cbase = re.sub(r"_(e32|e64|dpp|sdwa)$", "", c.mn)
    if p.cls in VALUISH:
        pw = isv(p.w); ps = iss(p.w)
        if c.cls == "mfma" and pw & c.r: n = max(n, 2)
        if c.cls == "mfma" and ("s", "exec") in ps: n = max(n, 4)
        if p.cls == "trans" and c.cls in ("valu", "dot") and pw & c.r: n = max(n, 1)
        if p.cls == "dot" and c.cls in VALUISH + ("mfma", "vm", "ds"):
            if pw & (c.r | c.w):
                same = (c.mn == p.mn)
                ops_ab = c.r - c.w
                if not (same and not (pw & ops_ab)): n = max(n, 3)
        if p.mn.endswith("_sdwa") and c.cls in VALUISH and pw & (c.r | c.w): n = max(n, 1)
        if ps:
            if c.cls in VALUISH and (ps & c.r): n = max(n, 4 if cbase in ("v_readlane_b32", "v_writelane_b32") else 2)
            if c.cls == "vm" and (ps & c.r): n = max(n, 5)
            if ("s", "exec") in ps:
                if c.dpp: n = max(n, 5)
                if cbase in ("v_readlane_b32", "v_readfirstlane_b32", "v_writelane_b32") or cbase.startswith("v_permlane"): n = max(n, 4)
            if c.cls == "salu" and (ps & c.r): n = max(n, 1)
        if pw & c.r:
            if cbase in ("v_readlane_b32", "v_readfirstlane_b32"): n = max(n, 1)
            if c.dpp: n = max(n, 2)
            if cbase.startswith("v_permlane"): n = max(n, 2)
    if p.cls == "mfma":
        P = p.passes
        if c.cls == "mfma":
            if p.w & c.ab: n = max(n, P + 4)
            if p.w & c.srcc:
                if not (p.w == c.srcc and c.passes == P): n = max(n, P + 2)
            if p.w & c.w and not (p.w == c.srcc): n = max(n, P + 2)
        elif c.cls in VALUISH:
            if p.w & (c.r | c.w): n = max(n, P + 4)
            if p.srcc & c.w: n = max(n, P - 1)
        elif c.cls in ("vm", "ds"):
            if p.w & (c.r | c.w): n = max(n, P + 4)
            if p.srcc & c.w: n = max(n, P - 1)
    if p.cls == "vm" and p.widestore and (p.data & c.w):
        n = max(n, 2 if c.cls in VALUISH + ("mfma",) else 1)
    if p.cls == "salu" and ("s", "m0") in p.w and c.cls in ("vm", "ds") and ("s", "m0") in c.r: n = max(n, 1)
    return n

class Asm:
    def __init__(self):
        self.lines = []
        self.hist = []
        self.vm = []
        self.lg = []
        self.smem = set()
        self.condid = 0; self.curcond = None
        self.nlab = 0
        self.auto = True
        self.tick = None; self.tickn = 0
    def raw(self, s): self.lines.append(s)
    def comment(self, s): self.lines.append("    ; " + s)
    def newlabel(self, base="L"):
        self.nlab += 1; return f"{base}_{self.nlab}"
    def label(self, name, pad=0):
        self.lines.append(name + ":")
        if pad: self(f"s_nop {pad - 1}")
    def _younger(self, lst, idx):
        me = lst[idx]
        n = 0
        for o in lst[idx + 1:]:
            if o["cond"] is None or o["cond"] == self.curcond or o["cond"] == me["cond"]: n += 1
        return n
    def _emit_wait(self, vm=None, lg=None):
        if vm is not None: vm = min(vm, 63)
        if lg is not None: lg = min(lg, 15)
        s = "s_waitcnt"
        if vm is not None: s += f" vmcnt({vm})"
        if lg is not None: s += f" lgkmcnt({lg})"
        self._put(Ins(s))
        self._note_wait(vm, lg)
    def _trim(self, lst, n):
        for i in range(len(lst)):
            if self._younger(lst, i) < n: return lst[i:]
        return []
    def _note_wait(self, vm, lg):
        if vm is not None: self.vm = self._trim(self.vm, vm)
        if lg is not None:
            if lg == 0: self.smem = set()
            if not self.smem: self.lg = self._trim(self.lg, lg)
    def _put(self, ins):
        dist = 0; req = 0
        for p in reversed(self.hist):
            n = need(p, ins) - dist
            if n > req: req = n
            dist += p.ws
            if dist > 24: break
        while req > 0:
            k = min(req, 16)
            nop = Ins(f"s_nop {k - 1}")
            self.lines.append("    " + nop.text); self.hist.append(nop); req -= k
        self.lines.append("    " + ins.text)
        self.hist.append(ins)
        if len(self.hist) > 40: self.hist = self.hist[-30:]
    def __call__(self, text):
        if "\n" in text:
            r = None
            for l in text.split("\n"):
                if l.strip(): r = self(l.strip())
            return r
        text = text.strip()
        if text.startswith(";"):
            self.lines.append("    " + text); return None
        ins = Ins(text)
        if ins.mn == "s_waitcnt":
            m = re.search(r"vmcnt\((\d+)\)", text); vm = int(m.group(1)) if m else None
            m = re.search(r"lgkmcnt\((\d+)\)", text); lg = int(m.group(1)) if m else None
            self._put(ins); self._note_wait(vm, lg); return None
        if self.auto:
            touch = ins.r | ins.w
            wv = wl = None
            for i in range(len(self.vm) - 1, -1, -1):
                if self.vm[i]["w"] & touch:
                    wv = self._younger(self.vm, i); break
            for i in range(len(self.lg) - 1, -1, -1):
                if self.lg[i]["w"] & touch:
                    wl = self._younger(self.lg, i); break
            if self.smem & touch: wl = 0
            if wl is not None and self.smem: wl = 0
            if wv is not None or wl is not None:
                self._emit_wait(wv, wl)
        self._put(ins)
        op = None
        if ins.cls == "vm":
            op = dict(w=set(ins.w), cond=self.curcond); self.vm.append(op)
        if ins.cls == "ds":
            op = dict(w=set(ins.w), cond=self.curcond); self.lg.append(op)
        if ins.cls == "smem": self.smem |= ins.w
        if self.tick and self.curcond is None and not ins.mn.startswith(("s_cbranch", "s_branch")):
            self.tickn += {"mfma": ins.passes, "trans": 2, "ds": 2}.get(ins.cls, 1) + (10 if ins.mn == "s_barrier" else 0)
            if self.tickn >= self.tick[0]:
                self.tickn = 0; t = self.tick; self.tick = None; t[1](); self.tick = t
        return op
    def wait_vm(self, op):
        for i, o in enumerate(self.vm):
            if o is op:
                self._emit_wait(vm=self._younger(self.vm, i))
                return
    def wait_regs(self, tok):
        r = regs_of(tok)
        for i in range(len(self.vm) - 1, -1, -1):
            if self.vm[i]["w"] & r:
                self._emit_wait(vm=self._younger(self.vm, i)); return
    def wait_lregs(self, tok):
        r = regs_of(tok)
        for i in range(len(self.lg) - 1, -1, -1):
            if self.lg[i]["w"] & r:
                self._emit_wait(lg=0 if self.smem else self._younger(self.lg, i)); return
    def wait_lg(self, op):
        for i, o in enumerate(self.lg):
            if o is op:
                n = 0 if self.smem else self._younger(self.lg, i)
                self._emit_wait(lg=n); return
    def cond_begin(self):
        self.condid += 1; self.curcond = self.condid
    def cond_end(self): self.curcond = None
    def save(self): return (list(self.hist), list(self.vm), list(self.lg), set(self.smem))
    def restore(self, st): self.hist, self.vm, self.lg, self.smem = list(st[0]), list(st[1]), list(st[2]), set(st[3])
    def reset(self): self.hist, self.vm, self.lg, self.smem = [], [], [], set()
    stamps = False
    stampop = 's_memrealtime'
    nst = 0
    def stamp(self, name=""):
        if not self.stamps: return
        assert self.nst < 6
        self(f"{self.stampop} s[{84+2*self.nst}:{85+2*self.nst}]"); self.nst += 1
    def flush(self, n=None):
        if not self.stamps: return
        self("s_waitcnt lgkmcnt(0)")
        for i in range(self.nst):
            self(f"s_add_u32 m0, s100, {i}")
            self(f"v_writelane_b32 v15, s{84+2*i}, m0")
        self(f"s_add_u32 s100, s100, {n if n is not None else self.nst}")
        self.nst = 0
    def align8(self): self.lines.append("    .p2align 3, , 4")
    def text(self): return "\n".join(self.lines) + "\n"

def vr(base, n=1, k="v"):
    return f"{k}{base}" if n == 1 else f"{k}[{base}:{base + n - 1}]"
def ar(base, n=1): return vr(base, n, "a")
def sr(base, n=1): return vr(base, n, "s")
```

```python
import numpy as np
S, D, F = 2048, 512, 1376
NG = 86
def kappa(h, e): return 8 * (e // 4) + 4 * h + e % 4
def sigma(m): return (m & 16) + 8 * ((m >> 2) & 1) + 4 * ((m >> 3) & 1) + (m & 3)
def s_of_sp(sp):
    T, r = sp // 32, sp % 32
    return 256 * ((T >> 2) & 7) + 32 * (r % 8) + 16 * (T >> 5) + 4 * (T & 3) + r // 8
def freq(p):
    g, i = p // 16, p % 16
    if p == 0: return 256
    if i < 8: return g + 32 * i
    return 32 * (i - 7) - (g if g else 16)
MB = 1 << 20
TSZ = 88 * 1024
HSZ = 64 * TSZ
def hpos(T):
    rt, t = T // 6, T % 6
    if rt == 10: return (62, 63, 31, 30)[t]
    return 3 * rt + 5 - t if t >= 3 else 32 + 3 * rt + t
WTS = 8192 + 384
WS_X = 0; WS_WT = 2 * MB; WS_SS0 = 4 * MB + 0x20000
WS_W1F = 4 * MB + 0x30000
WS_FILL = 7 * MB
WS_R1 = WS_FILL; WS_R3 = WS_R1 + 8192; WS_SS2 = WS_R3 + 8192; WS_H = WS_SS2 + 32768
FILL_SIZE = WS_H - WS_FILL
WS_WDP = 13 * MB
WS_WDF = WS_WDP + 16 * NG * 1024
WS_FLAG = 16 * MB + 0x80000
WS_STAMP = 30 * MB
assert WS_W1F + NG * 32768 <= WS_FILL and WS_H + HSZ <= WS_WDP
```

```python
from asmdsl import *
from maps import *
from regs import *
import sync

V_FU = 216
LDS_ST = 32 * 1040 + 32768
LDS_RO = 69632
import os
NTI = os.environ.get('NTI', 'nt')
RS = 1040
EX = 32 * RS
S_B = 47; S_TY = 48; S_MAT = 49; S_SG = 50
V_LANE = 1
V_F32 = 16; V_M = 24; V_T = 56; V_RAW = 88; V_B = 120; V_ACC = 152; V_PK = 88

def gen_f32(a):
    t = V_T
    a(f"v_and_b32 v{t}, 3, v{V_LANE}")
    a(f"v_bfe_u32 v{t+1}, v{V_LANE}, 3, 2")
    a(f"v_lshl_add_u32 v{t}, v{t+1}, 2, v{t}")
    a(f"v_bfe_u32 v{t+1}, v{V_LANE}, 2, 1")
    a(f"v_cvt_f32_u32 v{t+2}, v{t}")
    a(f"v_mul_f32 v{t+2}, {fhex(1/32)}, v{t+2}")
    a(f"v_cvt_f32_u32 v{t+3}, v{t+1}")
    a(f"v_mul_f32 v{t+3}, {fhex(0.25)}, v{t+3}")
    a(f"v_and_b32 v{t+4}, 31, v{V_LANE}")
    a(f"v_cmp_eq_u32 vcc, 4, v{t+4}")
    a(f"v_lshrrev_b32 v{t+4}, 1, v{V_LANE}")
    a(f"v_and_b32 v{t+4}, 16, v{t+4}")
    a(f"v_cndmask_b32 v{t+2}, v{t+2}, 0.5, vcc")
    a(f"v_cndmask_b32 v{t+3}, v{t+3}, 0, vcc")
    a(f"v_cvt_f32_u32 v{t+4}, v{t+4}")
    a(f"v_fma_f32 v{t+8}, v{t+4}, v{t+2}, v{t+3}")
    for j in range(1, 16): a(f"v_add_f32 v{t+8+j}, v{t+7+j}, v{t+2}")
    for j in range(16): a(f"v_cos_f32 v{t+8+j}, v{t+8+j}")
    a(f"s_mov_b32 s5, {fhex(1/16)}")
    for j in range(16): a(f"v_mul_f32 v{t+8+j}, s5, v{t+8+j}")
    for j in range(8): a(f"v_cvt_pk_bf16_f32 v{V_F32+j}, v{t+8+2*j}, v{t+9+2*j}")

def gen_m(a):
    t = V_T
    a(f"v_bfe_u32 v{t+6}, v{V_LANE}, 1, 3")
    a(f"v_bfe_u32 v{t+7}, v{V_LANE}, 4, 1")
    a(f"v_add_u32 v{t+6}, v{t+6}, v{t+7}")
    a(f"v_cvt_f32_u32 v{t}, v{t+6}")
    a(f"v_mul_f32 v{t}, {fhex(1/16)}, v{t}")
    a(f"v_cvt_f32_u32 v{t+7}, v{t+7}")
    a(f"v_fma_f32 v{t+6}, v{t+7}, -2.0, 1.0")
    a(f"v_mul_f32 v{t+1}, {fhex(1/512)}, v{t+6}")
    a(f"v_lshrrev_b32 v{t+24}, 5, v{V_LANE}")
    a(f"v_cvt_f32_u32 v{t+24}, v{t+24}")
    a(f"v_and_b32 v{t+25}, 1, v{V_LANE}")
    a(f"v_cvt_f32_u32 v{t+25}, v{t+25}")
    a(f"v_fma_f32 v{t+2}, -v{t+6}, v{t+24}, v{t+25}")
    a(f"v_mul_f32 v{t+2}, {fhex(0.25)}, v{t+2}")
    a(f"v_fmamk_f32 v{t+26}, v{t+7}, {fhex(-16/512)}, v{t}")
    a(f"v_mul_f32 v{t+27}, {fhex(0.25)}, v{t+25}")
    a(f"v_cmp_eq_f32 vcc, v{t+7}, v{t+24}")
    a(f"v_mov_b32 v{t+28}, {fhex(2 ** -0.5)}")
    a(f"s_cmp_eq_u32 s{S_TY}, 1"); a(f"s_cselect_b32 s5, 0, {fhex(2 ** -0.5)}")
    a(f"v_mov_b32 v{t+30}, s5")
    a(f"v_cndmask_b32 v{t+5}, 0, 1.0, vcc")
    a("s_mov_b64 vcc, 1")
    a(f"v_cndmask_b32 v{t+26}, v{t+26}, 0.5, vcc")
    a(f"v_cndmask_b32 v{t+5}, v{t+5}, v{t+28}, vcc")
    a("s_mov_b64 vcc, 2")
    a(f"v_cndmask_b32 v{t+27}, v{t+27}, 0, vcc")
    a(f"v_cndmask_b32 v{t+5}, v{t+5}, v{t+30}, vcc")
    a(f"s_lshl_b32 s5, s{S_W}, 2")
    a(f"v_cvt_f32_u32 v{t+29}, s5")
    a(f"v_fma_f32 v{t+3}, v{t+29}, v{t+1}, v{t}")
    a(f"s_cmp_eq_u32 s{S_W}, 0")
    a(f"s_cselect_b64 vcc, -1, 0")
    a(f"v_cndmask_b32 v{t+26}, v{t+3}, v{t+26}, vcc")
    a(f"v_cndmask_b32 v{t+27}, v{t+2}, v{t+27}, vcc")
    a(f"v_cndmask_b32 v{t+5}, 1.0, v{t+5}, vcc")
    for gg in range(4):
        om, ph = (t + 26, t + 27) if gg == 0 else (t + 3, t + 2)
        if gg: a(f"v_add_f32 v{t+3}, v{t+3}, v{t+1}")
        a(f"v_add_f32 v{t+9}, v{ph}, v{om}")
        for j in range(2, 16): a(f"v_add_f32 v{t+8+j}, v{t+7+j}, v{om}")
        a(f"v_cos_f32 v{t+8}, v{ph}")
        for j in range(1, 16): a(f"v_cos_f32 v{t+8+j}, v{t+8+j}")
        if gg == 0:
            for j in range(16): a(f"v_mul_f32 v{t+8+j}, v{t+5}, v{t+8+j}")
        for j in range(8): a(f"v_cvt_pk_bf16_f32 v{V_M+8*gg+j}, v{t+8+2*j}, v{t+9+2*j}")

def tr_addr(a, dst, rowstride, tmp):
    a(f"v_lshrrev_b32 v{tmp}, 5, v{V_LANE}")
    a(f"v_bfe_u32 v{tmp+1}, v{V_LANE}, 2, 2")
    a(f"v_lshl_add_u32 v{tmp}, v{tmp}, 2, v{tmp+1}")
    a(f"v_mul_u32_u24 v{dst}, {rowstride}, v{tmp}")
    a(f"v_and_b32 v{tmp}, 1, v{V_LANE}")
    a(f"v_lshl_add_u32 v{dst}, v{tmp}, 4, v{dst}")
    a(f"v_bfe_u32 v{tmp}, v{V_LANE}, 1, 1")
    a(f"v_lshl_add_u32 v{dst}, v{tmp}, 3, v{dst}")
    a(f"v_bfe_u32 v{tmp}, v{V_LANE}, 4, 1")
    a(f"v_lshl_add_u32 v{dst}, v{tmp}, 5, v{dst}")

def sel3(a, items):
    for d, v1, v3, v2 in items: a(f"s_mov_b32 s{d}, {v1}")
    a(f"s_cmp_eq_u32 s{S_TY}, 1")
    for d, v1, v3, v2 in items: a(f"s_cselect_b32 s{d}, {v3}, s{d}")
    a(f"s_cmp_eq_u32 s{S_TY}, 2")
    for d, v1, v3, v2 in items: a(f"s_cselect_b32 s{d}, {v2}, s{d}")

def pre(a):
    a("s_lshr_b32 s5, s2, 3"); a("s_and_b32 s52, s2, 7")
    a(f"s_mov_b32 s{S_TY}, 0"); a("s_mov_b32 s6, 0"); a("s_mov_b32 s7, 8"); a("s_mov_b32 s56, 64")
    for ty, first, per, lim in ((1, 8, 11, 86), (2, 19, 6, 43), (3, 25, 7, 56)):
        a(f"s_cmp_ge_u32 s5, {first}")
        a(f"s_cselect_b32 s{S_TY}, {ty}, s{S_TY}"); a(f"s_cselect_b32 s6, {first}, s6"); a(f"s_cselect_b32 s7, {per}, s7"); a(f"s_cselect_b32 s56, {lim}, s56")
    a(f"s_mul_i32 s{S_B}, s52, s7"); a(f"s_add_u32 s{S_B}, s{S_B}, s5"); a(f"s_sub_u32 s{S_B}, s{S_B}, s6")
    a("s_add_u32 s6, s5, 39"); a("s_add_u32 s7, s5, 38"); a(f"s_cmp_eq_u32 s{S_TY}, 1"); a("s_cselect_b32 s6, s6, s7")
    a(f"s_cmp_ge_u32 s{S_B}, s56"); a(f"s_cselect_b32 s{S_TY}, 3, s{S_TY}"); a(f"s_cselect_b32 s{S_B}, s6, s{S_B}")
    a(f"s_cmp_ge_u32 s{S_B}, 43"); a(f"s_cselect_b32 s{S_MAT}, 1, 0"); a("s_cselect_b32 s7, 43, 0"); a(f"s_sub_u32 s51, s{S_B}, s7")
    rowbase(a, 56, S_B)
    a(f"s_and_b32 s6, s{S_W}, 2"); a("s_lshl_b32 s6, s6, 10"); a("s_add_u32 s56, s56, s6"); a(f"s_and_b32 s6, s{S_W}, 1"); a("s_lshl_b32 s6, s6, 17"); a("s_add_u32 s56, s56, s6")
    a(f"s_mul_i32 s57, s{S_W}, {4*2752}"); a("s_lshl_b32 s6, s51, 6"); a("s_add_u32 s57, s57, s6")
    a(f"s_lshl_b32 s58, s{S_B}, 15"); a(f"s_lshl_b32 s6, s{S_W}, 13"); a("s_add_u32 s58, s58, s6")
    sel3(a, [(60, "s56", "s57", "s58"), (61, 32768, 256 * 2752, 1024), (62, 65536, 2752, 2048), (63, 1024, 2 * 2752, 4096), (5, 64, 16 * 2752, 64)])
    a(f"v_lshrrev_b32 v4, 2, v{V_LANE}"); a("v_mul_u32_u24 v4, s5, v4")
    a(f"v_and_b32 v5, 3, v{V_LANE}"); a("v_lshl_add_u32 v4, v5, 4, v4")
    a(f"s_mul_i32 s59, s{S_W}, {8*RS}")
    a("s_bitcmp1_b32 s51, 0"); a("s_cselect_b32 s6, s63, 0"); a(f"s_cselect_b32 s7, {4*RS}, 0")
    a("s_add_u32 s60, s60, s6"); a("s_lshl_b32 s6, s6, 1"); a("s_sub_u32 s63, s63, s6")
    a("s_add_u32 s57, s59, s7"); a("s_sub_u32 s58, s59, s7")
    a("s_add_u32 s64, s60, s61"); a("s_add_u32 s65, s60, s62"); a("s_add_u32 s66, s64, s62")

def dma(a):
    a(f"s_cmp_eq_u32 s{S_MAT}, 0"); a(f"s_cselect_b64 s[6:7], s[{K_WG}:{K_WG+1}], s[{K_WU}:{K_WU+1}]")
    a(f"s_cmp_eq_u32 s{S_TY}, 1"); a(f"s_cselect_b64 s[8:9], s[6:7], s[{K_X}:{K_X+1}]")
    a(f"s_cmp_eq_u32 s{S_TY}, 2"); a(f"s_cselect_b64 s[8:9], s[{K_WD}:{K_WD+1}], s[8:9]")
    a(f"s_cmp_eq_u32 s{S_TY}, 0"); a(f"s_mov_b32 s10, {F*D*2}"); a(f"s_cselect_b32 s10, {S*D*2}, s10"); a("s_mov_b32 s11, 0x20000")
    so = [60, 64, 65, 66]
    ops = []
    for i in range(8):
        a(f"s_add_u32 m0, s{57 + i//4}, {i*RS}")
        if i >= 4: a(f"s_add_u32 s{so[i%4]}, s{so[i%4]}, s63")
        ops.append(a(f"buffer_load_dwordx4 v4, s[8:11], s{so[i%4]} offen {NTI} lds"))
    return ops[-1]

def nonce(a):
    a("s_waitcnt lgkmcnt(0)"); a(f"s_add_u32 s{S_NONCE}, s{S_NONCE}, 16")

def body(a, dma_op, done, idle):
    gen_f32(a)
    gen_m(a)
    a(f"s_lshr_b32 s5, s{S_W}, 1"); a("s_lshl_b32 s5, s5, 10")
    a(f"s_and_b32 s6, s{S_W}, 1"); a("s_lshl_b32 s6, s6, 3")
    a("s_add_u32 s5, s5, s6"); a(f"s_add_u32 s5, s5, {EX}")
    a(f"v_lshl_add_u32 v2, v{V_LANE}, 4, s5")
    a(f"s_lshl_b32 s5, s{S_W}, 13"); a(f"s_add_u32 s5, s5, {EX}")
    a(f"v_lshl_add_u32 v3, v{V_LANE}, 4, s5")
    a(f"s_lshl_b32 s5, s51, 16")
    a(f"s_lshl_b32 s57, s{S_W}, 13"); a(f"s_lshl_b32 s56, s{S_B}, 15"); a("s_add_u32 s56, s56, s57")
    a("s_add_u32 s57, s57, s5"); a(f"s_lshl_b32 s6, s{S_MAT}, 8"); a("s_add_u32 s57, s57, s6")
    a(f"s_mul_i32 s58, s{S_W}, {4*NG*1024}"); a(f"s_lshl_b32 s6, s{S_B}, 11"); a("s_add_u32 s58, s58, s6")
    sel3(a, [(60, "s56", "s57", "s58"), (61, 2048, 2048, NG * 1024), (63, 256, 32768, 256),
             (5, WS_X, WS_W1F, WS_WDP), (14, S * D * 2, NG * 32768, 16 * NG * 1024)])
    a(f"s_add_u32 s12, s{K_WS}, s5"); a(f"s_addc_u32 s13, s{K_WS+1}, 0"); a("s_mov_b32 s15, 0x20000")
    a(f"v_and_b32 v6, 47, v{V_LANE}"); a("v_lshlrev_b32 v6, 4, v6")
    a(f"v_bfe_u32 v7, v{V_LANE}, 4, 1"); a("v_mad_u32_u24 v6, v7, s63, v6")
    a(f"s_mul_i32 s5, s{S_W}, 10240"); a(f"s_add_u32 s5, s5, {LDS_RO}")
    a(f"v_and_b32 v11, 31, v{V_LANE}"); a("v_mul_u32_u24 v11, 80, v11"); a(f"v_lshrrev_b32 v7, 5, v{V_LANE}"); a("v_lshl_add_u32 v11, v7, 4, v11"); a("v_add_u32 v11, s5, v11")
    a(f"v_lshrrev_b32 v12, 2, v{V_LANE}"); a("v_mul_u32_u24 v12, 80, v12"); a(f"v_and_b32 v7, 3, v{V_LANE}"); a("v_lshl_add_u32 v12, v7, 4, v12"); a("v_add_u32 v12, s5, v12")
    a(f"v_and_b32 v13, 19, v{V_LANE}"); a(f"v_bfe_u32 v7, v{V_LANE}, 3, 1"); a("v_lshl_add_u32 v13, v7, 2, v13")
    a(f"v_bfe_u32 v7, v{V_LANE}, 2, 1"); a("v_lshl_add_u32 v13, v7, 3, v13"); a("v_lshlrev_b32 v13, 1, v13")
    a("v_lshrrev_b32 v7, 5, v0"); a("v_lshl_add_u32 v13, v7, 12, v13")
    a(f"v_and_b32 v7, 1, v{V_LANE}"); a("v_lshl_add_u32 v13, v7, 20, v13")
    srd(a, 68, K_WS, 8192, WS_SS0); a(f"s_lshl_b32 s62, s{S_B}, 6")
    idle()
    a(f"v_and_b32 v10, 31, v{V_LANE}"); a(f"v_lshlrev_b32 v10, 6, v10"); a(f"v_add_u32 v10, {LDS_ST}, v10")
    a(f"v_lshrrev_b32 v9, 5, v0"); a("v_lshl_add_u32 v9, v9, 3, v10")
    l3, lj = a.newlabel("p1t3"), a.newlabel("p1j")
    t = V_T
    a(f"v_mov_b32 v{t}, 0"); a(f"v_mov_b32 v{t+2}, 0")
    a(f"s_cmp_eq_u32 s{S_TY}, 1"); a(f"s_cbranch_scc1 {l3}")
    st = a.save()
    def s1(ks, j):
        c = "0" if ks == 0 else vr(V_ACC + 16 * j, 16)
        a(f"v_mfma_f32_32x32x16_bf16 {vr(V_ACC+16*j,16)}, {vr(V_F32+4*ks,4)}, {vr(V_B+8*j+4*ks,4)}, {c}")
    a(f"v_and_b32 v5, 31, v{V_LANE}"); a(f"v_mul_u32_u24 v5, {RS}, v5")
    a(f"v_lshrrev_b32 v8, 5, v{V_LANE}"); a("v_lshl_add_u32 v5, v8, 9, v5")
    a(f"s_lshl_b32 s5, s{S_W}, 3"); a("v_add_u32 v5, s5, v5")
    a("s_mov_b32 s6, 0x05040100"); a("s_mov_b32 s7, 0x07060302")
    a.stamp(); a.wait_vm(dma_op); a("s_barrier"); a.stamp()
    for j in range(16): a(f"ds_read_b64 {vr(V_RAW+2*j,2)}, v5 offset:{j*32}")
    def perm(ks, j):
        for i in range(4):
            ev, od = V_RAW + 2 * (8 * ks + 2 * i), V_RAW + 2 * (8 * ks + 2 * i + 1)
            a(f"v_perm_b32 v{V_B+8*j+4*ks+i}, v{od + j//2}, v{ev + j//2}, s{6 + j%2}")
    seq = [(ks, j) for ks in range(2) for j in range(4)]
    perm(*seq[0])
    dots = list(range(32))
    for n in range(8):
        if n < 7: perm(*seq[n + 1])
        s1(*seq[n])
        for _ in range(2 if n < 7 else 18):
            i = dots.pop(0); a(f"v_dot2c_f32_bf16 v{t + 2*(i%2)}, v{V_RAW+i}, v{V_RAW+i}")
    a(f"s_branch {lj}")
    a.restore(st); a.nst = max(0, a.nst - 2)
    a.label(l3)
    a(f"v_lshrrev_b32 v5, 5, v{V_LANE}"); a(f"v_mul_u32_u24 v5, {RS}, v5")
    a(f"v_bfe_u32 v8, v{V_LANE}, 2, 2"); a("v_lshl_add_u32 v5, v8, 6, v5")
    a(f"v_bfe_u32 v8, v{V_LANE}, 4, 1"); a("v_lshl_add_u32 v5, v8, 5, v5")
    a(f"v_and_b32 v8, 3, v{V_LANE}"); a("v_lshl_add_u32 v5, v8, 3, v5")
    a("v_add_u32 v5, s59, v5")
    a.stamp(); a.wait_vm(dma_op); a.stamp()
    for ks, j in seq:
        for rho in range(2):
            a(f"ds_read_b64_tr_b16 {vr(V_B+8*j+4*ks+2*rho,2)}, v5 offset:{2*j*RS + (8*ks+4*rho)*64}")
    for ks, j in seq: s1(ks, j)
    a.label(lj, 3)
    for g in range(16): a(f"v_cvt_pk_bf16_f32 v{V_PK+2*g}, v{V_ACC+g}, v{V_ACC+16+g}")
    a(f"v_add_f32 v{t}, v{t}, v{t+2}"); a(f"v_add_f32 v{t+1}, v{V_ACC}, v{V_ACC+16}")
    for g in range(16):
        a(f"v_cvt_pk_bf16_f32 v{V_PK+2*g+1}, v{V_ACC+32+g}, v{V_ACC+48+g}")
        a(f"ds_write_b64 v2, {vr(V_PK+2*g,2)} offset:{g*2048}")
    a(f"v_add_f32 v{t+2}, v{V_ACC+32}, v{V_ACC+48}"); a(f"v_add_f32 v{t+1}, v{t+1}, v{t+2}")
    a(f"ds_write_b64 v9, {vr(t,2)}")
    a("s_waitcnt lgkmcnt(0)"); a("s_barrier")
    a.stamp()
    for i in range(8): a(f"ds_read_b128 {vr(V_B+4*i,4)}, v3 offset:{i*1024}")
    for i in range(4): a(f"ds_read_b128 {vr(t+4*i,4)}, v10 offset:{i*16}")
    def pack(gg):
        for j in range(8): a(f"v_cvt_pk_bf16_f32 v{V_PK+8*gg+j}, v{V_ACC+16*gg+2*j}, v{V_ACC+16*gg+2*j+1}")
    def store(gg, R=V_PK):
        a(f"buffer_store_dwordx4 {vr(R+8*gg,4)}, v6, s[12:15], s60 offen {ST}")
        a(f"buffer_store_dwordx4 {vr(R+8*gg+4,4)}, v6, s[12:15], s60 offen offset:1024 {ST}")
        if gg < 3: a("s_add_u32 s60, s60, s61")
    def stage2(y_is_a):
        for gg in range(4):
            for ks in range(2):
                c = "0" if ks == 0 else vr(V_ACC + 16 * gg, 16)
                y = vr(V_B + 8 * gg + 4 * ks, 4); m = vr(V_M + 8 * gg + 4 * ks, 4)
                A, B = (y, m) if y_is_a else (m, y)
                a(f"v_mfma_f32_32x32x16_bf16 {vr(V_ACC+16*gg,16)}, {A}, {B}, {c}")
    l3, l23, l2 = a.newlabel("p1t3"), a.newlabel("p1t23"), a.newlabel("p1t2")
    a(f"s_cmp_eq_u32 s{S_TY}, 1"); a(f"s_cbranch_scc1 {l3}")
    st0 = a.save()
    stage2(True)
    a(f"s_cmp_eq_u32 s{S_TY}, 2"); a(f"s_cbranch_scc1 {l23}")
    st1 = a.save()
    for i in range(4): a(f"v_add_f32 v{t+4*i}, v{t+4*i}, v{t+4*i+2}")
    a(f"v_pk_add_f32 {vr(t,2)}, {vr(t,2)}, {vr(t+4,2)}"); a(f"v_pk_add_f32 {vr(t+8,2)}, {vr(t+8,2)}, {vr(t+12,2)}")
    for gg in range(4):
        pack(gg)
        for k in range(2):
            a(f"v_and_b32 v{V_PK+8*gg+4*k}, -2, v{V_PK+8*gg+4*k}")
            a(f"ds_write_b128 v11, {vr(V_PK+8*gg+4*k,4)} offset:{2560*gg + 32*k}")
        for k in range(2): a(f"ds_read_b128 {vr(V_B+8*gg+4*k,4)}, v12 offset:{2560*gg + 1280*k}")
        if gg: store(gg - 1, V_B)
    a(f"v_pk_add_f32 {vr(t,2)}, {vr(t,2)}, {vr(t+8,2)}")
    a(f"v_mul_f32 v{t+1}, v{t+1}, v{t+1}")
    a(f"v_fma_f32 v{t}, v{t+1}, -0.5, v{t}")
    a(f"v_max_f32 v{t}, 0, v{t}")
    a(f"v_cvt_pk_bf16_f32 v{t+1}, v{t}, v{t}"); a(f"v_lshlrev_b32 v{t+2}, 16, v{t+1}"); a(f"v_sub_f32 v{t+2}, v{t}, v{t+2}")
    a(f"v_cvt_pk_bf16_f32 v{t+2}, v{t+2}, v{t+2}")
    a("s_mov_b32 vcc_lo, 0"); a("s_mov_b32 vcc_hi, -1"); a(f"v_cndmask_b32 v{t+1}, v{t+1}, v{t+2}, vcc")
    a(f"v_mov_b32_dpp v{t+2}, v{t+1} quad_perm:[1,1,3,3] row_mask:0xf bank_mask:0xf")
    a(f"v_bfi_b32 v{t+1}, s{S_HI}, v{t+2}, v{t+1}")
    a(f"buffer_store_dword v{t+1}, v13, s[68:71], s62 offen {ST}")
    store(3, V_B)
    a(f"s_branch {done}")
    a.restore(st0); a.label(l3)
    stage2(False)
    a.label(l23)
    for gg in range(4): pack(gg); store(gg)
    a(f"s_branch {done}")

def relayout(a, R, t):
    tr_addr(a, t, RS, t + 1)
    a(f"s_lshl_b32 s5, s{S_W}, 8"); a(f"v_add_u32 v{t}, s5, v{t}"); a(f"v_lshlrev_b32 v{t+3}, 4, v{V_LANE}")
    for q in range(4):
        for aa in range(2):
            for rho in range(2):
                a(f"ds_read_b64_tr_b16 {vr(R+8*q+4*aa+2*rho,2)}, v{t} offset:{(16*aa+8*rho)*RS + 64*q}")
    srd(a, 56, K_WS, 16 * 118 * 1024, WS_WDF)
    a(f"s_mul_i32 s5, s{S_W}, {4*118*1024}"); a(f"s_lshl_b32 s6, s{S_B}, 11"); a("s_add_u32 s5, s5, s6")
    for q in range(4):
        for aa in range(2):
            a(f"buffer_store_dwordx4 {vr(R+8*q+4*aa,4)}, v{t+3}, s[56:59], s5 offen offset:{aa*1024} {ST}")
        if q < 3: a(f"s_add_u32 s5, s5, {118*1024}")

def t4(a, mid, done):
    OUT = 16; AD = 96; BS = 1056; US = 16 * BS; RO = 3 * US
    srd(a, 8, K_WR, S * 257 * 2); srd(a, 12, K_WI, S * 257 * 2)
    a(f"v_lshrrev_b32 v2, 5, v{V_LANE}"); a(f"v_mul_u32_u24 v2, 514, v2"); a(f"v_and_b32 v3, 31, v{V_LANE}"); a("v_lshl_add_u32 v2, v3, 4, v2")
    a(f"s_mul_i32 s63, s{S_W}, {64*514}"); a("s_add_u32 s63, s63, 2")
    a(f"s_mul_i32 s64, s{S_W}, {2*BS}")
    ops = []
    for k in range(3):
        if k < 2: a(f"s_lshl_b32 s57, s{S_B}, 1"); a(f"s_add_u32 s57, s57, {k}")
        else: a(f"s_add_u32 s57, s{S_B}, 65")
        if k != 1:
            a("s_lshr_b32 s5, s57, 6"); a("s_lshl_b32 s5, s5, 5"); a("s_bfe_u32 s6, s57, 0x10005"); a("s_lshl_b32 s6, s6, 2"); a("s_add_u32 s5, s5, s6")
            a("s_and_b32 s6, s57, 3"); a("s_lshl_b32 s6, s6, 3"); a("s_add_u32 s5, s5, s6")
            a("s_bfe_u32 s6, s57, 0x30002"); a("s_lshl_b32 s6, s6, 8"); a("s_add_u32 s5, s5, s6")
            a("s_mul_i32 s5, s5, 514"); a("s_add_u32 s5, s5, s63")
        else: a(f"s_add_u32 s5, s5, {6*514}")
        a(f"s_lshl_b32 s{60+k}, s57, 6")
        if k == 2: a(f"s_cmp_lt_u32 s{S_B}, 61"); a(f"s_cselect_b32 s5, {OOB}, s5"); a(f"s_cselect_b32 s{60+k}, {OOB}, s{60+k}")
        for gp in range(2):
            if gp: a(f"s_add_u32 s5, s5, {2*514}")
            for mat in range(2):
                a(f"s_add_u32 m0, s64, {k*US + gp*8*BS + mat*BS}")
                op = a(f"buffer_load_dwordx4 v2, s[{8+4*mat}:{11+4*mat}], s5 offen {NTI} lds")
        ops.append(op)
    if a.stamps: a("s_memrealtime s[88:89]")
    a(f"v_lshrrev_b32 v3, 3, v{V_LANE}"); a(f"s_lshl_b32 s5, s{S_W}, 6"); a("s_add_u32 s5, s5, 1"); a("v_add_u32 v3, s5, v3")
    a(f"v_and_b32 v4, 7, v{V_LANE}"); a("v_lshlrev_b32 v4, 4, v4"); a(f"s_movk_i32 s7, {WTS}")
    for ct in range(8):
        a(f"v_add_u32 v5, {8*ct}, v3")
        a("v_and_b32 v6, 31, v5"); a("v_sub_u32 v7, 32, v6"); a("v_min_u32 v6, v6, v7"); a("v_and_b32 v6, 15, v6")
        a("v_bfe_u32 v7, v5, 5, 3"); a("v_lshl_add_u32 v6, v6, 4, v7"); a("v_bfe_u32 v7, v5, 4, 1"); a("v_lshl_add_u32 v6, v7, 3, v6")
        a(f"v_mad_u32_u24 v{AD+ct}, v6, s7, v4")
    a(f"v_lshrrev_b32 v5, 5, v{V_LANE}"); a(f"v_mul_u32_u24 v5, {8*BS}, v5"); a(f"v_bfe_u32 v6, v{V_LANE}, 4, 1"); a("v_lshl_add_u32 v5, v6, 9, v5")
    a(f"v_bfe_u32 v6, v{V_LANE}, 2, 2"); a(f"s_movk_i32 s5, {BS}"); a("v_mad_u32_u24 v5, v6, s5, v5")
    a(f"v_and_b32 v6, 3, v{V_LANE}"); a("v_lshl_add_u32 v5, v6, 3, v5")
    a(f"s_lshl_b32 s5, s{S_W}, 7"); a("v_add_u32 v5, s5, v5")
    a(f"s_mul_i32 s5, s{S_W}, {64*144}"); a(f"s_add_u32 s5, s5, {LDS_RO}")
    a(f"v_and_b32 v6, 15, v{V_LANE}"); a("v_mul_u32_u24 v6, 144, v6"); a(f"v_and_b32 v7, 48, v{V_LANE}"); a("v_add3_u32 v6, v6, v7, s5")
    a(f"v_lshrrev_b32 v7, 3, v{V_LANE}"); a("v_mul_u32_u24 v7, 144, v7"); a("v_add3_u32 v7, v7, v4, s5")
    mid()
    srd(a, 8, K_WS, 256 * WTS, WS_WT)
    def trs(k, o):
        for ct in range(4):
            for rho in range(2): a(f"ds_read_b64_tr_b16 {vr(OUT+16*o+4*ct+2*rho,2)}, v5 offset:{k*US + rho*4*BS + ct*32}")
    def wrs(o):
        for ct in range(4): a(f"ds_write_b128 v6, {vr(OUT+16*o+4*ct,4)} offset:{2304*ct + 64*o}")
    def outs(so):
        for ct in range(8): a(f"ds_read_b128 {vr(OUT+32+4*ct,4)}, v7 offset:{1152*ct}")
        for ct in range(8): a(f"buffer_store_dwordx4 {vr(OUT+32+4*ct,4)}, v{AD+ct}, s[8:11], s{so} offen {ST}")
    a.wait_vm(ops[1]); a("s_barrier")
    if a.stamps: a("s_memrealtime s[90:91]")
    trs(0, 0); trs(1, 1); wrs(0); wrs(1); outs(60)
    if a.stamps: a("s_memrealtime s[92:93]")
    a(f"s_cmp_lt_u32 s{S_B}, 61"); a(f"s_cbranch_scc1 {done}")
    a.wait_vm(ops[2]); a("s_barrier")
    trs(2, 0); wrs(0)
    a("s_mov_b32 exec_lo, 0x0f0f0f0f"); a("s_mov_b32 exec_hi, 0x0f0f0f0f")
    outs(62)
    a("s_mov_b64 exec, -1")

def t5(a, b):
    d, hh, l16, c0, c1 = b, b + 1, b + 2, b + 3, b + 4
    PK = b + 8; V = b + 16
    a(f"s_lshr_b32 s51, s{S_B}, 1"); a(f"s_and_b32 s6, s{S_B}, 1"); a("s_lshl_b32 s6, s6, 2"); a(f"s_add_u32 s6, s6, s{S_W}"); a("s_lshl_b32 s6, s6, 1")
    srd(a, 12, K_WS, 16 * 118 * 1024, WS_WDF)
    a(f"v_and_b32 v{d}, 19, v{V_LANE}"); a(f"v_bfe_u32 v{hh}, v{V_LANE}, 3, 1"); a(f"v_lshl_add_u32 v{d}, v{hh}, 2, v{d}")
    a(f"v_bfe_u32 v{hh}, v{V_LANE}, 2, 1"); a(f"v_lshl_add_u32 v{d}, v{hh}, 3, v{d}")
    a("s_lshl_b32 s5, s51, 5"); a(f"v_add_u32 v{d}, s5, v{d}")
    a(f"v_lshrrev_b32 v{hh}, 5, v{V_LANE}"); a(f"v_lshlrev_b32 v{hh}, 6, v{hh}")
    a(f"v_lshlrev_b32 v{l16}, 4, v{V_LANE}")
    a(f"s_mul_i32 s5, s51, {118*1024}"); a("s_lshl_b32 s7, s6, 11"); a("s_add_u32 s5, s5, s7"); a(f"s_add_u32 s5, s5, {86*1024}")
    for rep in range(2):
        a("s_cmp_eq_u32 s6, 0"); a("s_cselect_b32 s7, 16, s6"); a("s_sub_u32 s7, 32, s7")
        for aa in range(2):
            for j in range(4):
                t = V + 8 * aa + 2 * j
                a(f"s_add_u32 s56, s{6 + aa}, {32 * (4 * (j // 2) + j % 2)}")
                a(f"v_add_u32 v{t}, s56, v{hh}")
                a(f"v_mul_u32_u24 v{t}, v{t}, v{d}")
                a(f"v_and_b32 v{t}, 511, v{t}")
                a(f"v_cvt_f32_u32 v{t}, v{t}")
                a(f"v_mul_f32 v{t}, {fhex(1/512)}, v{t}")
                a(f"v_sin_f32 v{t+1}, v{t}")
                a(f"v_cos_f32 v{t}, v{t}")
                a(f"v_mul_f32 v{t+1}, {fhex(-1/16)}, v{t+1}")
                a(f"v_mul_f32 v{t}, {fhex(1/16)}, v{t}")
        a("s_cmp_eq_u32 s6, 0"); a("s_cselect_b32 vcc_lo, -1, 0"); a("s_mov_b32 vcc_hi, 0")
        a(f"v_mov_b32 v{c0}, {fhex(1/16/2**0.5)}")
        a(f"v_lshlrev_b32 v{c1}, 31, v{d}"); a(f"v_xor_b32 v{c1}, v{c1}, v{c0}")
        a(f"v_cndmask_b32 v{V}, v{V}, v{c1}, vcc"); a(f"v_cndmask_b32 v{V+1}, v{V+1}, v{c0}, vcc")
        for j in range(8): a(f"v_cvt_pk_bf16_f32 v{PK+j}, v{V+2*j}, v{V+1+2*j}")
        a(f"buffer_store_dwordx4 {vr(PK,4)}, v{l16}, s[12:15], s5 offen {ST}")
        a(f"buffer_store_dwordx4 {vr(PK+4,4)}, v{l16}, s[12:15], s5 offen offset:1024 {ST}")
        a("s_add_u32 s5, s5, 2048"); a("s_add_u32 s6, s6, 1")
```

```python
from asmdsl import *
from maps import *
from regs import *
import sync
LDS_Z = 114688
LDS_C = LDS_Z + 8192
LDS_F = LDS_C + 8192
FO = LDS_F - LDS_Z
L = 1
V_XO = 8; V_SO = 9; V_L16 = 10; V_AD = 11; V_CR = 12; V_WO = 13; V_CK = 14
V_IN = 16; V_WF = 24
V_CS = 32; V_SN = 40; V_NS = 48
V_C32 = 56; V_S32 = 64; V_N32 = 72
V_T1C = 80; V_T1S = 88; V_T2C = 96; V_T2S = 104
V_A = 112
V_T = 128
V_SEL = 144
V_PL = 152
V_RF = 160
V_Z = 176
PREG = [V_CS + 4 * i for i in range(6)] + [V_T1C + 4 * i for i in range(4)] + [V_SEL, V_SEL + 4]

def mf(a, d, A, B, first):
    a(f"v_mfma_f32_16x16x32_bf16 {vr(d,4)}, {vr(A,4)}, {vr(B,4)}, {'0' if first else vr(d,4)}")

def task(a):
    a(f"s_and_b32 s5, s2, 7"); a("s_lshl_b32 s5, s5, 5"); a(f"s_lshr_b32 s{S_P}, s2, 3"); a(f"s_add_u32 s{S_P}, s{S_P}, s5")
    a(f"s_lshr_b32 s5, s{S_W}, 1"); a("s_lshl_b32 s5, s5, 5"); a(f"s_and_b32 s6, s{S_W}, 1"); a("s_lshl_b32 s6, s6, 2"); a(f"s_add_u32 s{S_KB}, s5, s6")

def addrs(a, layer):
    a(f"v_and_b32 v2, 15, v{L}"); a(f"v_lshrrev_b32 v3, 4, v{L}")
    a(f"v_lshlrev_b32 v{V_SO}, 4, v{L}"); a(f"v_add_u32 v{V_L16}, {LDS_Z}, v{V_SO}")
    a(f"v_lshrrev_b32 v{V_XO}, 2, v{L}"); a(f"v_lshlrev_b32 v{V_XO}, 15, v{V_XO}"); a(f"v_and_or_b32 v{V_XO}, v{V_SO}, 48, v{V_XO}")
    a(f"s_and_b32 s6, s{S_W}, 1"); a(f"s_lshr_b32 s7, s{S_W}, 1"); a("s_lshl_b32 s7, s7, 10")
    a("s_lshl_b32 s66, s6, 11"); a("s_add_u32 s66, s66, s7")
    a(f"s_lshl_b32 s65, s{S_P}, 7"); a("s_lshl_b32 s6, s66, 9"); a("s_add_u32 s65, s65, s6")
    a(f"s_mul_i32 s67, s{S_P}, {WTS}"); a(f"s_lshl_b32 s6, s{S_W}, 11"); a("s_add_u32 s67, s67, s6")
    srd(a, 8, K_WS, S * D * 2, WS_X)
    srd(a, 12, K_WS, 32768, (WS_SS0, WS_SS2)[layer])
    srd(a, 68, K_WS, 256 * WTS, WS_WT)

def loads(a, layer):
    a(f"buffer_load_dwordx4 {vr(V_IN,4)}, v{V_XO}, s[8:11], s65 offen {LD}")
    a(f"buffer_load_dwordx4 {vr(V_IN+4,4)}, v{V_XO}, s[8:11], s65 offen offset:64 {LD}")
    for i in range((2, 8)[layer]):
        if i: a(f"s_add_u32 s7, s66, {4096*i}")
        a(f"buffer_load_dwordx4 {vr(V_Z+4*i,4)}, v{V_SO}, s[12:15], {'s7' if i else 's66'} offen {LD}")
def load_filter(a):
    a(f"buffer_load_dwordx4 {vr(V_WF,4)}, v{V_SO}, s[68:71], s67 offen {LD}")
    a(f"buffer_load_dwordx4 {vr(V_WF+4,4)}, v{V_SO}, s[68:71], s67 offen offset:1024 {LD}")

def idx(a):
    a(f"v_lshrrev_b32 v4, 2, v2"); a(f"v_and_b32 v5, 3, v2"); a(f"v_lshl_add_u32 v4, v4, 3, v5"); a(f"v_add_u32 v4, s{S_KB}, v4")
    a("v_cvt_f32_u32 v4, v4"); a("v_cvt_f32_u32 v5, v3"); a("v_cvt_f32_u32 v6, v2"); a("v_mul_f32 v5, 4.0, v5")
def reload(a):
    a(f"s_lshl_b32 s5, s{S_W}, 11"); a(f"v_add_u32 v7, s5, v{V_L16}")
    for i in range(6): a(f"ds_read_b128 {vr(V_CS+4*i,4)}, v7 offset:{FO + (i//2)*8192 + (i%2)*1024}")
    for i in range(6): a(f"ds_read_b128 {vr(V_C32+4*i,4)}, v{V_L16} offset:{FO + 24576 + i*1024}")
def tables1(a):
    X = V_A; u = V_RF
    a(f"v_mul_f32 v{u}, {fhex(1/64)}, v4")
    a(f"v_mul_f32 v{X}, v5, v{u}"); a(f"v_add_f32 v{X}, v{X}, v{X}")
    a(f"v_fmamk_f32 v{X+8}, v{u}, {fhex(32)}, v{X}")
    for j in range(1, 8):
        a(f"v_add_f32 v{X+j}, v{X+j-1}, v{u}"); a(f"v_add_f32 v{X+8+j}, v{X+7+j}, v{u}")
    for j in range(16): a(f"v_sin_f32 v{X+16+j}, v{X+j}")
    for j in range(16): a(f"v_cos_f32 v{X+j}, v{X+j}")
    for j in range(8): a(f"v_cvt_pk_bf16_f32 v{V_SN+j}, v{X+16+2*j}, v{X+17+2*j}")
    for j in range(8): a(f"v_cvt_pk_bf16_f32 v{V_CS+j}, v{X+2*j}, v{X+1+2*j}")
    a("s_mov_b32 s72, 0x80008000")
    for j in range(8): a(f"v_xor_b32 v{V_NS+j}, s72, v{V_SN+j}")
    a(f"s_lshl_b32 s5, s{S_W}, 11"); a(f"v_add_u32 v7, s5, v{V_L16}")
    for kind, base in enumerate((V_CS, V_SN, V_NS)):
        for aa in range(2):
            a(f"ds_write_b128 v7, {vr(base+4*aa,4)} offset:{FO + kind*8192 + aa*1024}")

def seq8(a, dst, om):
    a(f"v_fmamk_f32 v{dst+4}, v{om}, {fhex(16)}, v{dst}")
    for j in (1, 2, 3):
        a(f"v_add_f32 v{dst+j}, v{dst+j-1}, v{om}"); a(f"v_add_f32 v{dst+4+j}, v{dst+3+j}, v{om}")

def tables2(a):
    X = V_A; u = V_RF
    for t2 in range(2):
        if t2 == 0: a(f"v_mul_f32 v{u}, {fhex(1/32)}, v6")
        else: a(f"v_add_f32 v{u}, 0.5, v{u}")
        a(f"v_mul_f32 v{X+8*t2}, v5, v{u}")
        seq8(a, X + 8 * t2, u)
    for j in range(16): a(f"v_sin_f32 v{X+16+j}, v{X+j}")
    for j in range(16): a(f"v_cos_f32 v{X+j}, v{X+j}")
    for j in range(8): a(f"v_cvt_pk_bf16_f32 v{V_S32+j}, v{X+16+2*j}, v{X+17+2*j}")
    for j in range(8): a(f"v_cvt_pk_bf16_f32 v{V_C32+j}, v{X+2*j}, v{X+1+2*j}")
    for j in range(8): a(f"v_xor_b32 v{V_N32+j}, s72, v{V_S32+j}")
    for i in range(6): a(f"ds_write_b128 v{V_L16}, {vr(V_C32+4*i,4)} offset:{FO + 24576 + i*1024}")
def tables3(a):
    u = V_RF
    a(f"s_mov_b32 s5, {fhex(1/2048)}")
    a(f"v_mul_f32 v{u}, s5, v4"); a(f"v_mul_f32 v{V_T1C}, v5, v{u}")
    seq8(a, V_T1C, u)
    for e in range(8): a(f"v_sin_f32 v{V_T1S+e}, v{V_T1C+e}")
    for e in range(8): a(f"v_cos_f32 v{V_T1C+e}, v{V_T1C+e}")
    a(f"v_lshl_add_u32 v{u+2}, v3, 3, s{S_KB}"); a(f"v_cvt_f32_u32 v{u+2}, v{u+2}")
    a(f"v_mul_f32 v{u}, s5, v6"); a(f"v_add_f32 v{u+1}, {fhex(16/2048)}, v{u}")
    for tt in range(2): a(f"v_mul_f32 v{V_T2C+4*tt}, v{u+2}, v{u+tt}")
    for r in range(1, 4):
        for tt in range(2): a(f"v_add_f32 v{V_T2C+4*tt+r}, v{V_T2C+4*tt+r-1}, v{u+tt}")
    for e in range(8): a(f"v_sin_f32 v{V_T2S+e}, v{V_T2C+e}")
    for e in range(8): a(f"v_cos_f32 v{V_T2C+e}, v{V_T2C+e}")
    a(f"v_and_b32 v{u}, 1, v2"); a(f"v_lshlrev_b32 v{u}, 4, v{u}"); a(f"v_mov_b32 v{u+1}, 0x3f80"); a(f"v_lshlrev_b32 v{u}, v{u}, v{u+1}")
    a(f"v_lshrrev_b32 v{u+1}, 1, v2"); a(f"v_lshlrev_b32 v{u+2}, 1, v3")
    a(f"v_cmp_eq_u32 vcc, v{u+1}, v{u+2}"); a(f"v_add_u32 v{u+2}, 1, v{u+2}")
    for i in range(2, 6): a(f"v_mov_b32 v{V_SEL+i}, 0")
    a(f"v_cndmask_b32 v{V_SEL}, 0, v{u}, vcc"); a(f"v_cndmask_b32 v{V_SEL+6}, 0, v{u}, vcc")
    a(f"v_cmp_eq_u32 vcc, v{u+1}, v{u+2}")
    a(f"s_and_b32 s6, s{S_W}, 1"); a(f"s_lshr_b32 s7, s{S_W}, 1")
    a(f"v_cndmask_b32 v{V_SEL+1}, 0, v{u}, vcc"); a(f"v_cndmask_b32 v{V_SEL+7}, 0, v{u}, vcc")
    a("s_lshl_b32 s5, s6, 2"); a("s_add_u32 s5, s5, s7"); a("s_lshl_b32 s5, s5, 10"); a(f"v_add_u32 v7, s5, v{V_L16}")
    a("s_lshl_b32 s5, s7, 7"); a("s_add_u32 s5, s5, s6"); a("s_lshl_b32 s5, s5, 3"); a(f"v_add_u32 v{V_AD}, s5, v{V_L16}")
    a("s_lshl_b32 s5, s6, 12"); a(f"v_add_u32 v{V_CR}, s5, v{V_L16}")
    a("s_lshl_b32 s5, s7, 12"); a(f"v_add_u32 v{V_WO}, s5, v{V_L16}")
    a(f"v_mov_b32 v2, {fhex(1e-5 * 2**22)}"); a(f"v_mov_b32 v3, v2"); a(f"v_mov_b32 v4, {fhex(2**22/512)}"); a("v_mov_b32 v5, v4")
    a(f"s_cmp_eq_u32 s{S_P}, 0"); a("s_cselect_b32 s73, 0, -1")

def cmul(a, c, s, sign, out):
    t = V_T; re = V_A; im = V_A + 8
    p = lambda b, j: vr(b + 2 * j, 2)
    neg = "neg_lo:[1,0,0] neg_hi:[1,0,0]"
    n1, n2 = (neg, "") if sign > 0 else ("", neg)
    for j in range(4):
        a(f"v_pk_mul_f32 {p(t,j)}, {p(re,j)}, {p(c,j)}"); a(f"v_pk_mul_f32 {p(t+8,j)}, {p(im,j)}, {p(c,j)}")
    for j in range(4): a(f"v_pk_fma_f32 {p(t,j)}, {p(im,j)}, {p(s,j)}, {p(t,j)} {n1}")
    for j in range(4): a(f"v_cvt_pk_bf16_f32 v{out+j}, v{t+2*j}, v{t+2*j+1}")
    for j in range(4): a(f"v_pk_fma_f32 {p(t+8,j)}, {p(re,j)}, {p(s,j)}, {p(t+8,j)} {n2}")
    for j in range(4): a(f"v_cvt_pk_bf16_f32 v{out+4+j}, v{t+8+2*j}, v{t+9+2*j}")

def compute(a, layer, hook, stubs, before_c=None):
    t = V_T; ZO = 0; CO = LDS_C - LDS_Z
    NP = (2, 8)[layer]
    def bad(a):
        sync.fold(a, V_CK, [V_Z + 4 * i for i in range(8)], "max")
        a(f"v_bitop3_b32 v{V_T}, v{V_IN}, v{V_IN+4}, 1 bitop3:0x7e")
        a(f"v_cmp_eq_u32 s[6:7], -1, v{V_CK}")
        a(f"v_and_b32 v{V_T}, s{S_TM}, v{V_T}"); a(f"v_cmp_ne_u32 vcc, 0, v{V_T}")
        a("s_or_b64 vcc, vcc, s[6:7]")
    if layer: sync.check(a, bad, lambda a: loads(a, layer), stubs)
    else: a.wait_regs(f"v{V_Z+4}")
    a.stamp()
    unp = []
    for pl in range(2):
        for j in range(4):
            unp.append(f"v_lshlrev_b32 v{V_RF+8*pl+2*j}, 16, v{V_IN+4*pl+j}")
            unp.append(f"v_and_b32 v{V_RF+8*pl+2*j+1}, s{S_HI}, v{V_IN+4*pl+j}")
    for i in range(NP):
        for j in range(2):
            mf(a, V_A + 4 * j, V_SEL + 4 * j, V_Z + 4 * i, i == 0)
            if NP == 8 and len(unp) > 8 and j: a(unp.pop(0))
    for o in unp: a(o)
    for j in range(4): a(f"v_pk_fma_f32 {vr(V_A+2*j,2)}, {vr(V_A+2*j,2)}, v[4:5], v[2:3]")
    for i in range(8): a(f"v_rsq_f32 v{V_A+i}, v{V_A+i}")
    for pl in range(2):
        for j in range(4): a(f"v_pk_mul_f32 {vr(t+8*pl+2*j,2)}, {vr(V_A+2*j,2)}, {vr(V_RF+8*pl+2*j,2)}")
        for j in range(4): a(f"v_cvt_pk_bf16_f32 v{V_IN+4*pl+j}, v{t+8*pl+2*j}, v{t+8*pl+2*j+1}")
        if pl:
            for j in range(4): a(f"v_and_b32 v{V_IN+4+j}, s73, v{V_IN+4+j}")
        a(f"ds_write_b128 v7, {vr(V_IN+4*pl,4)} offset:{ZO + 2048*pl}")
    hook(0)
    a("s_waitcnt lgkmcnt(0)"); a("s_barrier")
    for i in range(8): a(f"ds_read_b128 {vr(V_Z+4*i,4)}, v{V_L16} offset:{ZO + i*1024}")
    hook(1)
    Z = lambda tt, pl, aa: V_Z + 16 * tt + 8 * pl + 4 * aa
    for tt in range(2):
        for pl in range(2):
            for aa in range(2):
                first = (pl == 0 and aa == 0)
                mf(a, V_A + 4 * tt, Z(tt, pl, aa), (V_CS if pl == 0 else V_SN) + 4 * aa, first)
                mf(a, V_A + 8 + 4 * tt, Z(tt, pl, aa), (V_NS if pl == 0 else V_CS) + 4 * aa, first)
    hook(2)
    cmul(a, V_T1C, V_T1S, -1, V_IN)
    pr = [f"ds_read_b128 {vr(PREG[r],4)}, v{V_WO} offset:{FO + (r//4)*8192 + (r%4)*1024}" for r in range(12)]
    for t2 in range(2):
        mf(a, V_A + 4 * t2, V_C32 + 4 * t2, V_IN, True); a(pr.pop(0)); a(pr.pop(0))
        mf(a, V_A + 8 + 4 * t2, V_N32 + 4 * t2, V_IN, True); a(pr.pop(0)); a(pr.pop(0))
    WS_ = V_Z
    un = []
    for e in range(8):
        un.append(f"v_lshlrev_b32 v{WS_+e}, 16, v{V_WF+e}"); un.append(f"v_and_b32 v{WS_+8+e}, s{S_HI}, v{V_WF+e}")
    for t2 in range(2):
        mf(a, V_A + 4 * t2, V_S32 + 4 * t2, V_IN + 4, False); a(un.pop(0)); a(un.pop(0))
        mf(a, V_A + 8 + 4 * t2, V_C32 + 4 * t2, V_IN + 4, False); a(un.pop(0)); a(un.pop(0))
    for o in un: a(o)
    cmul(a, WS_, WS_ + 8, +1, V_IN)
    for tt in range(2):
        mf(a, V_A + 4 * tt, V_IN, V_C32 + 4 * tt, True); a(pr.pop(0))
        mf(a, V_A + 8 + 4 * tt, V_IN, V_S32 + 4 * tt, True); a(pr.pop(0))
    for tt in range(2):
        mf(a, V_A + 4 * tt, V_IN + 4, V_N32 + 4 * tt, False)
        mf(a, V_A + 8 + 4 * tt, V_IN + 4, V_C32 + 4 * tt, False)
    hook(3)
    cmul(a, V_T2C, V_T2S, +1, V_IN)
    for pl in range(2):
        for tt in range(2):
            a(f"ds_write_b64 v{V_AD}, {vr(V_IN+4*pl+2*tt,2)} offset:{CO + tt*4096 + pl*2048}")
    if before_c: before_c()
    a("s_waitcnt lgkmcnt(0)"); a("s_barrier")
    B = V_Z
    for i in range(4): a(f"ds_read_b128 {vr(B+4*i,4)}, v{V_CR} offset:{CO + i*1024}")
    P = lambda kind, mm, ks: PREG[4 * kind + 2 * mm + ks]
    def last(pl):
        for ip in range(2):
            for ks in range(2):
                for mm in range(2):
                    kind = 0 if ip == pl else (2 if pl == 0 else 1)
                    d = V_RF + 8 * pl + 4 * mm
                    a(f"v_mfma_f32_16x16x32_bf16 {vr(d,4)}, {vr(P(kind,mm,ks),4)}, {vr(B+8*ip+4*ks,4)}, {vr(d,4)}")
    last(0)
    skip = a.newlabel("colskip")
    a(f"s_cmp_eq_u32 s{S_P}, 0"); a(f"s_cbranch_scc1 {skip}")
    last(1)
    a.label(skip, 1)
    op = None
    for pl in range(2):
        if pl == 0: a("s_nop 4")
        for j in range(4): a(f"v_cvt_pk_bf16_f32 v{V_IN+4*pl+j}, v{V_RF+8*pl+2*j}, v{V_RF+8*pl+2*j+1}")
        a(f"v_and_b32 v{V_IN+4*pl}, s{S_NTM}, v{V_IN+4*pl}" if layer else f"v_or_b32 v{V_IN+4*pl}, s{S_TM}, v{V_IN+4*pl}")
        op = a(f"buffer_store_dwordx4 {vr(V_IN+4*pl,4)}, v{V_XO}, s[8:11], s65 offen offset:{64*pl} {ST}")
    return op
```

```python
from asmdsl import *
from maps import *
from regs import *
import sync, p1, os, sys
E = lambda k, d: int(os.environ.get(k, d))
ROT = E('ROT', 0); LA = E('LA', 5); VGAP = [float(os.environ.get('VGAP0', 2)), float(os.environ.get('VGAP1', 2))]; PAUSE = E('PAUSE', 4); BUD = E('BUD', 3)
class NoFit(Exception): pass
STP = [int(x) for x in os.environ.get('STP', '63,127,191').split(',')]
XPRI = E('XPRI', 3); M16 = E('M16', 0); NOCK = E('NOCK', 0); EPS = E('EPS', 2); SPLIT = E('SPLIT', 1)
POLLN = E('POLLN', 156)
NSLOT = 10
def set_slots(n):
    global NSLOT
    NSLOT = n
L = 1
V_L16 = 5
V_CB = [3, 6, 7]
V_RD = 8
V_FR = 16; NF = E('NF', 6); W2 = E('W2', 1)
V_ACC = 40
V_CK = 88
V_H = 104
PARTS = eval(os.environ.get('PARTS', '[(0, 1), (2,), (3, 4), (5,)]'))
NACC = 4 if PARTS == [(0, 1), (2, 3), (4, 5)] else 3
if NACC == 4: V_CK = 192
SEQ = [(t, ks) for p in PARTS for ks in range(32) for t in p]
UNIT = []
for p in PARTS: UNIT += [(p[0], len(p) == 2, q) for q in range(2 * len(p))]
A_W = 0

def task(a):
    a("s_bfe_u32 s5, s2, 0x20001"); a("s_lshl_b32 s5, s5, 5"); a("s_lshr_b32 s6, s2, 3"); a("s_add_u32 s5, s5, s6")
    a("s_mul_i32 s6, s5, 2850"); a("s_lshr_b32 s6, s6, 16")
    a("s_mul_i32 s7, s6, 23"); a("s_sub_u32 s5, s5, s7")
    a("s_and_b32 s7, s2, 1")
    a("s_lshl_b32 s6, s6, 1")
    a("s_cmp_ge_u32 s5, 12"); a(f"s_cselect_b32 s{S_RT}, 1, 0"); a(f"s_cselect_b32 s{S_FT}, 12, 1"); a(f"s_sub_u32 s{S_FT}, s5, s{S_FT}")
    a(f"s_mul_i32 s{S_GAM}, s7, 11"); a(f"s_add_u32 s{S_FT}, s{S_FT}, s{S_GAM}")
    a("s_cmp_eq_u32 s5, 0"); a(f"s_cselect_b32 s{S_RT}, s7, s{S_RT}"); a(f"s_cselect_b32 s{S_FT}, 22, s{S_FT}")
    a(f"s_add_u32 s{S_RT}, s{S_RT}, s6")
    a(f"s_cmp_ge_u32 s{S_RT}, 11"); a(f"s_cselect_b32 s{S_FT}, 22, s{S_FT}")
    a(f"s_lshl_b32 s{S_GAM}, s{S_FT}, 2"); a(f"s_add_u32 s{S_GAM}, s{S_GAM}, s{S_W}")
assert all((x * 2850) >> 16 == x // 23 for x in range(256))

def w_setup(a):
    a(f"s_lshl_b32 s5, s{S_GAM}, 15"); a(f"s_add_u32 s5, s5, {WS_W1F}")
    srd(a, 24, K_WS, 32768, "s5")
    a(f"s_cmp_ge_u32 s{S_GAM}, {NG}"); a("s_cselect_b32 s26, 0, s26")
def w_load(ks, vl16):
    pre = [f"s_movk_i32 s64, {(ks // 4) * 4096}"] if ks % 4 == 0 else []
    so = "s64"
    return pre, f"buffer_load_dwordx4 {ar(A_W+4*ks,4)}, v{vl16}, s[24:27], {so} offen offset:{(ks%4)*1024} {LD}"

def addrs(a, layer):
    a(f"v_lshlrev_b32 v{V_L16}, 4, v{L}")
    p1.tr_addr(a, V_RD, 64, 2)
    for seg in (1, 2): a(f"v_add_u32 v{V_RD+seg}, {seg*65536}, v{V_RD}")
    a(f"s_lshl_b32 s49, s{S_W}, 12")
    a(f"v_add_u32 v{V_CB[0]}, s49, v{V_L16}")
    for seg in (1, 2): a(f"v_add_u32 v{V_CB[seg]}, {seg*65536}, v{V_CB[0]}")
    a(f"s_mul_i32 s48, s{S_RT}, {3*65536}")
    a(f"s_lshr_b32 s5, s{S_W}, 1"); a("s_lshl_b32 s5, s5, 15"); a("s_add_u32 s50, s48, s5"); a(f"s_and_b32 s5, s{S_W}, 1"); a("s_lshl_b32 s5, s5, 12"); a("s_add_u32 s50, s50, s5")
    a("s_add_u32 s48, s48, s49")
    srd(a, 12, K_WS, HSZ, WS_H)
    a(f"s_mul_i32 s47, s{S_RT}, {6*TSZ}"); a(f"s_lshl_b32 s5, s{S_GAM}, 10"); a("s_add_u32 s47, s47, s5")
    a(f"s_cmp_eq_u32 s{S_RT}, 10"); a(f"s_cselect_b32 s73, 0, s{S_TM}")
    a(f"s_cmp_ge_u32 s{S_W}, 2"); a(f"s_cselect_b32 s78, s73, s{S_TM}")

def x_dma(u, i, so=52):
    pre = []
    if i == 0:
        pre.append(f"s_add_u32 m0, s49, {(u % NSLOT) * 16384}")
        t, pair, q = UNIT[u]
        pre.append(f"s_add_u32 s{so}, s50, {t * 32768 + q * 8192}" if pair else f"s_add_u32 s{so}, s48, {t * 32768 + q * 16384}")
    return pre, f"buffer_load_dwordx4 v{V_L16}, s[8:11], s{so} offen offset:{i*1024} {LD} lds"
def emit(a, item):
    for p in item[0]: a(p)
    return a(item[1])

def epi_ops(P, layer, packed=False):
    ops = []
    acc = V_ACC + 16 * (P % NACC); h = V_H + 4 * (P % 2)
    for e in range(8): ops.append(f"v_max_f32 v{acc+e}, 0, v{acc+e}")
    if packed:
        for j in range(4): ops.append(f"v_pk_mul_f32 {vr(acc+2*j,2)}, {vr(acc+2*j,2)}, {vr(acc+8+2*j,2)}")
    else:
        for e in range(8): ops.append(f"v_mul_f32 v{acc+e}, v{acc+e}, v{acc+8+e}")
    for j in range(4): ops.append(f"v_cvt_pk_bf16_f32 v{h+j}, v{acc+2*j}, v{acc+2*j+1}")
    ops.append(f"v_or_b32 v{h}, 1, v{h}" if layer else f"v_and_b32 v{h}, -2, v{h}")
    return ops
def h_store(P):
    return [f"s_add_u32 s51, s47, {P*TSZ}"], f"buffer_store_dwordx4 {vr(V_H+4*(P%2),4)}, v{V_L16}, s[12:15], s51 offen {ST}"

def mainloop(a, layer, extra, alu, events, stubs, first=None):
    NM = 192
    dma = {}
    for u in range(2):
        for i in range(4): dma[u] = emit(a, x_dma(u, i))
    if first: first()
    def rd(n):
        u, r = n // 16, n % 16
        base = (u % NSLOT) * 16384 + ((r % 2) * 8192 + (r // 2) * 1024 if UNIT[u][1] else r * 1024)
        f = V_FR + 4 * (n % NF)
        for rho in range(2):
            a(f"ds_read_b64_tr_b16 {vr(f+2*rho,2)}, v{V_RD + base//65536} offset:{base%65536 + rho*512}")
    op3 = "v_bitop3_b32 {} bitop3:0x80" if layer == 0 else "v_or3_b32 {}"
    def ck_steps(u):
        t0, pair, _ = UNIT[u]
        mask = "s73" if t0 >= 4 else "s78" if (pair and t0 == 3) else f"s{S_TM}"
        cb = (u % NSLOT) * 16384
        ckr = lambda a, i: a(f"ds_read_b128 {vr(V_CK+4*i,4)}, v{V_CB[cb // 65536]} offset:{cb % 65536 + 1024*i}")
        def s0(): a.wait_vm(dma[u]); ckr(a, 0)
        def f1(a): a(op3.format(f"v{V_CK}, v{V_CK}, v{V_CK+4}, v{V_CK+8}"))
        def f2(a):
            if layer == 0: a(f"v_bitop3_b32 v{V_CK}, v{V_CK}, v{V_CK+12}, {mask} bitop3:0x80"); a(f"v_cmp_ne_u32 vcc, {mask}, v{V_CK}")
            else: a(f"v_bitop3_b32 v{V_CK}, v{V_CK}, v{V_CK+12}, {mask} bitop3:0xa8"); a(f"v_cmp_ne_u32 vcc, 0, v{V_CK}")
        def fin():
            st = {"n": 0}
            def gather(a):
                if st["n"]:
                    for i in range(4): ckr(a, i)
                    f1(a); f2(a)
                st["n"] += 1
            items = [x_dma(u, i, 7) for i in range(4)]
            def reload(a):
                a("s_mov_b32 s0, m0")
                for it in items: emit(a, it)
                a("s_mov_b32 m0, s0")
            sync.check(a, gather, reload, stubs, masked=False)
            a("s_barrier")
        if NOCK and u >= NOCK: return [None] * 7 + [lambda: (a.wait_vm(dma[u]), a("s_barrier"))]
        return [s0, lambda: ckr(a, 1), lambda: ckr(a, 2), lambda: ckr(a, 3), None, lambda: f1(a), lambda: f2(a), fin]
    PD = NF - 1
    xq = [(u, i) for u in range(2, 12) for i in range(4)]
    extra = list(extra); alu = list(alu)
    sched = []; epi = []; stq = []; last = None; nxt = 0; staged = None
    a.stamp()
    for f in ck_steps(0):
        if f: f()
    a.stamp()
    for n in range(PD): rd(n)
    cks = {}
    for u in range(1, 12):
        for k in range(8): cks[16 * u - PD - 7 + k] = (u, k)
    steps = {}
    def pick(n, room):
        u = n // 16
        if stq and len(epi) <= 21 * (len(stq) - 1): q, kind = stq, "st"
        elif n < nxt: return None
        else:
            xok = xq and xq[0][0] <= u + min(LA, NSLOT - 2)
            eok = extra and extra[0][0] <= n
            if eok and extra[0][1][1].endswith("lds") and not extra[0][1][0]: q, kind = extra, "e"
            elif xok and (not eok or xq[0][0] <= u + XPRI or xq[0][1]): q, kind = xq, "x"
            elif eok: q, kind = extra, "e"
            else: return None
        item = x_dma(*q[0]) if kind == "x" else q[0][1] if kind == "e" else q[0]
        if len(item[0]) > max(room, 0) + (1 if BUD < 2 else 0): return None
        return kind, q.pop(0), item
    CKC = [2, 1, 1, 1, 0, 1, 2, 2]
    cost = lambda n: (CKC[cks[n][1]] if n in cks else 0) + sum(2 for en, ef in events if en == n)
    ninst = lambda: sum(1 for l in a.lines[mark:] if not l.endswith(":"))
    for n in range(NM):
        u, r = n // 16, n % 16
        P, ksg = SEQ[n]; T = n % 2
        acc = V_ACC + 16 * (P % NACC)
        c = "0" if ksg == 0 else vr(acc, 16)
        assert not any(ar(A_W + 4 * ksg, 4) + "," in e[1][1] and "s[24:27]" in e[1][1] for e in extra), "W1 load too late"
        assert not (staged and ar(A_W + 4 * ksg, 4) + "," in staged[2][1] and "s[24:27]" in staged[2][1])
        if T == 0 and W2: a.wait_lregs(vr(V_FR + 4 * ((n + 1) % NF), 4))
        a(f"v_mfma_f32_32x32x16_bf16 {vr(acc,16)}, {ar(A_W+4*ksg,4)}, {vr(V_FR+4*(n%NF),4)}, {c}")
        mark = len(a.lines)
        lim = 2 + BUD + (1 if T == 0 and W2 else 0)
        if staged:
            kind, key, item = staged; staged = None
            op = a(item[1]); sched.append(f"{kind}{n}")
            if kind == "x": dma[key[0]] = op
            if kind == "st": last = op
        if n in STP: a.stamp()
        if n in cks:
            cu, k = cks[n]
            if k == 0:
                assert not any(x[0] <= cu for x in xq), ("X too late", cu)
                steps[cu] = ck_steps(cu)
            if steps[cu][k]: steps[cu][k]()
        if n + PD < NM: rd(n + PD)
        else: lim -= 2
        if n >= 3 and SEQ[n - 3][1] == 31:
            epi += epi_ops(SEQ[n - 3][0], layer); stq.append(h_store(SEQ[n - 3][0]))
        if ksg == 0 and P >= NACC: assert not any(f"v{acc}," in e for e in epi) and len(epi) <= 21
        for en, ef in events:
            if en == n:
                ef(last)
        if n + 1 < NM and cost(n + 1) < max(BUD, 2):
            p = pick(n + 1, lim - ninst())
            if p:
                kind, key, item = p
                for q in item[0]: a(q)
                staged = p
                nxt = n + 1 + PAUSE if kind == "st" else max(nxt, n) + VGAP[layer]
        for _ in range(EPS):
            if epi and ninst() < lim: a(epi.pop(0))
    if extra: raise NoFit(layer)
    open(f'sched{layer}.txt', 'w').write(' '.join(sched) + '\n')
    assert not extra and not epi and not xq and not stq and not alu, (len(extra), len(epi), len(xq), len(alu))
    for t in PARTS[-1]:
        for o in epi_ops(t, layer, True): a(o)
        last = emit(a, h_store(t))
    return last

def stats(a, layer, stubs, extra):
    a("v_lshlrev_b32 v6, 4, v0")
    a(f"s_mul_i32 s48, s{S_RT}, {3*65536}"); a(f"s_cmp_ge_u32 s{S_RT}, 11"); a("s_cselect_b32 s48, 0, s48")
    R = 40; ACC = 16; extra = list(extra)
    reg = lambda n: R + 4 * (n % 16)
    def ld(a, n):
        a(f"s_add_u32 s7, s48, {4096*n}")
        a(f"buffer_load_dwordx4 {vr(reg(n),4)}, v6, s[8:11], s7 offen {LD}")
    for n in range(12): ld(a, n)
    a("v_lshrrev_b32 v2, 2, v0"); a("v_cmp_eq_u32 s[50:51], 1, v2")
    a("v_mul_u32_u24 v8, 768, v2"); a("v_and_b32 v3, 3, v0"); a("v_lshl_add_u32 v8, v3, 5, v8")
    for g in range(12):
        ns = range(4 * g, 4 * g + 4)
        sync.check(a, lambda a, ns=ns, g=g: sync.bad_tag(a, 9, [reg(n) for n in ns], layer == 0, "s73" if g >= 8 else f"s{S_TM}"),
                   lambda a, ns=ns: [ld(a, n) for n in ns], stubs)
        acc = ACC + 8 * ((g // 2) % 2)
        for n in ns:
            if n + 12 < 48: ld(a, n + 12)
            else:
                for _ in range(2):
                    if extra: emit(a, extra.pop(0))
            for j in range(4):
                if n % 8 == 0: a(f"v_cndmask_b32 v{reg(n)+j}, v{reg(n)+j}, 0, s[50:51]")
                a(f"v_lshlrev_b32 v32, 16, v{reg(n)+j}"); a(f"v_and_b32 v33, s{S_HI}, v{reg(n)+j}")
                c = vr(acc + 2 * j, 2)
                a(f"v_pk_mul_f32 {c}, v[32:33], v[32:33]" if n % 8 == 0 else f"v_pk_fma_f32 {c}, v[32:33], v[32:33], {c}")
        if g % 2:
            for k in range(2): a(f"ds_write_b128 v8, {vr(acc+4*k,4)} offset:{128*(g//2) + 16*k}")
    a("s_waitcnt lgkmcnt(0)"); a("s_barrier")
    a("v_lshlrev_b32 v6, 2, v0")
    for i in range(32): a(f"ds_read2st64_b32 {vr(R+2*i,2)}, v6 offset0:{6*i} offset1:{6*i+3}")
    for st in (32, 16, 8, 4, 2):
        for i in range(0, st, 2): a(f"v_pk_add_f32 {vr(R+i,2)}, {vr(R+i,2)}, {vr(R+i+st,2)}")
    a(f"v_add_f32 v{R}, v{R}, v{R+1}")
    a(f"v_mov_b32 v8, {fhex(1e-5)}"); a(f"v_fmamk_f32 v{R}, v{R}, {fhex(1/512)}, v8"); a(f"v_rcp_f32 v{R}, v{R}")
    srd(a, 12, K_WS, 8192, (WS_R1, WS_R3)[layer])
    a(f"s_mul_i32 s5, s{S_RT}, 768")
    a(f"v_mov_b32 v8, {OOB}"); a(f"v_min_u32 v{R}, s{S_SAN}, v{R}")
    a("v_cmp_gt_u32 vcc, 192, v0"); a("v_cndmask_b32 v6, v8, v6, vcc")
    a(f"buffer_store_dword v{R}, v6, s[12:15], s5 offen {ST}")
    for f in extra: emit(a, f)
    a("s_barrier")
```

```python
from asmdsl import *
from maps import *
from regs import *
import p1, sync, os
E = lambda k, d: int(os.environ.get(k, d))
ROT = E('ROT', 0); EARLY = [E('EARLY0', 8), E('EARLY1', 16)]; BST = E('BST', 10); TICK = E('TICK', 6); TICKB = E('TICKB', 16); RST = E('RST', 7); WLATE = E('WLATE', 9); CTLATE = E('CTLATE', 8)
LDS_SS = 0
LDS_RED = 65536
LDS_X = 98304
LDS_CT = 32768
L = 1
V_L16 = 5; V_CK = 3; V_WL = 14; V_T16 = 4
V_RW = 11; V_RR = 112; V_XO = 113; V_RO = 114; V_AT = 115; V_TR = 115; V_MSK = 116; V_CR = 116; V_CF = 104; V_SR = 117; V_SO = 118
V_R = 16; V_RES = 32; V_H = 120; V_XF = 24; V_T2 = 20
A_CT = 0
def accr(tile): return 40 + 32 * tile
def wreg(i, jj):
    n = 8 * i + 4 * jj
    return ar(128 + n, 4) if n < 128 else vr(208 + n - 128, 4)
def hreg(i): return vr(V_H + 4 * i, 4)
def emit(a, item):
    tk = a.tick; a.tick = None
    for p in item[0]: a(p)
    op = a(item[1]); a.tick = tk
    return op

GR = [(0, 4), (4, 10), (10, 16), (16, 22)]
def grp(i): return [g for g in range(4) if GR[g][0] <= i < GR[g][1]][0]
def task(a):
    a("s_and_b32 s5, s2, 7"); a("s_lshl_b32 s5, s5, 2"); a("s_lshr_b32 s6, s2, 6"); a("s_add_u32 s5, s5, s6")
    a(f"s_bfe_u32 s{S_JT}, s2, 0x30003")
    a("s_mul_i32 s6, s5, 86"); a("s_lshr_b32 s6, s6, 8")
    a("s_mul_i32 s7, s6, 3"); a(f"s_add_u32 s{S_TA}, s5, s7")
    a("s_mul_i32 s7, s6, 9"); a("s_add_u32 s7, s7, 5"); a(f"s_sub_u32 s{S_TB}, s7, s5")
    a("s_cmp_eq_u32 s6, 10"); a("s_cselect_b32 s6, 2, 0"); a(f"s_sub_u32 s{S_TB}, s{S_TB}, s6")
    a(f"s_lshr_b32 s5, s{S_W}, 1"); a(f"s_lshl_b32 s{S_G}, s{S_JT}, 1"); a(f"s_add_u32 s{S_G}, s{S_G}, s5")
assert all((x * 86) >> 8 == x // 3 for x in range(32))
def h_setup(a):
    for t in range(2):
        a(f"s_mul_i32 s5, s{S_TA+t}, {TSZ}"); a(f"s_add_u32 s5, s5, {WS_H}")
        srd(a, 16 + 4 * t, K_WS, TSZ, "s5")
        a(f"s_lshl_b32 s{28+t}, s{S_TA+t}, 7")

def w_setup(a, final):
    ngw = (118 if final else NG) * 1024
    for jj in range(2):
        a(f"s_xor_b32 s6, s{S_G}, {jj}"); a(f"s_mul_i32 s6, s6, {ngw}"); a(f"s_add_u32 s6, s6, {WS_WDF if final else WS_WDP}")
        srd(a, 56 + 4 * jj, K_WS, ngw, "s6")
def wl_setup(a, v):
    a(f"s_and_b32 s5, s{S_W}, 1"); a("s_lshl_b32 s5, s5, 8")
    a(f"v_lshlrev_b32 v{V_T16}, 4, v0"); a(f"v_xor_b32 v{v}, s5, v{V_T16}")
def w_load(i, jj, v=V_WL):
    return ([f"s_mov_b32 s1, {4096*i}"] if jj == 0 else []), f"buffer_load_dwordx4 {wreg(i,jj)}, v{v}, s[{56+4*jj}:{59+4*jj}], s1 offen {LD}"

def addrs(a, final):
    red = 0 if final else LDS_RED
    a(f"s_mul_i32 s6, s{S_W}, 6144"); a(f"s_add_u32 s6, s6, {red}"); a(f"v_add_u32 v{V_RR}, s6, v{V_L16}")
    for qq in range(1, 4):
        a(f"s_xor_b32 s5, s{S_W}, {qq}"); a("s_mul_i32 s5, s5, 6144"); a(f"s_add_u32 s5, s5, {red}"); a(f"v_add_u32 v{V_RW+qq-1}, s5, v{V_L16}")
    h, u, x = 40, 41, 42
    srd(a, 68, K_WS, 8192, WS_R3 if final else WS_R1)
    a(f"s_and_b32 s5, s{S_W}, 1")
    if not final:
        a(f"v_bfe_u32 v{h}, v{L}, 4, 1"); a(f"v_lshrrev_b32 v{x}, 5, v{L}"); a(f"v_lshl_add_u32 v{h}, v{h}, 1, v{x}")
        a(f"v_and_b32 v{u}, 15, v{L}"); a(f"v_lshl_add_u32 v{u}, s5, 4, v{u}")
        a(f"v_lshlrev_b32 v{V_XO}, 6, v{u}"); a(f"v_lshl_add_u32 v{V_XO}, v{h}, 4, v{V_XO}")
        a(f"v_lshlrev_b32 v{V_RO}, 5, v{h}")
        a(f"v_bfe_u32 v{x}, v{L}, 1, 3"); a(f"v_lshl_add_u32 v{V_AT}, v{x}, 2, v{V_RO}"); a(f"s_lshl_b32 s6, s{S_W}, 7"); a(f"v_add_u32 v{V_AT}, s6, v{V_AT}")
        a(f"s_lshl_b32 s5, s{S_G}, 5"); a(f"v_or_b32 v{x}, s5, v{u}")
        a(f"v_cmp_eq_u32 vcc, 1, v{x}"); a(f"v_cndmask_b32 v{V_MSK}, 1.0, 0, vcc")
        a(f"v_and_b32 v{V_SR}, 15, v{L}"); a(f"v_lshlrev_b32 v{V_SR}, 5, v{V_SR}")
        a(f"v_lshlrev_b32 v{V_SO}, 4, v0"); a(f"v_mov_b32 v{x}, {OOB}"); a("v_cmp_gt_u32 vcc, 4, v0"); a(f"v_cndmask_b32 v{V_SO}, v{x}, v{V_SO}, vcc")
        for t in range(2):
            a(f"s_lshl_b32 s{65+t}, s{S_TA+t}, 6"); a(f"s_lshl_b32 s5, s{S_JT}, 12"); a(f"s_add_u32 s{65+t}, s{65+t}, s5")
            a(f"s_lshl_b32 s5, s{S_G}, 11"); a(f"s_lshl_b32 s{74+t}, s{S_TA+t}, 15"); a(f"s_add_u32 s{74+t}, s{74+t}, s5")
    else:
        a(f"v_lshrrev_b32 v{h}, 5, v{L}"); a(f"v_and_b32 v{u}, 31, v{L}"); a("s_lshl_b32 s5, s5, 5")
        a(f"v_and_b32 v{x}, 19, v{u}"); a(f"v_bfe_u32 v{V_RO}, v{u}, 3, 1"); a(f"v_lshl_add_u32 v{x}, v{V_RO}, 2, v{x}")
        a(f"v_bfe_u32 v{V_RO}, v{u}, 2, 1"); a(f"v_lshl_add_u32 v{x}, v{V_RO}, 3, v{x}")
        a(f"v_lshlrev_b32 v{V_RO}, 2, v{x}")
        a(f"v_and_b32 v{V_XO}, 7, v{x}"); a(f"v_lshlrev_b32 v{V_XO}, 15, v{V_XO}"); a(f"v_lshrrev_b32 v{x}, 3, v{x}"); a(f"v_lshl_add_u32 v{V_XO}, v{x}, 10, v{V_XO}")
        a(f"v_lshl_add_u32 v{V_XO}, v{h}, 4, v{V_XO}"); a(f"v_add_u32 v{V_XO}, s5, v{V_XO}")
        a(f"s_lshl_b32 s5, s{S_W}, 14"); a(f"s_add_u32 s67, s5, {LDS_X}"); a(f"v_add_u32 v{V_TR}, s67, v8")
        for t in range(2):
            rowbase(a, 74 + t, S_TA + t)
            a(f"s_lshl_b32 s5, s{S_G}, 6"); a(f"s_add_u32 s{74+t}, s{74+t}, s5")
            a(f"s_lshl_b32 s5, s{S_W}, 13"); a(f"s_lshl_b32 s{65+t}, s{S_TA+t}, 15"); a(f"s_add_u32 s{65+t}, s{65+t}, s5")
        a(f"s_mul_i32 s72, s{S_W}, {7*1024}"); a(f"s_sub_u32 s77, s67, {LDS_X - LDS_CT}"); a(f"v_add_u32 v{V_CR}, s77, v{V_L16}")
        srd(a, 24, K_OUT, S * D * 2)

def h_load(tile, i):
    return [f"s_mov_b32 s79, {4096*i}"], f"buffer_load_dwordx4 {hreg(i)}, v{V_T16}, s[{16+4*tile}:{19+4*tile}], s79 offen {LD}"
def r_load(a, final):
    for t in range(2):
        if final: a(f"buffer_load_dword v{V_R+t}, v{V_RO}, s[68:71], s{28+t} offen {LD}")
        else:
            a(f"buffer_load_dwordx4 {vr(V_R+8*t,4)}, v{V_RO}, s[68:71], s{28+t} offen {LD}")
            a(f"buffer_load_dwordx4 {vr(V_R+8*t+4,4)}, v{V_RO}, s[68:71], s{28+t} offen offset:16 {LD}")
            a(f"buffer_load_dwordx4 {vr(V_RES+4*t,4)}, v{V_XO}, s[8:11], s{74+t} offen {LD}")
def r_check(a, final, stubs):
    def bad(a):
        if final: sync.bad_fill(a, V_CK, [V_R, V_R + 1]); return
        sync.bad_fill(a, V_CK, range(V_R, V_R + 16)); a("s_mov_b64 s[6:7], vcc")
        sync.bad_tag(a, V_CK, [V_RES, V_RES + 4], True, f"s{S_TM}"); a("s_or_b64 vcc, vcc, s[6:7]")
    sync.check(a, bad, lambda a: r_load(a, final), stubs)

def ct_x(t, i):
    pre = []
    if i % 4 == 0: pre = [f"s_add_u32 m0, s67, {t*8192 + i*1024}", f"s_add_u32 s0, s{65+t}, {i*1024}"]
    return pre, f"buffer_load_dwordx4 v{V_L16}, s[8:11], s0 offen offset:{1024*(i%4)} {LD} lds"
def ct_w(n):
    jj, k = n // 8, n % 8
    pre = [f"s_add_u32 m0, s77, {n*1024}", f"s_add_u32 s64, s72, {86*1024 + k*1024}"] if k % 4 == 0 else []
    return pre, f"buffer_load_dwordx4 v{V_WL}, s[{56+4*jj}:{59+4*jj}], s64 offen offset:{(k%4)*1024} {LD} lds"
def ct_compute(a, hook=None):
    def rd(k):
        for jj in range(2): a(f"ds_read_b128 {ar(8*(k%3)+4*jj,4)}, v{V_CR} offset:{jj*8192 + k*1024}")
        for t in range(2):
            for rho in range(2): a(f"ds_read_b64_tr_b16 {ar(24+8*(k%3)+4*t+2*rho,2)}, v{V_TR} offset:{t*8192 + k*1024 + rho*512}")
    for k in range(2): rd(k)
    for k in range(8):
        for t in (1, 0):
            for jj in range(2):
                acc = vr(accr(t) + 16 * jj, 16)
                a(f"v_mfma_f32_32x32x16_bf16 {acc}, {ar(8*(k%3)+4*jj,4)}, {ar(24+8*(k%3)+4*t,4)}, {'0' if (k == 0 and t) else acc}")
            if t and k + 2 < 8: rd(k + 2)
            if hook: hook(k)
def scale(a, t, r):
    a(f"v_mov_b32 v{V_T2}, v{r}"); a(f"v_mov_b32 v{V_T2+1}, v{r}")
    for j in range(16): a(f"v_pk_mul_f32 {vr(accr(t)+2*j,2)}, {vr(V_T2,2)}, {vr(accr(t)+2*j,2)}")

CG = [(0, 3), (3, 6), (6, 9), (9, 12), (12, 15), (15, 18), (18, 20), (20, 22)]
def mm(a, tile, final, first, stubs, hook=None, need=None):
    checked = True
    def chk(lo, hi):
        if need: need(tile, hi)
        def reload(a):
            for i in range(lo, hi): emit(a, h_load(tile, i))
        sync.check(a, lambda a: sync.bad_tag(a, V_CK, [V_H + 4 * i for i in range(lo, hi)], final, 1), reload, stubs)
    if checked: chk(*CG[0])
    for i in range(22):
        for jj in range(2):
            acc = vr(accr(tile) + 16 * jj, 16)
            c = "0" if (i == 0 and first) else acc
            A, B = (wreg(i, jj), hreg(i)) if final else (hreg(i), wreg(i, jj))
            a(f"v_mfma_f32_32x32x16_bf16 {acc}, {A}, {B}, {c}")
            if hook and jj == 0: hook(i)
        for lo, hi in CG[1:]:
            if checked and i == lo - 1:
                chk(lo, hi)
                if os.environ.get('DBG') and not final and tile == 0:
                    tk = a.tick; a.tick = None; a.stamp(); a.flush(); a.tick = tk

def reduce(a, tile, swap, hook=None):
    acc = accr(tile); ts = 24576 if swap else LDS_CT
    def wr(qq):
        for k in range(2):
            a(f"ds_write_b128 v{V_RW+qq-1}, {vr(acc+8*qq+4*k,4)} offset:{tile*ts + (qq-1)*2048 + k*1024}")
    if swap:
        for e in range(8): a(f"v_permlane16_swap_b32 v{acc+e}, v{acc+8+e}")
        wr(1)
        for e in range(8): a(f"v_permlane16_swap_b32 v{acc+16+e}, v{acc+24+e}")
        wr(2); wr(3)
    else:
        wr(1); wr(2); wr(3)
    if hook: hook()
    a("s_waitcnt lgkmcnt(0)"); a("s_barrier")
    for k in range(6): a(f"ds_read_b128 {vr(acc+8+4*k,4)}, v{V_RR} offset:{tile*ts + k*1024}")
    for q in range(1, 4):
        for j in range(4): a(f"v_pk_add_f32 {vr(acc+2*j,2)}, {vr(acc+2*j,2)}, {vr(acc+8*q+2*j,2)}")

def unres(a, tile):
    t = accr(1 - tile) + 16
    for j in range(4):
        a(f"v_lshlrev_b32 v{t+2*j}, 16, v{V_RES+4*tile+j}"); a(f"v_and_b32 v{t+2*j+1}, s{S_HI}, v{V_RES+4*tile+j}")
def epi4(a, tile):
    acc = accr(tile); t = accr(1 - tile) + 16; s = acc + 16
    for j in range(4): a(f"v_pk_fma_f32 {vr(t+2*j,2)}, {vr(acc+2*j,2)}, {vr(V_R+8*tile+2*j,2)}, {vr(t+2*j,2)}")
    for j in range(4): a(f"v_pk_mul_f32 {vr(s+2*j,2)}, {vr(t+2*j,2)}, {vr(t+2*j,2)}")
    for j in range(4): a(f"v_pk_mul_f32 {vr(s+2*j,2)}, {vr(s+2*j,2)}, {vr(V_MSK,2)} op_sel_hi:[1,0]")
    pk = [f"v_cvt_pk_bf16_f32 v{acc+8+j}, v{t+2*j}, v{t+2*j+1}" for j in range(4)] + [f"v_and_or_b32 v{acc+8}, v{acc+8}, s{S_NTM}, 1"]
    for e in range(4): a(f"v_add_f32_dpp v{s+8+e}, v{s+e}, v{s+e} row_mirror row_mask:0xf bank_mask:0x3")
    for e in range(4): a(f"v_add_f32_dpp v{s+8+e}, v{s+4+e}, v{s+4+e} row_mirror row_mask:0xf bank_mask:0xc")
    for e in range(2): a(f"v_add_f32_dpp v{s+e}, v{s+8+e}, v{s+8+e} row_half_mirror row_mask:0xf bank_mask:0x5")
    a(pk.pop(0))
    for e in range(2): a(f"v_add_f32_dpp v{s+e}, v{s+10+e}, v{s+10+e} row_half_mirror row_mask:0xf bank_mask:0xa")
    a(pk.pop(0)); a("s_mov_b32 vcc_lo, 0xcccccccc"); a("s_mov_b32 vcc_hi, 0xcccccccc")
    for e in range(2): a(f"v_add_f32_dpp v{s+e}, v{s+e}, v{s+e} quad_perm:[2,3,0,1] row_mask:0xf bank_mask:0xf")
    a(f"v_cndmask_b32 v{s}, v{s}, v{s+1}, vcc")
    a(pk.pop(0)); a(pk.pop(0))
    a(f"v_add_f32_dpp v{s}, v{s}, v{s} quad_perm:[1,0,3,2] row_mask:0xf bank_mask:0xf")
    a(f"ds_write_b32 v{V_AT}, v{s} offset:{LDS_SS + 512*tile}")
    a(pk.pop(0))
    a(f"buffer_store_dwordx4 {vr(acc+8,4)}, v{V_XO}, s[8:11], s{74+tile} offen {ST}")
    a("s_waitcnt lgkmcnt(0)"); a("s_barrier")
    skip = a.newlabel("ssskip")
    a(f"s_cmp_lg_u32 s{S_W}, 0"); a(f"s_cbranch_scc1 {skip}")
    a.cond_begin()
    a(f"ds_read_b128 {vr(s,4)}, v{V_SR} offset:{LDS_SS + 512*tile}"); a(f"ds_read_b128 {vr(s+4,4)}, v{V_SR} offset:{LDS_SS + 512*tile + 16}")
    for m in ("row_ror:4", "row_ror:8"):
        for e in range(8): a(f"v_add_f32_dpp v{s+e}, v{s+e}, v{s+e} {m} row_mask:0xf bank_mask:0xf")
    for j in range(4): a(f"v_cvt_pk_bf16_f32 v{s+8+j}, v{s+2*j}, v{s+2*j+1}")
    a(f"v_min_u32 v{s+8}, s{S_SAN}, v{s+8}")
    a(f"buffer_store_dwordx4 {vr(s+8,4)}, v{V_SO}, s[12:15], s{65+tile} offen {ST}")
    a.cond_end()
    a.label(skip)

def epi7(a, tile, r):
    acc = accr(tile)
    if r is not None:
        for e in range(8): a(f"v_mul_f32 v{acc+e}, v{r}, v{acc+e}")
    for j in range(4): a(f"v_cvt_pk_bf16_f32 v{acc+8+j}, v{acc+2*j}, v{acc+2*j+1}")
    a(f"buffer_store_dwordx4 {vr(acc+8,4)}, v{V_XO}, s[24:27], s{74+tile} offen")

def body(a, final, stubs, wpre):
    q = []
    for i in range(EARLY[final], 22):
        if not final and i >= 22 - WLATE: q += [(0, i, w_load(i, 0)), (0, i, w_load(i, 1))]
        q.append((0, i, h_load(0, i)))
    if final: q += [(0, 99, "rck")] + [(0, 99, ct_x(t, i)) for t in range(2) for i in range(8)]
    q += [(1, i, h_load(1, i)) for i in range(22)]
    st = {"done": -1, "x": None, "r": False}
    def nxt():
        if not q: return
        t, i, item = q[0]
        if t == 1 and (i >= st["done"] or st["done"] < BST): return
        if item == "rck":
            if st["done"] < RST + 6: return
            q.pop(0); r_check(a, final, stubs); return
        q.pop(0); op = emit(a, item)
        if q and (q[0][0] == 1 or q[0][1] == 99): tk[0] = TICKB
        if i == 99: st["x"] = op
    def need(tile, hi):
        while q and (q[0][0], q[0][1]) < (tile, hi): nxt()
    def hk(i):
        st["done"] = i
        if i == 0 and not final: srd(a, 12, K_WS, 32768, WS_SS2)
        if i == RST: r_load(a, final)
    a.stamp()
    tk = [TICK, nxt]; a.tick = tk
    mm(a, 0, final, True, stubs, hk, need)
    st["done"] = 23
    a.stamp()
    if final:
        scale(a, 0, V_R)
        a(f"v_rcp_f32 v{V_R+2}, v{V_R+1}")
        a("s_barrier")
        need(1, 0)
        a.wait_vm(st["x"]); ct_compute(a)
        reduce(a, 0, False); epi7(a, 0, None)
        scale(a, 1, V_R + 2)
        a.stamp()
        mm(a, 1, final, False, stubs, None, need)
        a.tick = None
        a.stamp()
        reduce(a, 1, False); a.stamp(); epi7(a, 1, V_R + 1)
    else:
        r_check(a, final, stubs)
        reduce(a, 0, True, lambda: unres(a, 0)); epi4(a, 0)
        a.stamp()
        mm(a, 1, final, True, stubs, None, need)
        a.tick = None
        a.stamp()
        reduce(a, 1, True, lambda: (unres(a, 1), wpre())); a.stamp(); epi4(a, 1)
    assert not q
    a.stamp()
```

```python
S_WG = 2; S_W = 3; S_P = 4
K_X = 16; K_WR = 18; K_WI = 20; K_WG = 24; K_WU = 26; K_WD = 28; K_OUT = 30; K_DBG = 32; K_WS = 34
S_NONCE = 36; S_SAN = 37; S_HI = 38
S_TM = 40; S_NTM = 41
S_CNT = 39
S_KB = 43
S_RT = 44; S_FT = 45; S_GAM = 46
S_RT2 = 101; S_HA = 76
S_JT = 53; S_TA = 54; S_TB = 55
SRD_FL = 96
S_G = 42; S_D = 76; S_E = 80
def rowbase(a, d, t):
    a(f"s_bfe_u32 s{d}, s{t}, 0x30002"); a(f"s_lshl_b32 s{d}, s{d}, 18"); a(f"s_lshr_b32 s6, s{t}, 5"); a("s_lshl_b32 s6, s6, 14"); a(f"s_add_u32 s{d}, s{d}, s6")
    a(f"s_and_b32 s6, s{t}, 3"); a("s_lshl_b32 s6, s6, 12"); a(f"s_add_u32 s{d}, s{d}, s6")
ST = "sc1"; LD = "sc1"
OOB = 0x1000000
import os
SPIN = int(os.environ.get('SPIN', 1 << 17))
def srd(a, d, base, size, off=0):
    tk = a.tick; a.tick = None
    _srd(a, d, base, size, off)
    a.tick = tk
def _srd(a, d, base, size, off):
    if isinstance(off, str) or off:
        a(f"s_add_u32 s{d}, s{base}, {off}"); a(f"s_addc_u32 s{d+1}, s{base+1}, 0")
    else:
        a(f"s_mov_b32 s{d}, s{base}"); a(f"s_mov_b32 s{d+1}, s{base+1}")
    a(f"s_mov_b32 s{d+2}, {size}"); a(f"s_mov_b32 s{d+3}, 0x20000")
```

```python
from asmdsl import *
from maps import *
from regs import *
FL_H = 256 * 64
FL_NONCE = FL_H + 11 * 88 * 64
FL_SIZE = FL_NONCE + 128
BACKOFF = 3

def post(a, t, k):
    a(f"s_lshl_b32 s5, s{S_WG}, 6"); a(f"s_add_u32 s6, s{S_NONCE}, {k}")
    a(f"v_mov_b32 v{t}, {OOB}"); a(f"v_mov_b32 v{t+1}, s6")
    a("v_cmp_eq_u32 vcc, 0, v0"); a(f"v_cndmask_b32 v{t}, v{t}, 0, vcc")
    a(f"buffer_store_dword v{t+1}, v{t}, s[{SRD_FL}:{SRD_FL+3}], s5 offen sc1")

def poll_issue(a, t, addr):
    return a(f"buffer_load_dword v{t}, v{addr}, s[{SRD_FL}:{SRD_FL+3}], 0 offen sc1")

def poll_check(a, t, addr, k, stubs, after=None):
    back, slow = a.newlabel("pback"), a.newlabel("pslow")
    a(f"s_add_u32 s6, s{S_NONCE}, {k}")
    a(f"v_subrev_u32 v{t}, s6, v{t}")
    a(f"v_cmp_le_u32 vcc, 8, v{t}")
    a(f"s_cbranch_vccnz {slow}")
    a.label(back)
    def stub(a):
        lp, out = a.newlabel("ploop"), a.newlabel("pout")
        a.label(slow); a(f"s_mov_b32 s{S_CNT}, 0")
        a.label(lp)
        a("s_mov_b64 exec, vcc")
        a(f"buffer_load_dword v{t}, v{addr}, s[{SRD_FL}:{SRD_FL+3}], 0 offen sc1")
        a(f"s_add_u32 s{S_CNT}, s{S_CNT}, 1")
        a("s_waitcnt vmcnt(0)")
        a(f"v_subrev_u32 v{t}, s6, v{t}")
        a(f"v_cmp_le_u32 vcc, 8, v{t}")
        a(f"s_cbranch_vccz {out}")
        a(f"s_sleep {BACKOFF}")
        a(f"s_cmp_lt_u32 s{S_CNT}, {SPIN}"); a(f"s_cbranch_scc1 {lp}")
        a.label(out); a("s_mov_b64 exec, -1")
        if after: after(a)
        a(f"s_branch {back}")
    stubs.append(stub)

def fold(a, t, regs, kind):
    op2 = {"max": "v_max_u32", "or": "v_or_b32", "and": "v_and_b32"}[kind]
    op3 = {"max": "v_max3_u32 {}", "or": "v_or3_b32 {}", "and": "v_bitop3_b32 {} bitop3:0x80"}[kind]
    regs = list(regs)
    if len(regs) == 1: a(f"v_mov_b32 v{t}, v{regs[0]}"); return
    if len(regs) == 2: a(f"{op2} v{t}, v{regs[0]}, v{regs[1]}"); return
    a(op3.format(f"v{t}, v{regs[0]}, v{regs[1]}, v{regs[2]}")); regs = regs[3:]
    while len(regs) >= 2:
        a(op3.format(f"v{t}, v{t}, v{regs[0]}, v{regs[1]}")); regs = regs[2:]
    if regs: a(f"{op2} v{t}, v{t}, v{regs[0]}")
def bad_fill(a, t, regs):
    fold(a, t, regs, "max"); a(f"v_cmp_eq_u32 vcc, -1, v{t}")
def bad_tag(a, t, regs, ones, mask):
    fold(a, t, regs, "and" if ones else "or")
    a(f"v_and_b32 v{t}, {mask}, v{t}")
    a(f"v_cmp_ne_u32 vcc, {mask if ones else 0}, v{t}")

def check(a, gather, reload, stubs, masked=True):
    back, slow = a.newlabel("cback"), a.newlabel("cslow")
    tk = a.tick; a.tick = None
    gather(a)
    a(f"s_cbranch_vccnz {slow}")
    a.tick = tk
    a.label(back)
    def stub(a):
        lp, out = a.newlabel("cloop"), a.newlabel("cout")
        a.label(slow); a(f"s_mov_b32 s{S_CNT}, 0")
        a("s_waitcnt vmcnt(0) lgkmcnt(0)"); a("s_nop 7"); a("s_nop 7")
        a.label(lp)
        if masked: a("s_mov_b64 exec, vcc")
        reload(a)
        a(f"s_add_u32 s{S_CNT}, s{S_CNT}, 1")
        a("s_waitcnt vmcnt(0)")
        gather(a)
        a(f"s_cbranch_vccz {out}")
        a(f"s_sleep {BACKOFF}")
        a(f"s_cmp_lt_u32 s{S_CNT}, {SPIN}"); a(f"s_cbranch_scc1 {lp}")
        a.label(out)
        if masked: a("s_mov_b64 exec, -1")
        a("s_waitcnt lgkmcnt(0)"); a("s_nop 1")
        a(f"s_branch {back}")
    stubs.append(stub)

def fill_loop(a, off, size, sidx, n, vdata, voff):
    srd(a, 68, K_WS, size, off)
    a(f"s_lshl_b32 s72, s{sidx}, 12")
    lp = a.newlabel("fill"); a.label(lp)
    a(f"buffer_store_dwordx4 {vr(vdata,4)}, v{voff}, s[68:71], s72 offen sc1")
    a(f"s_add_u32 s72, s72, {n*4096}"); a(f"s_cmp_lt_u32 s72, {size}"); a(f"s_cbranch_scc1 {lp}")

def poll_block(a, t, addr, k, stubs):
    poll_issue(a, t, addr); poll_check(a, t, addr, k, stubs)
```

```python
import sys
from asmdsl import *
from maps import *
from regs import *
import p1, pcol, pg1, pg2, sync

STAMPS = "--stamps" in sys.argv
NAME = "interleave_layers__spectral_gfnet__glu_gated_reglu__prompt_kernel"
HDR = open("interleave_layers__spectral_gfnet__glu_gated_reglu__prompt.s.ref").read().split("; Override launch")[0]
CODE_KB = 80
import os
W1POST = int(os.environ.get('W1POST', 8))

def zero_stamps(a, lo, hi):
    if STAMPS:
        for i in range(lo, hi): a(f"s_mov_b32 s{84+2*i}, 0")

PLAN = [[int(x) for x in os.environ.get('PLAN0', '4,5,3,4,4').split(',')], [int(x) for x in os.environ.get('PLAN1', '0,5,3,4,4').split(',')]]
PH = [int(x) for x in os.environ.get('PH', '126,189').split(',')]
E0MIN = int(os.environ.get('E0MIN', 150))
FILL1 = int(os.environ.get('FILL1', 2)); FPLAN = [int(x) for x in os.environ.get('FPLAN', '2,1,1,0,0').split(',')]
assert FILL1 + sum(FPLAN) == -(-FILL_SIZE // MB)
WPRE = int(os.environ.get('WPRE', 8))
def layer(a, l, stubs):
    final = l == 1
    VL = pcol.V_SO if not final else pcol.V_PL + 3
    if not final: wl = [pg1.w_load(ks, VL) for ks in range(32)]
    else: wl = [pg2.w_load(n // 2, n % 2, VL) for n in range(WPRE, 44)]
    fl = list(range(FILL1, 6)); fop = []
    def hook(k):
        if not final:
            for _ in range(FPLAN[k + 1]):
                a(f"s_add_u32 s5, s0, {fl.pop(0) * MB}"); fop.append(a(f"buffer_store_dwordx4 v[232:235], v{pcol.V_SO}, s[60:63], s5 offen sc1"))
        for _ in range(PLAN[l][k + 1]): pg1.emit(a, wl.pop(0))
    if final: a(f"v_mov_b32 v{VL}, v{pg2.V_WL}")
    pcol.addrs(a, l)
    pcol.idx(a)
    if final: pcol.load_filter(a); pcol.reload(a); pcol.tables3(a)
    else: pcol.tables1(a)
    a.stamp()
    a("s_waitcnt vmcnt(0)")
    if not final:
        a("s_barrier")
        a.stamp()
        sync.post(a, pcol.V_PL, 0)
        a(f"s_cmp_lg_u32 s{p1.S_TY}, 2"); a("s_cbranch_scc1 L_norelay")
        a.cond_begin(); p1.relayout(a, pcol.V_Z, pcol.V_IN); a.cond_end()
        a.label("L_norelay", 2)
        pcol.tables2(a)
        srd(a, 60, K_WS, FILL_SIZE, WS_FILL); a("s_lshl_b32 s0, s2, 2"); a(f"s_add_u32 s0, s0, s{S_W}"); a("s_lshl_b32 s0, s0, 10")
        pg1.w_setup(a); pg2.h_setup(a); a(f"v_lshlrev_b32 v{pcol.V_PL+2}, 6, v0")
        sync.poll_issue(a, pcol.V_PL, pcol.V_PL + 2)
        pcol.tables3(a)
        sync.poll_check(a, pcol.V_PL, pcol.V_PL + 2, 0, stubs); a("s_barrier")
        pcol.loads(a, l); pcol.load_filter(a); hook(-1)
    else:
        a.stamp()
        pcol.loads(a, l); hook(-1)
    a.stamp()
    op = pcol.compute(a, l, hook, stubs, lambda: a.wait_vm(fop[-1]) if fop else None)
    a.stamp()
    pg1.addrs(a, l)
    if not final: wl = [pg1.w_load(ks, pg1.V_L16) for ks in range(32 - len(wl), 32)]
    if not final: pg2.w_setup(a, False)
    pg2.wl_setup(a, pg2.V_WL)
    pg2.addrs(a, final)
    if not final:
        for _ in range(W1POST): pg1.emit(a, wl.pop(0))
    a.wait_vm(op); a("s_barrier")
    a.stamp(); a.flush()
    lst, lg2 = f"L_g1stats{l}", f"L_g2{l}"
    a(f"s_cmp_eq_u32 s{S_FT}, 22"); a(f"s_cbranch_scc1 {lst}")
    st = a.save()
    done = 44 - len(wl) if final else 0
    rest = [pg2.w_load(n // 2, n % 2) for n in range(done, 44 if final else 44 - 2 * pg2.WLATE)]
    cts = [pg2.ct_w(n) for n in range(16)] if final else []
    early = [pg2.h_load(0, i) for i in range(pg2.EARLY[l])]
    e0 = max(E0MIN, 188 - int(pg1.VGAP[l] * pg2.EARLY[l] + 0.99) - pg1.PAUSE)
    if final: extra = [(0, f) for f in rest] + [(112, f) for f in cts] + [(E0MIN, f) for f in early]
    else: extra = [(0, f) for f in wl + rest] + [(e0, f) for f in early]
    pg1.set_slots(10 if final else 8)
    pg1.mainloop(a, l, extra, [], [], stubs)
    a(f"s_branch {lg2}")
    nst_end = a.nst; st_end = a.save()
    a.restore(st); a.label(lst)
    if not final:
        a(f"v_mov_b32 v16, {OOB}"); a(f"v_mov_b32 v17, s{S_NONCE}")
        a("s_lshl_b32 s5, s2, 8"); a("v_or_b32 v18, s5, v0"); a("v_cmp_eq_u32 vcc, 0, v18"); a("v_cndmask_b32 v16, v16, 0, vcc")
        a(f"s_mov_b32 s5, {sync.FL_NONCE}")
        a(f"buffer_store_dword v17, v16, s[{SRD_FL}:{SRD_FL+3}], s5 offen sc1")
    pg1.stats(a, l, stubs, rest)
    for f in cts: pg2.emit(a, f)
    for f in early: pg2.emit(a, f)
    a("s_waitcnt vmcnt(0)")
    zero_stamps(a, 0, nst_end)
    a.restore(st_end)
    a.label(lg2, 2)
    a.flush()
    def wpre():
        pg2.w_setup(a, True)
        for n in range(WPRE): pg2.emit(a, pg2.w_load(n // 2, n % 2))
    pg2.body(a, final, stubs, wpre)
    a.flush()

def main():
    a = Asm(); a.stamps = STAMPS
    stubs = []
    if "--cyc" in sys.argv: a.stampop = "s_memtime"
    a.raw(f".globl {NAME}\n.p2align 8\n.type {NAME},@function\n{NAME}:")
    a("s_load_dwordx16 s[16:31], s[0:1], 0")
    a("s_load_dwordx4 s[32:35], s[0:1], 64")
    a("s_cmp_ge_u32 s2, 256"); a("s_cbranch_scc1 L_exit")
    if os.environ.get('SCR'): a("s_and_b32 s5, s2, 7"); a("s_lshl_b32 s5, s5, 5"); a("s_lshr_b32 s2, s2, 3"); a("s_or_b32 s2, s2, s5")
    if STAMPS: a("s_mov_b32 s100, 0"); a("v_mov_b32 v15, 0")
    a.stamp()
    a("s_getpc_b64 s[6:7]"); a("s_lshr_b32 s5, s2, 3"); a("s_lshl_b32 s5, s5, 7")
    a(f"v_min_u32 v2, {CODE_KB//4 - 1}, v0"); a("v_lshl_add_u32 v2, v2, 12, s5")
    a("global_load_dword v236, v2, s[6:7]")
    a("v_and_b32 v1, 63, v0"); a("v_lshrrev_b32 v2, 6, v0"); a(f"v_readfirstlane_b32 s{S_W}, v2")
    p1.pre(a)
    a("s_waitcnt lgkmcnt(0)")
    a.stamp()
    l5, l6, ldone = "L_p1t5", "L_p1t6", "L_p1done"
    a(f"s_cmp_ge_u32 s{p1.S_TY}, 3"); a(f"s_cbranch_scc1 {l5}")
    st = a.save(); nst = a.nst
    def consts(a):
        srd(a, SRD_FL, K_WS, sync.FL_SIZE, WS_FLAG)
        a(f"s_load_dword s{S_NONCE}, s[{SRD_FL}:{SRD_FL+1}], {sync.FL_NONCE}")
        a(f"s_mov_b32 s{S_SAN}, -2"); a(f"s_mov_b32 s{S_HI}, 0xffff0000"); a(f"s_mov_b32 s{S_TM}, 0x00010001"); a(f"s_mov_b32 s{S_NTM}, 0xfffefffe")
    def tasks():
        pcol.task(a); pg1.task(a); pg2.task(a)
        a("v_lshlrev_b32 v14, 4, v0")
        for i in range(4): a(f"v_mov_b32 v{232+i}, -1")
        srd(a, 72, K_WS, FILL_SIZE, WS_FILL); a("s_lshl_b32 s5, s2, 12")
        for i in range(FILL1):
            if i: a(f"s_add_u32 s5, s5, {MB}")
            a("buffer_store_dwordx4 v[232:235], v14, s[72:75], s5 offen sc1")
    op = p1.dma(a)
    consts(a)
    p1.body(a, op, ldone, tasks)
    nst_end = a.nst
    a.restore(st); a.label(l5)
    p1.t4(a, lambda: (consts(a), tasks(), p1.t5(a, 120)), ldone)
    a.label(ldone, 2)
    a.vm = []; a.lg = []
    p1.nonce(a)
    a.stamp(); a.flush()
    layer(a, 0, stubs)
    layer(a, 1, stubs)
    if STAMPS:
        a("s_waitcnt vmcnt(0)"); a.stamp(); a.flush()
        a("s_lshl_b32 s5, s2, 10"); a(f"s_add_u32 s5, s5, {WS_STAMP}")
        a("v_lshl_add_u32 v1, v0, 2, s5")
        a(f"global_store_dword v1, v15, s[{K_WS}:{K_WS+1}]")
    a.raw("L_exit:\n    s_endpgm")
    for s in stubs:
        a.reset(); s(a)
    a.raw(f"L_codeend:\n.fill ({CODE_KB*1024} + 256 - (L_codeend - {NAME})) / 4, 4, 0xbf810000")
    out = [HDR.rstrip("\n"), "; @launch grid=(256,1,1) block=(256,1,1) lds=163840", '.amdgcn_target "amdgcn-amd-amdhsa--gfx950"\n.text', a.text(), '.section .rodata,"a"', f""".p2align 6
.amdhsa_kernel {NAME}
  .amdhsa_next_free_vgpr 512
  .amdhsa_next_free_sgpr 102
  .amdhsa_accum_offset 256
  .amdhsa_group_segment_fixed_size 0
  .amdhsa_kernarg_size 80
  .amdhsa_user_sgpr_count 2
  .amdhsa_user_sgpr_kernarg_segment_ptr 1
  .amdhsa_system_sgpr_workgroup_id_x 1
  .amdhsa_float_denorm_mode_32 3
.end_amdhsa_kernel"""]
    return "\n".join(out)

class NoFit(Exception): pass
pg2.WLATE = int(os.environ.get("WLATE", 0)); pg2.CTLATE = int(os.environ.get("CTLATE", 0))
while True:
    try:
        txt = main(); break
    except pg1.NoFit as e:
        if e.args[0] == 0: pg2.WLATE += 1
        else: pg2.EARLY[1] -= 1
        assert pg2.WLATE <= 14 and pg2.CTLATE <= 16
print(txt); print("WLATE", pg2.WLATE, "EARLY", pg2.EARLY, file=sys.stderr)
```

```python
from asmdsl import *
from maps import *
from regs import *
import sync, pcol

import os
NTI = os.environ.get('NTI', '')
RS = 1032
EX = 32 * 1040
LDS_ST = EX + 32768
LDS_RO = 69632
S_B = 47; S_TY = 48; S_MAT = 49
V_LANE = 1
V_F32 = 16; V_M = 24; V_T = 56; V_RAW = 88; V_B = 120; V_ACC = 152; V_PK = 120; V_Y = 88
V_PL = 80; V_ONE = 84; V_PO = 72
LATE = int(os.environ.get('LATE', 2)); MK1 = int(os.environ.get('MK1', 0))
FILLB = int(os.environ.get('FILLB', 0))

def cosseq(a, x, base, om, amp, out):
    k = x + 16
    a(f"v_add_f32 v{k}, v{om}, v{om}"); a(f"v_add_f32 v{x+1}, v{base}, v{om}"); a(f"v_add_f32 v{x+2}, v{base}, v{k}"); a(f"v_add_f32 v{x+3}, v{x+1}, v{k}")
    a(f"v_cos_f32 v{k}, v{k}"); a(f"v_cos_f32 v{x}, v{base}")
    for j in (1, 2, 3): a(f"v_cos_f32 v{x+j}, v{x+j}")
    a(f"v_add_f32 v{k}, v{k}, v{k}")
    if amp:
        for j in range(4): a(f"v_mul_f32 v{x+j}, {amp}, v{x+j}")
    a(f"v_cvt_pk_bf16_f32 v{out}, v{x}, v{x+1}")
    for i in range(2, 8):
        a(f"v_pk_fma_f32 {vr(x+2*i,2)}, {vr(x+2*i-2,2)}, {vr(k,2)}, {vr(x+2*i-4,2)} op_sel_hi:[1,0,1] neg_lo:[0,0,1] neg_hi:[0,0,1]")
        a(f"v_cvt_pk_bf16_f32 v{out+i-1}, v{x+2*i-2}, v{x+2*i-1}")
    a(f"v_cvt_pk_bf16_f32 v{out+7}, v{x+14}, v{x+15}")

def gen_f32(a):
    t = V_T
    a(f"v_and_b32 v{t}, 3, v{V_LANE}")
    a(f"v_bfe_u32 v{t+1}, v{V_LANE}, 3, 2")
    a(f"v_lshl_add_u32 v{t}, v{t+1}, 2, v{t}")
    a(f"v_bfe_u32 v{t+1}, v{V_LANE}, 2, 1")
    a(f"v_cvt_f32_u32 v{t+2}, v{t}")
    a(f"v_mul_f32 v{t+2}, {fhex(1/32)}, v{t+2}")
    a(f"v_cvt_f32_u32 v{t+3}, v{t+1}")
    a(f"v_mul_f32 v{t+3}, {fhex(0.25)}, v{t+3}")
    a(f"v_and_b32 v{t+4}, 31, v{V_LANE}")
    a(f"v_cmp_eq_u32 vcc, 4, v{t+4}")
    a(f"v_lshrrev_b32 v{t+4}, 1, v{V_LANE}")
    a(f"v_and_b32 v{t+4}, 16, v{t+4}")
    a(f"v_cndmask_b32 v{t+2}, v{t+2}, 0.5, vcc")
    a(f"v_cndmask_b32 v{t+3}, v{t+3}, 0, vcc")
    a(f"v_cvt_f32_u32 v{t+4}, v{t+4}")
    a(f"v_fmac_f32 v{t+3}, v{t+4}, v{t+2}")
    a(f"s_mov_b32 s5, {fhex(1/16)}")
    cosseq(a, V_RAW, t + 3, t + 2, "s5", V_F32)

def gen_m(a, zero_dc):
    t = V_T
    a(f"v_bfe_u32 v{t+6}, v{V_LANE}, 1, 3")
    a(f"v_bfe_u32 v{t+7}, v{V_LANE}, 4, 1")
    a(f"v_add_u32 v{t+6}, v{t+6}, v{t+7}")
    a(f"v_cvt_f32_u32 v{t}, v{t+6}")
    a(f"v_mul_f32 v{t}, {fhex(1/16)}, v{t}")
    a(f"v_cvt_f32_u32 v{t+7}, v{t+7}")
    a(f"v_fma_f32 v{t+6}, v{t+7}, -2.0, 1.0")
    a(f"v_mul_f32 v{t+1}, {fhex(1/512)}, v{t+6}")
    a(f"v_lshrrev_b32 v{t+8}, 5, v{V_LANE}")
    a(f"v_cvt_f32_u32 v{t+8}, v{t+8}")
    a(f"v_and_b32 v{t+9}, 1, v{V_LANE}")
    a(f"v_cvt_f32_u32 v{t+9}, v{t+9}")
    a(f"v_fma_f32 v{t+2}, -v{t+6}, v{t+8}, v{t+9}")
    a(f"v_mul_f32 v{t+2}, {fhex(0.25)}, v{t+2}")
    a(f"v_fmamk_f32 v{t+10}, v{t+7}, {fhex(-16/512)}, v{t}")
    a(f"v_mul_f32 v{t+11}, {fhex(0.25)}, v{t+9}")
    a(f"v_cmp_eq_f32 vcc, v{t+7}, v{t+8}")
    a(f"v_mov_b32 v{t+12}, {fhex(2 ** -0.5)}")
    a(f"v_cndmask_b32 v{t+5}, 0, 1.0, vcc")
    a("s_mov_b64 vcc, 1")
    a(f"v_cndmask_b32 v{t+10}, v{t+10}, 0.5, vcc")
    a(f"v_cndmask_b32 v{t+5}, v{t+5}, v{t+12}, vcc")
    a("s_mov_b64 vcc, 2")
    a(f"v_cndmask_b32 v{t+11}, v{t+11}, 0, vcc")
    a(f"v_cndmask_b32 v{t+5}, v{t+5}, {'0' if zero_dc else 'v%d' % (t+12)}, vcc")
    a(f"s_lshl_b32 s5, s{S_W}, 2")
    a(f"v_cvt_f32_u32 v{t+13}, s5")
    a(f"v_fma_f32 v{t+3}, v{t+13}, v{t+1}, v{t}")
    a(f"s_cmp_eq_u32 s{S_W}, 0")
    a(f"s_cselect_b64 vcc, -1, 0")
    a(f"v_cndmask_b32 v{t+10}, v{t+3}, v{t+10}, vcc")
    a(f"v_cndmask_b32 v{t+11}, v{t+2}, v{t+11}, vcc")
    a(f"v_cndmask_b32 v{t+5}, 1.0, v{t+5}, vcc")
    for gg in range(4):
        om, ph = (t + 10, t + 11) if gg == 0 else (t + 3, t + 2)
        if gg: a(f"v_add_f32 v{t+3}, v{t+3}, v{t+1}")
        cosseq(a, V_RAW, ph, om, f"v{t+5}" if gg == 0 else None, V_M + 8 * gg)

def tr_addr(a, dst, rowstride, tmp):
    a(f"v_lshrrev_b32 v{tmp}, 5, v{V_LANE}")
    a(f"v_bfe_u32 v{tmp+1}, v{V_LANE}, 2, 2")
    a(f"v_lshl_add_u32 v{tmp}, v{tmp}, 2, v{tmp+1}")
    a(f"v_mul_u32_u24 v{dst}, {rowstride}, v{tmp}")
    a(f"v_and_b32 v{tmp}, 1, v{V_LANE}")
    a(f"v_lshl_add_u32 v{dst}, v{tmp}, 4, v{dst}")
    a(f"v_bfe_u32 v{tmp}, v{V_LANE}, 1, 1")
    a(f"v_lshl_add_u32 v{dst}, v{tmp}, 3, v{dst}")
    a(f"v_bfe_u32 v{tmp}, v{V_LANE}, 4, 1")
    a(f"v_lshl_add_u32 v{dst}, v{tmp}, 5, v{dst}")

def decode(a):
    a("s_lshr_b32 s5, s2, 3"); a("s_and_b32 s52, s2, 7")
    a(f"s_mov_b32 s{S_TY}, 0"); a("s_mov_b32 s6, 0"); a("s_mov_b32 s7, 8"); a("s_mov_b32 s56, 64")
    for ty, first, per, lim in ((1, 8, 11, 86), (2, 19, 6, 43), (3, 25, 7, 56)):
        a(f"s_cmp_ge_u32 s5, {first}")
        a(f"s_cselect_b32 s{S_TY}, {ty}, s{S_TY}"); a(f"s_cselect_b32 s6, {first}, s6"); a(f"s_cselect_b32 s7, {per}, s7"); a(f"s_cselect_b32 s56, {lim}, s56")
    a(f"s_mul_i32 s{S_B}, s52, s7"); a(f"s_add_u32 s{S_B}, s{S_B}, s5"); a(f"s_sub_u32 s{S_B}, s{S_B}, s6")
    a("s_add_u32 s6, s5, 39"); a("s_add_u32 s7, s5, 38"); a(f"s_cmp_eq_u32 s{S_TY}, 1"); a("s_cselect_b32 s6, s6, s7")
    a(f"s_cmp_ge_u32 s{S_B}, s56"); a(f"s_cselect_b32 s{S_TY}, 3, s{S_TY}"); a(f"s_cselect_b32 s{S_B}, s6, s{S_B}")

def nonce(a):
    a("s_waitcnt lgkmcnt(0)"); a(f"s_add_u32 s{S_NONCE}, s{S_NONCE}, 16")
def dma(a, offs, lds=lambda i: f"s59, {i*RS}"):
    for i in range(8):
        a(f"s_add_u32 m0, {lds(i)}"); a(f"s_add_u32 s7, {offs(i)}")
        op = a(f"buffer_load_dwordx4 v4, s[8:11], s7 offen {NTI} lds")
    return op
def ex_addrs(a):
    a(f"s_lshr_b32 s5, s{S_W}, 1"); a("s_lshl_b32 s5, s5, 10")
    a(f"s_and_b32 s6, s{S_W}, 1"); a("s_lshl_b32 s6, s6, 3")
    a("s_add_u32 s5, s5, s6"); a(f"s_add_u32 s5, s5, {EX}")
    a(f"v_lshl_add_u32 v2, v{V_LANE}, 4, s5")
    a(f"s_lshl_b32 s5, s{S_W}, 13"); a(f"s_add_u32 s5, s5, {EX}")
    a(f"v_lshl_add_u32 v3, v{V_LANE}, 4, s5")
SEQ = [(ks, j) for ks in range(2) for j in range(4)]
def s1(a, ks, j):
    c = "0" if ks == 0 else vr(V_ACC + 16 * j, 16)
    a(f"v_mfma_f32_32x32x16_bf16 {vr(V_ACC+16*j,16)}, {vr(V_F32+4*ks,4)}, {vr(V_B+8*j+4*ks,4)}, {c}")
def raw_addr(a):
    a(f"v_and_b32 v5, 31, v{V_LANE}"); a(f"v_mul_u32_u24 v5, {RS}, v5")
    a(f"v_lshrrev_b32 v8, 5, v{V_LANE}"); a("v_lshl_add_u32 v5, v8, 9, v5")
    a(f"s_lshl_b32 s5, s{S_W}, 3"); a("v_add_u32 v5, s5, v5")
    a("s_mov_b32 s64, 0x05040100"); a("s_mov_b32 s65, 0x07060302")
def stage1_rows(a, mid=None):
    for j in range(16): a(f"ds_read_b64 {vr(V_RAW+2*j,2)}, v5 offset:{j*32}")
    if mid: mid()
    def perm(ks, j):
        for i in range(4):
            ev, od = V_RAW + 2 * (8 * ks + 2 * i), V_RAW + 2 * (8 * ks + 2 * i + 1)
            a(f"v_perm_b32 v{V_B+8*j+4*ks+i}, v{od + j//2}, v{ev + j//2}, s{64 + j%2}")
    perm(*SEQ[0])
    for n in range(8):
        if n < 7: perm(*SEQ[n + 1])
        s1(a, *SEQ[n])
def exchange(a, dots=()):
    dots = list(dots)
    for _ in range(10):
        if dots: a(dots.pop(0))
    for g in range(16): a(f"v_cvt_pk_bf16_f32 v{V_PK+2*g}, v{V_ACC+g}, v{V_ACC+16+g}")
    for g in range(16):
        a(f"v_cvt_pk_bf16_f32 v{V_PK+2*g+1}, v{V_ACC+32+g}, v{V_ACC+48+g}")
        a(f"ds_write_b64 v2, {vr(V_PK+2*g,2)} offset:{g*2048}")
        if dots: a(dots.pop(0))
    for d in dots: a(d)
def stage2(a, y_is_a, after, mid=None):
    a("s_waitcnt lgkmcnt(0)"); a("s_barrier")
    a.stamp()
    for i in range(8): a(f"ds_read_b128 {vr(V_Y+4*i,4)}, v3 offset:{i*1024}")
    if mid: mid()
    for gg in range(5):
        if gg < 4:
            for ks in range(2):
                c = "0" if ks == 0 else vr(V_ACC + 16 * gg, 16)
                y = vr(V_Y + 8 * gg + 4 * ks, 4); m = vr(V_M + 8 * gg + 4 * ks, 4)
                A, B = (y, m) if y_is_a else (m, y)
                a(f"v_mfma_f32_32x32x16_bf16 {vr(V_ACC+16*gg,16)}, {A}, {B}, {c}")
        if gg:
            for j in range(8): a(f"v_cvt_pk_bf16_f32 v{V_PK+8*(gg-1)+j}, v{V_ACC+16*(gg-1)+2*j}, v{V_ACC+16*(gg-1)+2*j+1}")
            after(gg - 1)
def store(a, gg, step, R=V_PK, v=4):
    a(f"buffer_store_dwordx4 {vr(R+8*gg,4)}, v{v}, s[12:15], s60 offen {ST}")
    a(f"buffer_store_dwordx4 {vr(R+8*gg+4,4)}, v{v}, s[12:15], s60 offen offset:1024 {ST}")
    if gg < 3: a(f"s_add_u32 s60, s60, {step}")

def t1_head(a):
    rowbase(a, 56, S_B)
    a(f"s_and_b32 s6, s{S_W}, 2"); a("s_lshl_b32 s6, s6, 10"); a("s_add_u32 s56, s56, s6"); a(f"s_and_b32 s6, s{S_W}, 1"); a("s_lshl_b32 s6, s6, 17"); a("s_add_u32 s56, s56, s6")
    a(f"v_lshlrev_b32 v4, 4, v{V_LANE}"); a(f"s_mul_i32 s59, s{S_W}, {8*RS}")
def t1_dma(a):
    srd(a, 8, K_X, S * D * 2)
    return dma(a, lambda i: f"s56, {(i%4)*32768 + (i//4)*1024}")
def t1(a, op, prep, stubs):
    t = V_T
    gen_f32(a); raw_addr(a); ex_addrs(a); gen_m(a, False)
    srd(a, 12, K_WS, S * D * 2, WS_X); a(f"s_lshl_b32 s5, s{S_W}, 13"); a(f"s_lshl_b32 s60, s{S_B}, 15"); a("s_add_u32 s60, s60, s5")
    for i in range(4): a(f"v_mov_b32 v{V_ONE+i}, 1")
    a("s_add_u32 s61, s60, 4096")
    mk = [f"buffer_store_dwordx4 {vr(V_ONE,4)}, v4, s[12:15], s{60 + i//4} offen offset:{1024*(i%4)} {ST}" for i in range(8)]
    a(f"s_mul_i32 s5, s{S_W}, 10240"); a(f"s_add_u32 s5, s5, {LDS_RO}")
    a(f"v_and_b32 v11, 31, v{V_LANE}"); a("v_mul_u32_u24 v11, 80, v11"); a(f"v_add_u32 v10, {LDS_ST}, v11"); a("v_lshl_add_u32 v11, v8, 4, v11"); a("v_add_u32 v11, s5, v11")
    a(f"v_lshrrev_b32 v12, 2, v{V_LANE}"); a("v_mul_u32_u24 v12, 80, v12"); a(f"v_and_b32 v7, 3, v{V_LANE}"); a("v_lshl_add_u32 v12, v7, 4, v12"); a("v_add_u32 v12, s5, v12")
    a(f"v_lshrrev_b32 v9, 5, v0"); a("v_lshl_add_u32 v9, v9, 3, v10")
    a(f"v_bfe_u32 v13, v0, 1, 1"); a(f"v_bfe_u32 v7, v0, 3, 1"); a("v_lshl_add_u32 v13, v7, 1, v13"); a("v_lshlrev_b32 v13, 10, v13")
    a(f"v_bfe_u32 v7, v0, 2, 1"); a("v_lshl_add_u32 v13, v7, 4, v13"); a(f"v_bfe_u32 v7, v0, 4, 1"); a("v_lshl_add_u32 v13, v7, 5, v13")
    a(f"v_and_b32 v7, 1, v0"); a("v_lshl_add_u32 v13, v7, 3, v13"); a("v_lshrrev_b32 v7, 5, v0"); a("v_lshl_add_u32 v13, v7, 14, v13")
    srd(a, 68, K_WS, 16384, WS_SS0)
    a(f"s_lshr_b32 s5, s{S_B}, 4"); a("s_lshl_b32 s62, s5, 12"); a(f"s_and_b32 s6, s{S_B}, 15"); a("s_lshl_b32 s6, s6, 6"); a("s_add_u32 s62, s62, s6")
    nonce(a); sync.post_prep(a, V_PO, 0, False); a(f"s_lshl_b32 s63, s{S_B}, 6"); a(f"s_add_u32 s63, s63, {sync.FL_M}")
    for _ in range(MK1): a(mk.pop(0))
    a(f"v_mov_b32 v{t}, 0"); a(f"v_mov_b32 v{t+2}, 0")
    a.stamp(); a.wait_vm(op); a("s_barrier"); a.stamp()
    stage1_rows(a, lambda: [a(m) for m in mk])
    exchange(a, [f"v_dot2c_f32_bf16 v{t + 2*(i%2)}, v{V_RAW+i}, v{V_RAW+i}" for i in range(32)])
    a(f"v_add_f32 v{t+1}, v{V_ACC}, v{V_ACC+16}"); a(f"v_add_f32 v{t+3}, v{V_ACC+32}, v{V_ACC+48}")
    a(f"v_pk_add_f32 {vr(t,2)}, {vr(t,2)}, {vr(t+2,2)}")
    a(f"ds_write_b64 v9, {vr(t,2)}")
    def after(gg):
        if gg == 0:
            for i in range(4): a(f"ds_read_b128 {vr(t+4*i,4)}, v10 offset:{i*16}")
        for k in range(2):
            a(f"v_and_b32 v{V_PK+8*gg+4*k}, -2, v{V_PK+8*gg+4*k}")
            a(f"ds_write_b128 v11, {vr(V_PK+8*gg+4*k,4)} offset:{2560*gg + 32*k}")
        for k in range(2): a(f"ds_read_b128 {vr(V_M+8*gg+4*k,4)}, v12 offset:{2560*gg + 1280*k}")
        if gg == 1: a("s_waitcnt vmcnt(0)"); a("s_barrier"); sync.post_do(a, V_PO, 63)
        if gg: store(a, gg - 1, 2048, V_M)
    stage2(a, True, after)
    for i in range(4): a(f"v_add_f32 v{t+4*i}, v{t+4*i}, v{t+4*i+2}")
    a(f"v_pk_add_f32 {vr(t,2)}, {vr(t,2)}, {vr(t+4,2)}"); a(f"v_pk_add_f32 {vr(t+8,2)}, {vr(t+8,2)}, {vr(t+12,2)}")
    a(f"v_pk_add_f32 {vr(t,2)}, {vr(t,2)}, {vr(t+8,2)}")
    a(f"v_mul_f32 v{t+1}, v{t+1}, v{t+1}")
    a(f"v_fma_f32 v{t}, v{t+1}, -0.5, v{t}")
    a(f"v_max_f32 v{t}, 0, v{t}")
    a(f"v_mov_b32 v{t+1}, s{S_NONCE}")
    a(f"buffer_store_dwordx2 {vr(t,2)}, v13, s[68:71], s62 offen {ST}")
    store(a, 3, 0, V_M)
    a.stamp()
    prep(lambda: poll0_issue(a))

def poll0_issue(a):
    a(f"s_and_b32 s5, s{S_W}, 1"); a("s_lshl_b32 s5, s5, 1"); a(f"s_lshr_b32 s6, s{S_W}, 1"); a("s_add_u32 s5, s5, s6"); a("s_lshl_b32 s5, s5, 10"); a(f"s_add_u32 s5, s5, {sync.FL_M}")
    a(f"v_and_b32 v{V_PL+1}, 15, v{V_LANE}"); a(f"v_lshl_add_u32 v{V_PL+1}, v{V_PL+1}, 6, s5")
    sync.poll_issue(a, V_PL, V_PL + 1)

def t3(a, prep, stubs):
    if LATE: gen_f32(a)
    if LATE > 1: gen_m(a, True)
    a(f"s_cmp_ge_u32 s{S_B}, 43"); a(f"s_cselect_b32 s{S_MAT}, 256, 0"); a("s_cselect_b32 s7, 43, 0"); a(f"s_cselect_b64 s[8:9], s[{K_WU}:{K_WU+1}], s[{K_WG}:{K_WG+1}]"); a(f"s_sub_u32 s51, s{S_B}, s7")
    a(f"s_mov_b32 s10, {F*D*2}"); a("s_mov_b32 s11, 0x20000")
    a(f"v_lshrrev_b32 v4, 2, v{V_LANE}"); a(f"v_mul_u32_u24 v4, {16*2752}, v4"); a(f"v_and_b32 v5, 3, v{V_LANE}"); a("v_lshl_add_u32 v4, v5, 4, v4")
    a(f"s_mul_i32 s56, s{S_W}, {4*2752}"); a("s_lshl_b32 s6, s51, 6"); a("s_add_u32 s56, s56, s6"); a(f"s_mul_i32 s59, s{S_W}, {8*RS}")
    a("s_bitcmp1_b32 s51, 0"); a(f"s_cselect_b32 s6, {2*2752}, 0"); a(f"s_cselect_b32 s7, {4*RS}, 0")
    a("s_sub_u32 s57, s56, s6"); a("s_add_u32 s56, s56, s6"); a("s_add_u32 s60, s59, s7"); a("s_sub_u32 s61, s59, s7")
    op = dma(a, lambda i: f"s{56 + i//4}, {((i%2)*256 + i//2)*2752}", lambda i: f"s{60 + i//4}, {i*RS}")
    if not LATE: gen_f32(a)
    if LATE < 2: gen_m(a, True)
    ex_addrs(a); nonce(a)
    srd(a, 12, K_WS, NG * 32768, WS_W1F)
    a("s_lshl_b32 s60, s51, 16"); a(f"s_lshl_b32 s5, s{S_W}, 13"); a("s_add_u32 s60, s60, s5"); a(f"s_add_u32 s60, s60, s{S_MAT}")
    a(f"v_and_b32 v6, 47, v{V_LANE}"); a("v_lshlrev_b32 v6, 4, v6"); a(f"v_bfe_u32 v7, v{V_LANE}, 4, 1"); a("v_lshl_add_u32 v6, v7, 15, v6")
    a(f"v_lshrrev_b32 v5, 5, v{V_LANE}"); a(f"v_mul_u32_u24 v5, {RS}, v5")
    a(f"v_bfe_u32 v8, v{V_LANE}, 2, 2"); a("v_lshl_add_u32 v5, v8, 6, v5"); a("v_lshl_add_u32 v5, v7, 5, v5")
    a(f"v_and_b32 v8, 3, v{V_LANE}"); a("v_lshl_add_u32 v5, v8, 3, v5"); a("v_add_u32 v5, s59, v5")
    prep()
    a.stamp(); a.wait_vm(op); a.stamp()
    for ks, j in SEQ:
        for rho in range(2):
            a(f"ds_read_b64_tr_b16 {vr(V_B+8*j+4*ks+2*rho,2)}, v5 offset:{2*j*RS + (8*ks+4*rho)*64}")
    for ks, j in SEQ: s1(a, ks, j)
    exchange(a)
    stage2(a, False, lambda gg: store(a, gg, 2048, V_PK, 6))
    a.stamp(); poll0_issue(a)

def t2(a, prep, stubs):
    if LATE: gen_f32(a)
    if LATE > 1: gen_m(a, False)
    srd(a, 8, K_WD, F * D * 2)
    a(f"v_lshlrev_b32 v4, 4, v{V_LANE}"); a(f"s_mul_i32 s59, s{S_W}, {8*RS}")
    a(f"s_lshl_b32 s56, s{S_B}, 15"); a(f"s_lshl_b32 s6, s{S_W}, 13"); a("s_add_u32 s56, s56, s6")
    op = dma(a, lambda i: f"s56, {i*1024}")
    if not LATE: gen_f32(a)
    if LATE < 2: gen_m(a, False)
    raw_addr(a); ex_addrs(a); nonce(a)
    srd(a, 12, K_WS, 16 * NG * 1024, WS_WDP)
    a(f"s_mul_i32 s60, s{S_W}, {4*NG*1024}"); a(f"s_lshl_b32 s6, s{S_B}, 11"); a("s_add_u32 s60, s60, s6")
    srd(a, 68, K_WS, 16 * 118 * 1024, WS_WDF)
    a(f"s_mul_i32 s62, s{S_W}, {4*118*1024}"); a("s_add_u32 s62, s62, s6")
    tr_addr(a, 9, RS, 10); a(f"s_lshl_b32 s5, s{S_W}, 8"); a("v_add_u32 v9, s5, v9")
    prep()
    a.stamp(); a.wait_vm(op); a("s_barrier"); a.stamp()
    R = V_T
    def rl(h):
        for q in (2 * h, 2 * h + 1):
            for aa in range(2):
                for rho in range(2):
                    a(f"ds_read_b64_tr_b16 {vr(R+8*(q%2)+4*aa+2*rho,2)}, v9 offset:{(16*aa+8*rho)*RS + 64*q}")
    def rs(h):
        for q in range(2):
            for aa in range(2): a(f"buffer_store_dwordx4 {vr(R+8*q+4*aa,4)}, v4, s[68:71], s62 offen offset:{aa*1024} {ST}")
            a(f"s_add_u32 s62, s62, {118*1024}")
    stage1_rows(a, lambda: rl(0))
    rs(0); rl(1)
    exchange(a)
    rs(1)
    stage2(a, True, lambda gg: store(a, gg, NG * 1024))
    a.stamp(); poll0_issue(a)

BS = 1056; US = 16 * BS
def t4_dma(a):
    srd(a, 8, K_WR, S * 257 * 2); srd(a, 12, K_WI, S * 257 * 2)
    for k in range(2): t4_unit(a, k, "s63", 8 * 514 * k)
def t4_pre(a):
    a(f"v_lshrrev_b32 v2, 5, v{V_LANE}"); a(f"v_mul_u32_u24 v2, 514, v2"); a(f"v_and_b32 v3, 31, v{V_LANE}"); a("v_lshl_add_u32 v2, v3, 4, v2")
    a(f"s_and_b32 s5, s{S_B}, 32"); a(f"s_bfe_u32 s6, s{S_B}, 0x10004"); a("s_lshl_b32 s6, s6, 2"); a("s_add_u32 s5, s5, s6")
    a(f"s_and_b32 s6, s{S_B}, 1"); a("s_lshl_b32 s6, s6, 4"); a("s_add_u32 s5, s5, s6")
    a(f"s_and_b32 s6, s{S_B}, 14"); a("s_lshl_b32 s6, s6, 7"); a("s_add_u32 s5, s5, s6")
    a(f"s_lshl_b32 s62, s{S_W}, 6"); a("s_add_u32 s5, s5, s62"); a("s_mul_i32 s63, s5, 514"); a("s_add_u32 s63, s63, 2")
    a(f"s_mul_i32 s64, s{S_W}, {2*BS}")
def t4_unit(a, k, base, off):
    for gp in range(2):
        a(f"s_add_u32 s5, {base}, {off + 2*514*gp}")
        for mat in range(2):
            a(f"s_add_u32 m0, s64, {k*US + gp*8*BS + mat*BS}")
            a(f"buffer_load_dwordx4 v2, s[{8+4*mat}:{11+4*mat}], s5 offen {NTI} lds")
def t4(a, mid, prep):
    OUT = 16; AD = 96
    l3 = a.newlabel("t4no3")
    a(f"s_cmp_lt_u32 s{S_B}, 59"); a(f"s_cbranch_scc1 {l3}")
    a("s_mul_i32 s6, s62, 514")
    for k in range(2): t4_unit(a, 2 + k, "s6", (36 + 7 * 256 + 16 + 8 * k) * 514 + 2)
    a.label(l3)
    a.stamp()
    a(f"s_lshl_b32 s60, s{S_B}, 7"); a(f"s_movk_i32 s62, {63*128}"); a(f"s_sub_u32 s61, s{S_B}, 59"); a("s_lshl_b32 s61, s61, 4")
    a(f"v_lshrrev_b32 v3, 3, v{V_LANE}"); a(f"s_lshl_b32 s5, s{S_W}, 6"); a("s_add_u32 s5, s5, 1"); a("v_add_u32 v3, s5, v3")
    a(f"v_and_b32 v4, 7, v{V_LANE}"); a("v_lshlrev_b32 v4, 4, v4"); a(f"s_movk_i32 s7, {WTS}")
    for ct in range(10):
        a(f"v_add_u32 v5, {8*ct}, v3" if ct < 8 else f"v_add3_u32 v5, s61, v3, {8*(ct-8)}")
        a("v_and_b32 v6, 31, v5"); a("v_sub_u32 v7, 32, v6"); a("v_min_u32 v6, v6, v7"); a("v_and_b32 v6, 15, v6")
        a("v_bfe_u32 v7, v5, 5, 3"); a("v_lshl_add_u32 v6, v6, 4, v7"); a("v_bfe_u32 v7, v5, 4, 1"); a("v_lshl_add_u32 v6, v7, 3, v6")
        a(f"v_mad_u32_u24 v{AD+ct}, v6, s7, v4")
    a(f"v_lshrrev_b32 v5, 5, v{V_LANE}"); a(f"v_mul_u32_u24 v5, {8*BS}, v5"); a(f"v_bfe_u32 v6, v{V_LANE}, 4, 1"); a("v_lshl_add_u32 v5, v6, 9, v5")
    a(f"v_bfe_u32 v6, v{V_LANE}, 2, 2"); a(f"s_movk_i32 s5, {BS}"); a("v_mad_u32_u24 v5, v6, s5, v5")
    a(f"v_and_b32 v6, 3, v{V_LANE}"); a("v_lshl_add_u32 v5, v6, 3, v5")
    a(f"s_lshl_b32 s5, s{S_W}, 7"); a("v_add_u32 v5, s5, v5")
    a(f"s_mul_i32 s5, s{S_W}, {64*144}"); a(f"s_add_u32 s5, s5, {LDS_RO}")
    a(f"v_and_b32 v6, 15, v{V_LANE}"); a("v_mul_u32_u24 v6, 144, v6"); a(f"v_and_b32 v7, 48, v{V_LANE}"); a("v_add3_u32 v6, v6, v7, s5")
    a(f"v_lshrrev_b32 v7, 3, v{V_LANE}"); a("v_mul_u32_u24 v7, 144, v7"); a("v_add3_u32 v7, v7, v4, s5")
    mid()
    srd(a, 72, K_WS, FILL_SIZE, WS_FILL); a(f"s_lshl_b32 s5, s{S_B}, 12"); a("v_lshlrev_b32 v8, 4, v0")
    for i in range(4): a(f"v_mov_b32 v{V_ONE+i}, -1")
    a(f"buffer_store_dwordx4 {vr(V_ONE,4)}, v8, s[72:75], s5 offen {ST}")
    nonce(a); sync.post_prep(a, 108, 0, False); a(f"s_lshl_b32 s63, s{S_B}, 6"); a(f"s_add_u32 s63, s63, {sync.FL_0}")
    srd(a, 68, K_WS, 256 * WTS, WS_WT)
    def trs(k, o):
        for ct in range(4):
            for rho in range(2): a(f"ds_read_b64_tr_b16 {vr(OUT+16*o+4*ct+2*rho,2)}, v5 offset:{k*US + rho*4*BS + ct*32}")
    def wrs(o):
        for ct in range(4): a(f"ds_write_b128 v6, {vr(OUT+16*o+4*ct,4)} offset:{2304*ct + 64*o}")
    def outs(so):
        for ct in range(8): a(f"ds_read_b128 {vr(OUT+32+4*ct,4)}, v7 offset:{1152*ct}")
        for ct in range(8): a(f"buffer_store_dwordx4 {vr(OUT+32+4*ct,4)}, v{AD+ct}, s[68:71], s{so} offen {ST}")
    a("s_waitcnt vmcnt(0)"); a("s_barrier")
    a.stamp()
    trs(0, 0); trs(1, 1); wrs(0); wrs(1); outs(60)
    lt5, lend = a.newlabel("t4t5"), a.newlabel("t4end")
    a(f"s_cmp_lt_u32 s{S_B}, 59"); a(f"s_cbranch_scc1 {lt5}")
    a("s_lshl_b32 s5, s61, 1"); a(f"s_add_u32 s5, s5, {2*US}"); a("v_add_u32 v5, s5, v5")
    for o in range(2):
        for rho in range(2): a(f"ds_read_b64_tr_b16 {vr(OUT+4*o+2*rho,2)}, v5 offset:{o*US + rho*4*BS}")
    for o in range(2): a(f"ds_write_b128 v6, {vr(OUT+4*o,4)} offset:{64*o}")
    for ct in range(2): a(f"ds_read_b128 {vr(OUT+8+4*ct,4)}, v7 offset:{1152*ct}")
    for ct in range(2): a(f"buffer_store_dwordx4 {vr(OUT+8+4*ct,4)}, v{AD+8+ct}, s[68:71], s62 offen {ST}")
    a.label(lt5, 2)
    def mid5():
        a("s_waitcnt vmcnt(0)"); a("s_barrier")
        a.stamp()
        sync.post_do(a, 108, 63)
    prep(mid5)
    lend = a.newlabel("not5"); a(f"s_cmp_ge_u32 s{S_B}, 32"); a(f"s_cbranch_scc1 {lend}")
    t5(a, 120, lambda: None)
    a.label(lend, 2)
    a.stamp(); poll0_issue(a)

def t5(a, b, mid):
    d, hh, l16, c0, c1 = b, b + 1, b + 2, b + 3, b + 4
    PK = b + 8; V = b + 16
    a(f"s_lshr_b32 s51, s{S_B}, 1"); a(f"s_and_b32 s6, s{S_B}, 1"); a("s_lshl_b32 s6, s6, 2"); a(f"s_add_u32 s6, s6, s{S_W}"); a("s_lshl_b32 s6, s6, 1")
    srd(a, 12, K_WS, 16 * 118 * 1024, WS_WDF)
    a(f"v_and_b32 v{d}, 19, v{V_LANE}"); a(f"v_bfe_u32 v{hh}, v{V_LANE}, 3, 1"); a(f"v_lshl_add_u32 v{d}, v{hh}, 2, v{d}")
    a(f"v_bfe_u32 v{hh}, v{V_LANE}, 2, 1"); a(f"v_lshl_add_u32 v{d}, v{hh}, 3, v{d}")
    a("s_lshl_b32 s5, s51, 5"); a(f"v_add_u32 v{d}, s5, v{d}")
    a(f"v_lshrrev_b32 v{hh}, 5, v{V_LANE}"); a(f"v_lshlrev_b32 v{hh}, 6, v{hh}")
    a(f"v_lshlrev_b32 v{l16}, 4, v{V_LANE}")
    a(f"s_mul_i32 s5, s51, {118*1024}"); a("s_lshl_b32 s7, s6, 11"); a("s_add_u32 s5, s5, s7"); a(f"s_add_u32 s5, s5, {86*1024}")
    for rep in range(2):
        a("s_cmp_eq_u32 s6, 0"); a("s_cselect_b32 s7, 16, s6"); a("s_sub_u32 s7, 32, s7")
        for aa in range(2):
            for j in range(4):
                t = V + 8 * aa + 2 * j
                a(f"s_add_u32 s56, s{6 + aa}, {32 * (4 * (j // 2) + j % 2)}")
                a(f"v_add_u32 v{t}, s56, v{hh}")
                a(f"v_mul_u32_u24 v{t}, v{t}, v{d}")
                a(f"v_and_b32 v{t}, 511, v{t}")
                a(f"v_cvt_f32_u32 v{t}, v{t}")
                a(f"v_mul_f32 v{t}, {fhex(1/512)}, v{t}")
                a(f"v_sin_f32 v{t+1}, v{t}")
                a(f"v_cos_f32 v{t}, v{t}")
                a(f"v_mul_f32 v{t+1}, {fhex(-1/16)}, v{t+1}")
                a(f"v_mul_f32 v{t}, {fhex(1/16)}, v{t}")
        a("s_cmp_eq_u32 s6, 0"); a("s_cselect_b32 vcc_lo, -1, 0"); a("s_mov_b32 vcc_hi, 0")
        a(f"v_mov_b32 v{c0}, {fhex(1/16/2**0.5)}")
        a(f"v_lshlrev_b32 v{c1}, 31, v{d}"); a(f"v_xor_b32 v{c1}, v{c1}, v{c0}")
        a(f"v_cndmask_b32 v{V}, v{V}, v{c1}, vcc"); a(f"v_cndmask_b32 v{V+1}, v{V+1}, v{c0}, vcc")
        for j in range(8): a(f"v_cvt_pk_bf16_f32 v{PK+j}, v{V+2*j}, v{V+1+2*j}")
        if rep == 0: mid()
        a(f"buffer_store_dwordx4 {vr(PK,4)}, v{l16}, s[12:15], s5 offen {ST}")
        a(f"buffer_store_dwordx4 {vr(PK+4,4)}, v{l16}, s[12:15], s5 offen offset:1024 {ST}")
        a("s_add_u32 s5, s5, 2048"); a("s_add_u32 s6, s6, 1")
```

```python
from asmdsl import *
from maps import *
from regs import *
import sync
LDS_Z = 114688
LDS_C = LDS_Z + 8192
LDS_F = LDS_C + 8192
FO = LDS_F - LDS_Z
L = 1
V_XO = 8; V_SO = 9; V_L16 = 10; V_AD = 11; V_CR = 12; V_WO = 13; V_CK = 14
V_IN = 16; V_WF = 24
V_CS = 32; V_SN = 40; V_NS = 48
V_C32 = 56; V_S32 = 64; V_N32 = 72
V_A = 112
V_T = 128
V_PL = 152
V_RF = 160
V_Z = 176
def setmap(layer):
    global V_T1C, V_T1S, V_T2C, V_T2S, V_SEL, PREG
    b = (216, 80)[layer]
    V_T1C, V_T1S, V_T2C, V_T2S = b, b + 8, b + 16, b + 24; V_SEL = (248, 144)[layer]
    PREG = [V_CS + 4 * i for i in range(6)] + [V_T1C + 4 * i for i in range(4)] + [V_SEL, V_SEL + 4]

def mf(a, d, A, B, first):
    a(f"v_mfma_f32_16x16x32_bf16 {vr(d,4)}, {vr(A,4)}, {vr(B,4)}, {'0' if first else vr(d,4)}")

def task(a):
    a(f"s_and_b32 s5, s2, 7"); a("s_lshl_b32 s5, s5, 5"); a(f"s_lshr_b32 s{S_P}, s2, 3"); a(f"s_add_u32 s{S_P}, s{S_P}, s5")
    a(f"s_lshr_b32 s5, s{S_W}, 1"); a("s_lshl_b32 s5, s5, 5"); a(f"s_and_b32 s6, s{S_W}, 1"); a("s_lshl_b32 s6, s6, 2"); a(f"s_add_u32 s{S_KB}, s5, s6")

def xaddr(a, v, sx, ss):
    a(f"v_lshrrev_b32 v{v}, 2, v{L}"); a(f"v_lshlrev_b32 v{v}, 11, v{v}"); a(f"v_and_or_b32 v{v}, v{L}, 3, v{v}"); a(f"v_lshlrev_b32 v{v}, 4, v{v}")
    a(f"s_and_b32 s6, s{S_W}, 1"); a(f"s_lshr_b32 s7, s{S_W}, 1"); a("s_lshl_b32 s7, s7, 10")
    a(f"s_lshl_b32 s{ss}, s6, 11"); a(f"s_add_u32 s{ss}, s{ss}, s7")
    a(f"s_lshl_b32 s{sx}, s{S_P}, 7"); a(f"s_lshl_b32 s6, s{ss}, 9"); a(f"s_add_u32 s{sx}, s{sx}, s6")
def addrs(a, layer):
    a(f"v_lshlrev_b32 v{V_SO}, 4, v{L}"); a(f"v_add_u32 v{V_L16}, {LDS_Z}, v{V_SO}")
    xaddr(a, V_XO, 65, 66)
    if layer == 0: a("s_lshl_b32 s66, s66, 2")
    a(f"s_mul_i32 s67, s{S_P}, {WTS}"); a(f"s_lshl_b32 s6, s{S_W}, 11"); a("s_add_u32 s67, s67, s6")
    srd(a, 8, K_WS, S * D * 2, WS_X)
    srd(a, 12, K_WS, 32768, (WS_SS0, WS_SS2)[layer])
    srd(a, 68, K_WS, 256 * WTS, WS_WT)

def loads(a, layer):
    a(f"buffer_load_dwordx4 {vr(V_IN,4)}, v{V_XO}, s[8:11], s65 offen {LD}")
    a(f"buffer_load_dwordx4 {vr(V_IN+4,4)}, v{V_XO}, s[8:11], s65 offen offset:64 {LD}")
    if layer == 0:
        for i in range(4): a(f"buffer_load_dwordx4 {vr(V_Z+4*i,4)}, v{V_SO}, s[12:15], s66 offen offset:{1024*i} {LD}")
        return
    for i in range(8):
        if i: a(f"s_add_u32 s7, s66, {4096*i}")
        a(f"buffer_load_dwordx4 {vr(V_Z+4*i,4)}, v{V_SO}, s[12:15], {'s7' if i else 's66'} offen {LD}")
def load_filter(a):
    a(f"buffer_load_dwordx4 {vr(V_WF,4)}, v{V_SO}, s[68:71], s67 offen {LD}")
    a(f"buffer_load_dwordx4 {vr(V_WF+4,4)}, v{V_SO}, s[68:71], s67 offen offset:1024 {LD}")

I = 168; SX = 176; SO = 192
def idx(a):
    a(f"v_and_b32 v{I}, 15, v{L}"); a(f"v_lshrrev_b32 v{I+1}, 4, v{L}")
    a(f"v_lshrrev_b32 v{I+2}, 2, v{I}"); a(f"v_and_b32 v{I+3}, 3, v{I}"); a(f"v_lshl_add_u32 v{I+2}, v{I+2}, 3, v{I+3}"); a(f"v_add_u32 v{I+2}, s{S_KB}, v{I+2}")
    a(f"v_cvt_f32_u32 v{I+2}, v{I+2}"); a(f"v_cvt_f32_u32 v{I+3}, v{I+1}"); a(f"v_cvt_f32_u32 v{I+4}, v{I}"); a(f"v_mul_f32 v{I+3}, 4.0, v{I+3}")
def reload(a):
    a(f"s_lshl_b32 s5, s{S_W}, 11"); a(f"v_add_u32 v7, s5, v{V_L16}")
    for i in range(6): a(f"ds_read_b128 {vr(V_CS+4*i,4)}, v7 offset:{FO + (i//2)*8192 + (i%2)*1024}")
    for i in range(6): a(f"ds_read_b128 {vr(V_C32+4*i,4)}, v{V_L16} offset:{FO + 24576 + i*1024}")
def rot(a, c, s_, n, dc, ds, tmp):
    bc = "op_sel_hi:[1,0]"
    for j in range(0, n, 2):
        a(f"v_pk_mul_f32 {vr(c+n+j,2)}, {vr(c+j,2)}, {vr(dc,2)} {bc}"); a(f"v_pk_mul_f32 {vr(s_+n+j,2)}, {vr(s_+j,2)}, {vr(dc,2)} {bc}")
    for j in range(0, n, 2):
        a(f"v_pk_fma_f32 {vr(c+n+j,2)}, {vr(s_+j,2)}, {vr(ds,2)}, {vr(c+n+j,2)} op_sel_hi:[1,0,1] neg_lo:[1,0,0] neg_hi:[1,0,0]")
        a(f"v_pk_fma_f32 {vr(s_+n+j,2)}, {vr(c+j,2)}, {vr(ds,2)}, {vr(s_+n+j,2)} op_sel_hi:[1,0,1]")
def cheb(a, x, n, k):
    for j in range(4, n, 2):
        a(f"v_pk_fma_f32 {vr(x+j,2)}, {vr(x+j-2,2)}, {vr(k,2)}, {vr(x+j-4,2)} op_sel_hi:[1,0,1] neg_lo:[0,0,1] neg_hi:[0,0,1]")
def sc4(a, c, s_, om):
    for j in (1, 2, 3): a(f"v_add_f32 v{c+j}, v{c+j-1}, v{om}")
    for j in range(4): a(f"v_sin_f32 v{s_+j}, v{c+j}")
    for j in range(4): a(f"v_cos_f32 v{c+j}, v{c+j}")

def tables1(a):
    X = SX; u = V_RF; V_CS, V_SN, V_NS = SO, SO + 8, SO + 16
    a(f"v_mul_f32 v{u}, {fhex(1/64)}, v{I+2}"); a(f"v_add_f32 v{u+2}, v{u}, v{u}")
    a(f"v_mul_f32 v{X}, v{I+3}, v{u+2}"); a(f"v_cos_f32 v{u+2}, v{u+2}")
    sc4(a, X, X + 8, u)
    a(f"v_add_f32 v{u+2}, v{u+2}, v{u+2}")
    a("s_mov_b32 s74, 0x80008000"); a(f"v_and_b32 v{u+4}, 1, v{I}"); a(f"v_mul_lo_u32 v{u+4}, v{u+4}, s74")
    cheb(a, X, 8, u + 2); cheb(a, X + 8, 8, u + 2)
    for j in range(4): a(f"v_cvt_pk_bf16_f32 v{V_CS+j}, v{X+2*j}, v{X+1+2*j}"); a(f"v_cvt_pk_bf16_f32 v{V_SN+j}, v{X+8+2*j}, v{X+9+2*j}")
    for j in range(4): a(f"v_xor_b32 v{V_CS+4+j}, v{u+4}, v{V_CS+j}"); a(f"v_xor_b32 v{V_SN+4+j}, v{u+4}, v{V_SN+j}")
    for j in range(8): a(f"v_xor_b32 v{V_NS+j}, s74, v{V_SN+j}")
    a(f"v_lshlrev_b32 v{I+6}, 4, v{L}"); a(f"v_add_u32 v{I+6}, {LDS_F}, v{I+6}"); a(f"s_lshl_b32 s5, s{S_W}, 11"); a(f"v_add_u32 v{I+5}, s5, v{I+6}")
    for kind, base in enumerate((V_CS, V_SN, V_NS)):
        for aa in range(2):
            a(f"ds_write_b128 v{I+5}, {vr(base+4*aa,4)} offset:{kind*8192 + aa*1024}")

def tables2(a):
    X = SX; u = V_RF; V_C32, V_S32, V_N32 = SO, SO + 8, SO + 16
    a(f"v_mul_f32 v{u}, {fhex(1/32)}, v{I+4}"); a(f"v_mul_f32 v{X}, v{I+3}, v{u}")
    sc4(a, X, X + 4, u)
    a("s_lshl_b32 s5, s74, 16"); a("s_waitcnt lgkmcnt(0)")
    for base, x in ((V_C32, X), (V_S32, X + 4)):
        for j in range(2): a(f"v_cvt_pk_bf16_f32 v{base+j}, v{x+2*j}, v{x+1+2*j}")
        for j in range(2): a(f"v_xor_b32 v{base+2+j}, v{u+4}, v{base+j}")
        for j in range(4): a(f"v_xor_b32 v{base+4+j}, s5, v{base+j}")
    for j in range(8): a(f"v_xor_b32 v{V_N32+j}, s74, v{V_S32+j}")
    for i in range(6): a(f"ds_write_b128 v{I+6}, {vr(V_C32+4*i,4)} offset:{24576 + i*1024}")

def tables3(a):
    u = V_RF
    a(f"s_mov_b32 s5, {fhex(1/2048)}")
    a(f"v_mul_f32 v{u}, s5, v{I+2}"); a(f"v_mul_f32 v{V_T1C}, v{I+3}, v{u}"); a(f"v_mul_f32 v{u+2}, {fhex(16)}, v{u}")
    sc4(a, V_T1C, V_T1S, u)
    a(f"v_sin_f32 v{u+4}, v{u+2}"); a(f"v_cos_f32 v{u+2}, v{u+2}")
    a(f"v_lshl_add_u32 v{u+6}, v{I+1}, 3, s{S_KB}"); a(f"v_cvt_f32_u32 v{u+6}, v{u+6}")
    rot(a, V_T1C, V_T1S, 4, u + 2, u + 4, None)
    a(f"v_mul_f32 v{u}, s5, v{I+4}"); a(f"v_add_f32 v{u+1}, {fhex(16/2048)}, v{u}")
    for tt in range(2):
        a(f"v_mul_f32 v{V_T2C+4*tt}, v{u+6}, v{u+tt}"); sc4(a, V_T2C + 4 * tt, V_T2S + 4 * tt, u + tt)
def selector(a):
    u = V_RF
    a(f"v_and_b32 v{u}, 1, v{I}"); a(f"v_lshlrev_b32 v{u}, 4, v{u}"); a(f"v_mov_b32 v{u+1}, 0x3f80"); a(f"v_lshlrev_b32 v{u}, v{u}, v{u+1}")
    a(f"v_lshrrev_b32 v{u+1}, 1, v{I}"); a(f"v_lshlrev_b32 v{u+2}, 1, v{I+1}")
    a(f"v_cmp_eq_u32 vcc, v{u+1}, v{u+2}"); a(f"v_add_u32 v{u+2}, 1, v{u+2}")
    for i in range(2, 6): a(f"v_mov_b32 v{V_SEL+i}, 0")
    a(f"v_cndmask_b32 v{V_SEL}, 0, v{u}, vcc"); a(f"v_cndmask_b32 v{V_SEL+6}, 0, v{u}, vcc")
    a(f"v_cmp_eq_u32 vcc, v{u+1}, v{u+2}")
    a(f"v_cndmask_b32 v{V_SEL+1}, 0, v{u}, vcc"); a(f"v_cndmask_b32 v{V_SEL+7}, 0, v{u}, vcc")
def addrs2(a):
    a(f"s_and_b32 s6, s{S_W}, 1"); a(f"s_lshr_b32 s7, s{S_W}, 1")
    a("s_lshl_b32 s5, s6, 2"); a("s_add_u32 s5, s5, s7"); a("s_lshl_b32 s5, s5, 10"); a(f"v_add_u32 v7, s5, v{V_L16}")
    a("s_lshl_b32 s5, s7, 7"); a("s_add_u32 s5, s5, s6"); a("s_lshl_b32 s5, s5, 3"); a(f"v_add_u32 v{V_AD}, s5, v{V_L16}")
    a("s_lshl_b32 s5, s6, 12"); a(f"v_add_u32 v{V_CR}, s5, v{V_L16}")
    a("s_lshl_b32 s5, s7, 12"); a(f"v_add_u32 v{V_WO}, s5, v{V_L16}")
    a(f"v_mov_b32 v2, {fhex(1e-5 * 2**22)}"); a("v_mov_b32 v3, v2"); a(f"v_mov_b32 v4, {fhex(2**22/512)}"); a("v_mov_b32 v5, v4")
    a(f"s_cmp_eq_u32 s{S_P}, 0"); a("s_cselect_b32 s73, 0, -1")

def cmul(a, c, s, sign, out):
    t = V_T; re = V_A; im = V_A + 8
    p = lambda b, j: vr(b + 2 * j, 2)
    neg = "neg_lo:[1,0,0] neg_hi:[1,0,0]"
    n1, n2 = (neg, "") if sign > 0 else ("", neg)
    for j in range(4):
        a(f"v_pk_mul_f32 {p(t,j)}, {p(re,j)}, {p(c,j)}"); a(f"v_pk_mul_f32 {p(t+8,j)}, {p(im,j)}, {p(c,j)}")
    for j in range(4): a(f"v_pk_fma_f32 {p(t,j)}, {p(im,j)}, {p(s,j)}, {p(t,j)} {n1}")
    for j in range(4): a(f"v_cvt_pk_bf16_f32 v{out+j}, v{t+2*j}, v{t+2*j+1}")
    for j in range(4): a(f"v_pk_fma_f32 {p(t+8,j)}, {p(re,j)}, {p(s,j)}, {p(t+8,j)} {n2}")
    for j in range(4): a(f"v_cvt_pk_bf16_f32 v{out+4+j}, v{t+8+2*j}, v{t+9+2*j}")

def compute(a, layer, hook, stubs, before_c=None):
    t = V_T; ZO = 0; CO = LDS_C - LDS_Z
    NP = (2, 8)[layer]
    def bad(a):
        sync.fold(a, V_CK, [V_Z + 4 * i for i in range(8)], "max")
        a(f"v_bitop3_b32 v{V_T}, v{V_IN}, v{V_IN+4}, 1 bitop3:0x7e")
        a(f"v_cmp_eq_u32 s[6:7], -1, v{V_CK}")
        a(f"v_and_b32 v{V_T}, s{S_TM}, v{V_T}"); a(f"v_cmp_ne_u32 vcc, 0, v{V_T}")
        a("s_or_b64 vcc, vcc, s[6:7]")
    def bad0(a):
        for i in range(4): a(f"v_bitop3_b32 v{V_T+i}, v{V_Z+4*i+1}, v{V_Z+4*i+3}, s{S_NONCE} bitop3:0x7e")
        a(f"v_bitop3_b32 v{V_CK}, v{V_IN}, v{V_IN+4}, 1 bitop3:0xa8")
        a(f"v_or3_b32 v{V_CK}, v{V_CK}, v{V_T}, v{V_T+1}"); a(f"v_or3_b32 v{V_CK}, v{V_CK}, v{V_T+2}, v{V_T+3}")
        a(f"v_cmp_ne_u32 vcc, 0, v{V_CK}")
    if layer == 0: bad = bad0
    sync.check(a, bad, lambda a: loads(a, layer), stubs)
    a.stamp()
    unp = []
    for pl in range(2):
        for j in range(4):
            unp.append(f"v_lshlrev_b32 v{V_RF+8*pl+2*j}, 16, v{V_IN+4*pl+j}")
            unp.append(f"v_and_b32 v{V_RF+8*pl+2*j+1}, s{S_HI}, v{V_IN+4*pl+j}")
    for i in range(NP if layer else 0):
        for j in range(2):
            mf(a, V_A + 4 * j, V_SEL + 4 * j, V_Z + 4 * i, i == 0)
            if NP == 8 and len(unp) > 8 and j: a(unp.pop(0))
    if layer:
        for o in unp: a(o)
        for j in range(4): a(f"v_pk_fma_f32 {vr(V_A+2*j,2)}, {vr(V_A+2*j,2)}, v[4:5], v[2:3]")
        for i in range(8): a(f"v_rsq_f32 v{V_A+i}, v{V_A+i}")
    else:
        for i in range(8): a(f"v_fma_f32 v{V_A+i}, v{V_Z+2*i}, v4, v2")
        for i in range(8): a(f"v_rsq_f32 v{V_A+i}, v{V_A+i}")
        for o in unp: a(o)
    for pl in range(2):
        for j in range(4): a(f"v_pk_mul_f32 {vr(t+8*pl+2*j,2)}, {vr(V_A+2*j,2)}, {vr(V_RF+8*pl+2*j,2)}")
        for j in range(4): a(f"v_cvt_pk_bf16_f32 v{V_IN+4*pl+j}, v{t+8*pl+2*j}, v{t+8*pl+2*j+1}")
        if pl:
            for j in range(4): a(f"v_and_b32 v{V_IN+4+j}, s73, v{V_IN+4+j}")
        a(f"ds_write_b128 v7, {vr(V_IN+4*pl,4)} offset:{ZO + 2048*pl}")
    hook(0)
    a("s_waitcnt lgkmcnt(0)"); a("s_barrier")
    for i in range(8): a(f"ds_read_b128 {vr(V_Z+4*i,4)}, v{V_L16} offset:{ZO + i*1024}")
    hook(1)
    Z = lambda tt, pl, aa: V_Z + 16 * tt + 8 * pl + 4 * aa
    for tt in range(2):
        for pl in range(2):
            for aa in range(2):
                first = (pl == 0 and aa == 0)
                mf(a, V_A + 4 * tt, Z(tt, pl, aa), (V_CS if pl == 0 else V_SN) + 4 * aa, first)
                mf(a, V_A + 8 + 4 * tt, Z(tt, pl, aa), (V_NS if pl == 0 else V_CS) + 4 * aa, first)
    hook(2)
    cmul(a, V_T1C, V_T1S, -1, V_IN)
    pr = [f"ds_read_b128 {vr(PREG[r],4)}, v{V_WO} offset:{FO + (r//4)*8192 + (r%4)*1024}" for r in range(12)]
    for t2 in range(2):
        mf(a, V_A + 4 * t2, V_C32 + 4 * t2, V_IN, True); a(pr.pop(0)); a(pr.pop(0))
        mf(a, V_A + 8 + 4 * t2, V_N32 + 4 * t2, V_IN, True); a(pr.pop(0)); a(pr.pop(0))
    WS_ = V_Z
    un = []
    for e in range(8):
        un.append(f"v_lshlrev_b32 v{WS_+e}, 16, v{V_WF+e}"); un.append(f"v_and_b32 v{WS_+8+e}, s{S_HI}, v{V_WF+e}")
    for t2 in range(2):
        mf(a, V_A + 4 * t2, V_S32 + 4 * t2, V_IN + 4, False); a(un.pop(0)); a(un.pop(0))
        mf(a, V_A + 8 + 4 * t2, V_C32 + 4 * t2, V_IN + 4, False); a(un.pop(0)); a(un.pop(0))
    for o in un: a(o)
    cmul(a, WS_, WS_ + 8, +1, V_IN)
    for tt in range(2):
        mf(a, V_A + 4 * tt, V_IN, V_C32 + 4 * tt, True); a(pr.pop(0))
        mf(a, V_A + 8 + 4 * tt, V_IN, V_S32 + 4 * tt, True); a(pr.pop(0))
    for tt in range(2):
        mf(a, V_A + 4 * tt, V_IN + 4, V_N32 + 4 * tt, False)
        mf(a, V_A + 8 + 4 * tt, V_IN + 4, V_C32 + 4 * tt, False)
    hook(3)
    cmul(a, V_T2C, V_T2S, +1, V_IN)
    for pl in range(2):
        for tt in range(2):
            a(f"ds_write_b64 v{V_AD}, {vr(V_IN+4*pl+2*tt,2)} offset:{CO + tt*4096 + pl*2048}")
    if before_c: before_c()
    a("s_waitcnt lgkmcnt(0)"); a("s_barrier")
    B = V_Z
    for i in range(4): a(f"ds_read_b128 {vr(B+4*i,4)}, v{V_CR} offset:{CO + i*1024}")
    hook(4)
    P = lambda kind, mm, ks: PREG[4 * kind + 2 * mm + ks]
    def last(pl):
        for ip in range(2):
            for ks in range(2):
                for mm in range(2):
                    kind = 0 if ip == pl else (2 if pl == 0 else 1)
                    d = V_RF + 8 * pl + 4 * mm
                    a(f"v_mfma_f32_16x16x32_bf16 {vr(d,4)}, {vr(P(kind,mm,ks),4)}, {vr(B+8*ip+4*ks,4)}, {vr(d,4)}")
    last(0)
    skip = a.newlabel("colskip")
    a(f"s_cmp_eq_u32 s{S_P}, 0"); a(f"s_cbranch_scc1 {skip}")
    last(1)
    a.label(skip, 1)
    op = None
    for pl in range(2):
        if pl == 0: a("s_nop 4")
        for j in range(4): a(f"v_cvt_pk_bf16_f32 v{V_IN+4*pl+j}, v{V_RF+8*pl+2*j}, v{V_RF+8*pl+2*j+1}")
        a(f"v_and_b32 v{V_IN+4*pl}, s{S_NTM}, v{V_IN+4*pl}" if layer else f"v_or_b32 v{V_IN+4*pl}, s{S_TM}, v{V_IN+4*pl}")
        op = a(f"buffer_store_dwordx4 {vr(V_IN+4*pl,4)}, v{V_XO}, s[8:11], s65 offen offset:{64*pl} {ST}")
    return op
```

```python
from asmdsl import *
from maps import *
from regs import *
import sync, p1, os, sys
E = lambda k, d: int(os.environ.get(k, d))
ROT = E('ROT', 0); LA = E('LA', 5); VGAP = [float(os.environ.get('VGAP0', 2)), float(os.environ.get('VGAP1', 2))]; PAUSE = E('PAUSE', 4); BUD = E('BUD', 3)
class NoFit(Exception): pass
STP = [int(x) for x in os.environ.get('STP', '63,127,191').split(',')]
XPRI = E('XPRI', 3); M16 = E('M16', 0); NOCK = E('NOCK', 0); EPS = E('EPS', 2); SPLIT = E('SPLIT', 1)
POLLN = E('POLLN', 156)
NSLOT = 10
def set_slots(n, fr):
    global NSLOT, V_FR
    NSLOT = n; V_FR = fr
L = 1
V_L16 = 5; V_FL = 32; V_PA = 119; V_P1 = 39
V_CB = [3, 6, 7]
V_RD = 8
V_FR = 176; NF = E('NF', 6); W2 = E('W2', 1)
V_ACC = 40
V_CK = 88
V_H = 104
PARTS = eval(os.environ.get('PARTS', '[(0, 1), (2,), (3, 4), (5,)]'))
NACC = 4 if PARTS == [(0, 1), (2, 3), (4, 5)] else 3
if NACC == 4: V_CK = 192
SEQ = [(t, ks) for p in PARTS for ks in range(32) for t in p]
UNIT = []
for p in PARTS: UNIT += [(p[0], len(p) == 2, q) for q in range(2 * len(p))]
A_W = 0

def task(a):
    a("s_bfe_u32 s5, s2, 0x20001"); a("s_lshl_b32 s5, s5, 5"); a("s_lshr_b32 s6, s2, 3"); a("s_add_u32 s5, s5, s6")
    a("s_mul_i32 s6, s5, 2850"); a("s_lshr_b32 s6, s6, 16")
    a("s_mul_i32 s7, s6, 23"); a("s_sub_u32 s5, s5, s7")
    a("s_and_b32 s7, s2, 1")
    a("s_lshl_b32 s6, s6, 1")
    a("s_cmp_ge_u32 s5, 12"); a(f"s_cselect_b32 s{S_RT}, 1, 0"); a(f"s_cselect_b32 s{S_FT}, 12, 1"); a(f"s_sub_u32 s{S_FT}, s5, s{S_FT}")
    a(f"s_mul_i32 s{S_GAM}, s7, 11"); a(f"s_add_u32 s{S_FT}, s{S_FT}, s{S_GAM}")
    a("s_cmp_eq_u32 s5, 0"); a(f"s_cselect_b32 s{S_RT}, s7, s{S_RT}"); a(f"s_cselect_b32 s{S_FT}, 22, s{S_FT}")
    a(f"s_add_u32 s{S_RT}, s{S_RT}, s6")
    a(f"s_cmp_ge_u32 s{S_RT}, 11"); a(f"s_cselect_b32 s{S_FT}, 22, s{S_FT}")
    a(f"s_lshl_b32 s{S_GAM}, s{S_FT}, 2"); a(f"s_add_u32 s{S_GAM}, s{S_GAM}, s{S_W}")
assert all((x * 2850) >> 16 == x // 23 for x in range(256))

def w_setup(a):
    a(f"s_lshl_b32 s5, s{S_GAM}, 15"); a(f"s_add_u32 s5, s5, {WS_W1F}")
    srd(a, 24, K_WS, 32768, "s5")
    a(f"s_cmp_ge_u32 s{S_GAM}, {NG}"); a("s_cselect_b32 s26, 0, s26")
def w_load(ks, vl16):
    pre = [f"s_movk_i32 s64, {(ks // 4) * 4096}"] if ks % 4 == 0 else []
    so = "s64"
    return pre, f"buffer_load_dwordx4 {ar(A_W+4*ks,4)}, v{vl16}, s[24:27], {so} offen offset:{(ks%4)*1024} {LD}"

def addrs(a, layer):
    a(f"v_lshlrev_b32 v{V_L16}, 4, v{L}")
    p1.tr_addr(a, V_RD, 64, 2)
    for seg in (1, 2): a(f"v_add_u32 v{V_RD+seg}, {seg*65536}, v{V_RD}")
    a(f"s_lshl_b32 s49, s{S_W}, 12")
    a(f"v_add_u32 v{V_CB[0]}, s49, v{V_L16}")
    for seg in (1, 2): a(f"v_add_u32 v{V_CB[seg]}, {seg*65536}, v{V_CB[0]}")
    a(f"s_mul_i32 s48, s{S_RT}, {3*65536}")
    a(f"s_lshr_b32 s5, s{S_W}, 1"); a("s_lshl_b32 s5, s5, 15"); a("s_add_u32 s50, s48, s5"); a(f"s_and_b32 s5, s{S_W}, 1"); a("s_lshl_b32 s5, s5, 12"); a("s_add_u32 s50, s50, s5")
    a("s_add_u32 s48, s48, s49")
    srd(a, 12, K_WS, HSZ, WS_H)
    a(f"s_mul_i32 s47, s{S_RT}, {3*TSZ}"); a(f"s_lshl_b32 s5, s{S_GAM}, 10"); a("s_add_u32 s47, s47, s5")
    a(f"s_add_u32 s80, s47, {34*TSZ}"); a(f"s_add_u32 s81, s47, {2*TSZ}"); a(f"s_add_u32 s5, s47, {TSZ}")
    a(f"s_cmp_eq_u32 s{S_RT}, 10"); a(f"s_cselect_b32 s73, 0, s{S_TM}")
    a("s_cselect_b32 s80, s5, s80"); a("s_cselect_b32 s81, s47, s81"); a(f"s_cselect_b32 s82, {OOB}, s47")
    a(f"s_cmp_ge_u32 s{S_W}, 2"); a(f"s_cselect_b32 s78, s73, s{S_TM}")
    if layer == 0:
        a(f"s_mul_i32 s5, s{S_RT}, 88"); a(f"s_add_u32 s5, s5, s{S_GAM}"); a("s_lshl_b32 s5, s5, 6"); a(f"s_add_u32 s5, s5, {sync.FL_H}")
        a(f"s_cmp_eq_u32 s{S_FT}, 22"); a(f"s_cselect_b32 s83, {OOB}, s5")
        sync.post_prep(a, V_FL, 1, True)
        a(f"s_mul_i32 s5, s{S_RT2}, 88"); a(f"s_add_u32 s5, s5, s{S_W}"); a("s_lshl_b32 s5, s5, 6"); a(f"s_add_u32 s5, s5, {sync.FL_H}")
        a(f"v_min_u32 v{V_PA}, 21, v{L}"); a(f"v_lshl_add_u32 v{V_PA}, v{V_PA}, 8, s5")

def x_dma(u, i, so=52):
    pre = []
    if i == 0:
        pre.append(f"s_add_u32 m0, s49, {(u % NSLOT) * 16384}")
        t, pair, q = UNIT[u]
        pre.append(f"s_add_u32 s{so}, s50, {t * 32768 + q * 8192}" if pair else f"s_add_u32 s{so}, s48, {t * 32768 + q * 16384}")
    return pre, f"buffer_load_dwordx4 v{V_L16}, s[8:11], s{so} offen offset:{i*1024} {LD} lds"
def emit(a, item):
    for p in item[0]: a(p)
    return a(item[1])

def epi_ops(P, layer, packed=False):
    ops = []
    acc = V_ACC + 16 * (P % NACC); h = V_H + 4 * (P % 2)
    for e in range(8): ops.append(f"v_max_f32 v{acc+e}, 0, v{acc+e}")
    if packed:
        for j in range(4): ops.append(f"v_pk_mul_f32 {vr(acc+2*j,2)}, {vr(acc+2*j,2)}, {vr(acc+8+2*j,2)}")
    else:
        for e in range(8): ops.append(f"v_mul_f32 v{acc+e}, v{acc+e}, v{acc+8+e}")
    for j in range(4): ops.append(f"v_cvt_pk_bf16_f32 v{h+j}, v{acc+2*j}, v{acc+2*j+1}")
    ops.append(f"v_or_b32 v{h}, 1, v{h}" if layer else f"v_and_b32 v{h}, -2, v{h}")
    return ops
def h_store(P):
    pre = [f"s_add_u32 s51, s47, {32*TSZ}", f"s_add_u32 s51, s47, {33*TSZ}", "s_mov_b32 s51, s80", "s_mov_b32 s51, s81", f"s_add_u32 s51, s82, {TSZ}", "s_mov_b32 s51, s82"][P]
    return [pre], f"buffer_store_dwordx4 {vr(V_H+4*(P%2),4)}, v{V_L16}, s[12:15], s51 offen {ST}"

def mainloop(a, layer, extra, alu, events, stubs, first=None):
    NM = 192
    dma = {}
    for u in range(2):
        for i in range(4): dma[u] = emit(a, x_dma(u, i))
    if first: first()
    def rd(n):
        u, r = n // 16, n % 16
        base = (u % NSLOT) * 16384 + ((r % 2) * 8192 + (r // 2) * 1024 if UNIT[u][1] else r * 1024)
        f = V_FR + 4 * (n % NF)
        for rho in range(2):
            a(f"ds_read_b64_tr_b16 {vr(f+2*rho,2)}, v{V_RD + base//65536} offset:{base%65536 + rho*512}")
    op3 = "v_bitop3_b32 {} bitop3:0x80" if layer == 0 else "v_or3_b32 {}"
    def ck_steps(u):
        t0, pair, _ = UNIT[u]
        mask = "s73" if t0 >= 4 else "s78" if (pair and t0 == 3) else f"s{S_TM}"
        cb = (u % NSLOT) * 16384
        ckr = lambda a, i: a(f"ds_read_b128 {vr(V_CK+4*i,4)}, v{V_CB[cb // 65536]} offset:{cb % 65536 + 1024*i}")
        def s0(): a.wait_vm(dma[u]); ckr(a, 0)
        def f1(a): a(op3.format(f"v{V_CK}, v{V_CK}, v{V_CK+4}, v{V_CK+8}"))
        def f2(a):
            if layer == 0: a(f"v_bitop3_b32 v{V_CK}, v{V_CK}, v{V_CK+12}, {mask} bitop3:0x80"); a(f"v_cmp_ne_u32 vcc, {mask}, v{V_CK}")
            else: a(f"v_bitop3_b32 v{V_CK}, v{V_CK}, v{V_CK+12}, {mask} bitop3:0xa8"); a(f"v_cmp_ne_u32 vcc, 0, v{V_CK}")
        def fin():
            st = {"n": 0}
            def gather(a):
                if st["n"]:
                    for i in range(4): ckr(a, i)
                    f1(a); f2(a)
                st["n"] += 1
            items = [x_dma(u, i, 7) for i in range(4)]
            def reload(a):
                a("s_mov_b32 s0, m0")
                for it in items: emit(a, it)
                a("s_mov_b32 m0, s0")
            sync.check(a, gather, reload, stubs, masked=False)
            a("s_barrier")
        if NOCK and u >= NOCK: return [None] * 7 + [lambda: (a.wait_vm(dma[u]), a("s_barrier"))]
        return [s0, lambda: ckr(a, 1), lambda: ckr(a, 2), lambda: ckr(a, 3), None, lambda: f1(a), lambda: f2(a), fin]
    PD = NF - 1
    xq = [(u, i) for u in range(2, 12) for i in range(4)]
    extra = list(extra); alu = list(alu)
    sched = []; epi = []; stq = []; last = None; nxt = 0; staged = None
    a.stamp()
    for f in ck_steps(0):
        if f: f()
    a.stamp()
    for n in range(PD): rd(n)
    cks = {}
    for u in range(1, 12):
        for k in range(8): cks[16 * u - PD - 7 + k] = (u, k)
    steps = {}
    def pick(n, room):
        u = n // 16
        if stq and len(epi) <= 21 * (len(stq) - 1): q, kind = stq, "st"
        elif n < nxt: return None
        else:
            xok = xq and xq[0][0] <= u + min(LA, NSLOT - 2)
            eok = extra and extra[0][0] <= n
            if eok and extra[0][1][1].endswith("lds") and not extra[0][1][0]: q, kind = extra, "e"
            elif xok and (not eok or xq[0][0] <= u + (XPRI if extra[0][0] >= 0 else 2) or xq[0][1]): q, kind = xq, "x"
            elif eok: q, kind = extra, "e"
            else: return None
        item = x_dma(*q[0]) if kind == "x" else q[0][1] if kind == "e" else q[0]
        if len(item[0]) > max(room, 0) + (1 if BUD < 2 else 0): return None
        return kind, q.pop(0), item
    CKC = [2, 1, 1, 1, 0, 1, 2, 2]
    cost = lambda n: (CKC[cks[n][1]] if n in cks else 0) + sum(2 for en, ef in events if en == n)
    ninst = lambda: sum(1 for l in a.lines[mark:] if not l.endswith(":"))
    for n in range(NM):
        u, r = n // 16, n % 16
        P, ksg = SEQ[n]; T = n % 2
        acc = V_ACC + 16 * (P % NACC)
        c = "0" if ksg == 0 else vr(acc, 16)
        assert not any(ar(A_W + 4 * ksg, 4) + "," in e[1][1] and "s[24:27]" in e[1][1] for e in extra), "W1 load too late"
        assert not (staged and ar(A_W + 4 * ksg, 4) + "," in staged[2][1] and "s[24:27]" in staged[2][1])
        if T == 0 and W2: a.wait_lregs(vr(V_FR + 4 * ((n + 1) % NF), 4))
        a(f"v_mfma_f32_32x32x16_bf16 {vr(acc,16)}, {ar(A_W+4*ksg,4)}, {vr(V_FR+4*(n%NF),4)}, {c}")
        mark = len(a.lines)
        lim = 2 + BUD + (1 if T == 0 and W2 else 0)
        if staged:
            kind, key, item = staged; staged = None
            op = a(item[1]); sched.append(f"{kind}{n}")
            if kind == "x": dma[key[0]] = op
            if kind == "st": last = op
        if n in STP: a.stamp()
        if n in cks:
            cu, k = cks[n]
            if k == 0:
                assert not any(x[0] <= cu for x in xq), ("X too late", cu)
                steps[cu] = ck_steps(cu)
            if steps[cu][k]: steps[cu][k]()
        if n + PD < NM: rd(n + PD)
        else: lim -= 2
        if n >= 3 and SEQ[n - 3][1] == 31:
            epi += epi_ops(SEQ[n - 3][0], layer); stq.append(h_store(SEQ[n - 3][0]))
        if ksg == 0 and P >= NACC: assert not any(f"v{acc}," in e for e in epi) and len(epi) <= 21
        for en, ef in events:
            if en == n:
                ef(last)
        if n + 1 < NM and cost(n + 1) < max(BUD, 2):
            p = pick(n + 1, lim - ninst())
            if p:
                kind, key, item = p
                for q in item[0]: a(q)
                staged = p
                nxt = n + 1 + PAUSE if kind == "st" else max(nxt, n) + VGAP[layer]
        for _ in range(EPS):
            if epi and ninst() < lim: a(epi.pop(0))
    if extra: raise NoFit(layer)
    open(f'sched{layer}.txt', 'w').write(' '.join(sched) + '\n')
    assert not extra and not epi and not xq and not stq and not alu, (len(extra), len(epi), len(xq), len(alu))
    for t in PARTS[-1]:
        for o in epi_ops(t, layer, True): a(o)
        last = emit(a, h_store(t))
    return last

def post_h(a, inc, op):
    if inc: a(f"v_add_u32 v{V_FL+2}, 1, v{V_FL+2}")
    a.wait_vm(op)
    sync.post_do(a, V_FL, 83)

def stats(a, layer, stubs, extra):
    a("v_lshlrev_b32 v6, 4, v0")
    a(f"s_mul_i32 s48, s{S_RT}, {3*65536}"); a(f"s_cmp_ge_u32 s{S_RT}, 11"); a("s_cselect_b32 s48, 0, s48")
    R = 40; ACC = 16; extra = list(extra)
    reg = lambda n: R + 4 * (n % 16)
    def ld(a, n):
        a(f"s_add_u32 s7, s48, {4096*n}")
        a(f"buffer_load_dwordx4 {vr(reg(n),4)}, v6, s[8:11], s7 offen {LD}")
    for n in range(12): ld(a, n)
    a("v_lshrrev_b32 v3, 2, v0"); a("v_cmp_eq_u32 s[50:51], 1, v3")
    a("v_mul_u32_u24 v8, 768, v3"); a("v_and_b32 v3, 3, v0"); a("v_lshl_add_u32 v8, v3, 5, v8")
    for g in range(12):
        ns = range(4 * g, 4 * g + 4)
        sync.check(a, lambda a, ns=ns, g=g: sync.bad_tag(a, 9, [reg(n) for n in ns], layer == 0, "s73" if g >= 8 else f"s{S_TM}"),
                   lambda a, ns=ns: [ld(a, n) for n in ns], stubs)
        acc = ACC + 8 * ((g // 2) % 2)
        for n in ns:
            if n + 12 < 48: ld(a, n + 12)
            else:
                for _ in range(2):
                    if extra: emit(a, extra.pop(0))
            for j in range(4):
                if n % 8 == 0: a(f"v_cndmask_b32 v{reg(n)+j}, v{reg(n)+j}, 0, s[50:51]")
                a(f"v_lshlrev_b32 v104, 16, v{reg(n)+j}"); a(f"v_and_b32 v105, s{S_HI}, v{reg(n)+j}")
                c = vr(acc + 2 * j, 2)
                a(f"v_pk_mul_f32 {c}, v[104:105], v[104:105]" if n % 8 == 0 else f"v_pk_fma_f32 {c}, v[104:105], v[104:105], {c}")
        if g % 2:
            for k in range(2): a(f"ds_write_b128 v8, {vr(acc+4*k,4)} offset:{128*(g//2) + 16*k}")
    a("s_waitcnt lgkmcnt(0)"); a("s_barrier")
    a("v_lshlrev_b32 v6, 2, v0")
    for i in range(32): a(f"ds_read2st64_b32 {vr(R+2*i,2)}, v6 offset0:{6*i} offset1:{6*i+3}")
    for st in (32, 16, 8, 4, 2):
        for i in range(0, st, 2): a(f"v_pk_add_f32 {vr(R+i,2)}, {vr(R+i,2)}, {vr(R+i+st,2)}")
    a(f"v_add_f32 v{R}, v{R}, v{R+1}")
    a(f"v_mov_b32 v8, {fhex(1e-5)}"); a(f"v_fmamk_f32 v{R}, v{R}, {fhex(1/512)}, v8"); a(f"v_rcp_f32 v{R}, v{R}")
    srd(a, 12, K_WS, 8192, (WS_R1, WS_R3)[layer])
    a(f"s_mul_i32 s5, s{S_RT}, 768")
    a(f"v_mov_b32 v8, {OOB}"); a(f"v_min_u32 v{R}, s{S_SAN}, v{R}")
    a("v_cmp_gt_u32 vcc, 192, v0"); a("v_cndmask_b32 v6, v8, v6, vcc")
    a(f"buffer_store_dword v{R}, v6, s[12:15], s5 offen {ST}")
    for f in extra: emit(a, f)
    a("s_barrier")
```

```python
from asmdsl import *
from maps import *
from regs import *
import p1, sync, os
E = lambda k, d: int(os.environ.get(k, d))
ROT = E('ROT', 0); FIRST = E('FIRST', 12); PIS = E('PIS', 9); PCS = E('PCS', 19); EARLY = [0, E('EARLY1', 16)]; BST = E('BST', 10); TICK = E('TICK', 6); TICKB = E('TICKB', 16); RST = E('RST', 7); WLATE = E('WLATE', 9); CTLATE = E('CTLATE', 8)
LDS_SS = 0
LDS_RED = 65536
LDS_X = 98304
LDS_CT = 32768
L = 1
V_L16 = 5; V_CK = 3; V_WL = 14; V_T16 = 4
V_RW = 11; V_RR = 112; V_XO = 113; V_RO = 114; V_AT = 115; V_TR = 115; V_MSK = 116; V_CR = 116; V_CF = 104; V_SR = 117; V_SO = 118
V_R = 16; V_RES = 32; V_H = 120; V_XF = 24; V_T2 = 20
A_CT = 0
def accr(tile): return 40 + 32 * tile
def wreg(i, jj):
    n = 8 * i + 4 * jj
    return ar(128 + n, 4) if n < 128 else vr(208 + n - 128, 4)
def hreg(i): return vr(V_H + 4 * i, 4)
def emit(a, item):
    tk = a.tick; a.tick = None
    for p in item[0]: a(p)
    op = a(item[1]); a.tick = tk
    return op

GR = [(0, 4), (4, 10), (10, 16), (16, 22)]
def grp(i): return [g for g in range(4) if GR[g][0] <= i < GR[g][1]][0]
def task(a):
    a("s_and_b32 s5, s2, 7"); a("s_lshl_b32 s5, s5, 2"); a("s_lshr_b32 s6, s2, 6"); a("s_add_u32 s5, s5, s6")
    a(f"s_bfe_u32 s{S_JT}, s2, 0x30003")
    a("s_mul_i32 s6, s5, 86"); a("s_lshr_b32 s6, s6, 8"); a(f"s_mov_b32 s{S_RT2}, s6"); a(f"s_mov_b32 s{S_HA}, s5")
    a("s_mul_i32 s7, s6, 3"); a(f"s_add_u32 s{S_TA}, s5, s7")
    a("s_mul_i32 s7, s6, 9"); a("s_add_u32 s7, s7, 5"); a(f"s_sub_u32 s{S_TB}, s7, s5")
    a("s_cmp_eq_u32 s6, 10"); a("s_cselect_b32 s6, 2, 0"); a(f"s_sub_u32 s{S_TB}, s{S_TB}, s6")
    a(f"s_lshr_b32 s5, s{S_W}, 1"); a(f"s_lshl_b32 s{S_G}, s{S_JT}, 1"); a(f"s_add_u32 s{S_G}, s{S_G}, s5")
assert all((x * 86) >> 8 == x // 3 for x in range(32))
def h_setup(a):
    for t in range(2):
        a(f"s_mul_i32 s5, s{S_HA}, {TSZ}"); a(f"s_add_u32 s5, s5, {WS_H + (1-t)*32*TSZ}")
        srd(a, 16 + 4 * t, K_WS, TSZ, "s5")
        a(f"s_lshl_b32 s{28+t}, s{S_TA+t}, 7")

def w_setup(a, final):
    ngw = (118 if final else NG) * 1024
    for jj in range(2):
        a(f"s_xor_b32 s6, s{S_G}, {jj}"); a(f"s_mul_i32 s6, s6, {ngw}"); a(f"s_add_u32 s6, s6, {WS_WDF if final else WS_WDP}")
        srd(a, 56 + 4 * jj, K_WS, ngw, "s6")
def wl_setup(a, v):
    a(f"s_and_b32 s5, s{S_W}, 1"); a("s_lshl_b32 s5, s5, 8")
    a(f"v_lshlrev_b32 v{V_T16}, 4, v0"); a(f"v_xor_b32 v{v}, s5, v{V_T16}")
def w_load(i, jj, v=V_WL):
    return ([f"s_mov_b32 s1, {4096*i}"] if jj == 0 else []), f"buffer_load_dwordx4 {wreg(i,jj)}, v{v}, s[{56+4*jj}:{59+4*jj}], s1 offen {LD}"

def addrs(a, final):
    red = 0 if final else LDS_RED
    a(f"s_mul_i32 s6, s{S_W}, 6144"); a(f"s_add_u32 s6, s6, {red}"); a(f"v_add_u32 v{V_RR}, s6, v{V_L16}")
    for qq in range(1, 4):
        a(f"s_xor_b32 s5, s{S_W}, {qq}"); a("s_mul_i32 s5, s5, 6144"); a(f"s_add_u32 s5, s5, {red}"); a(f"v_add_u32 v{V_RW+qq-1}, s5, v{V_L16}")
    h, u, x = 40, 41, 42
    srd(a, 68, K_WS, 8192, WS_R3 if final else WS_R1)
    a(f"s_and_b32 s5, s{S_W}, 1")
    if not final:
        a(f"v_bfe_u32 v{h}, v{L}, 4, 1"); a(f"v_lshrrev_b32 v{x}, 5, v{L}"); a(f"v_lshl_add_u32 v{h}, v{h}, 1, v{x}")
        a(f"v_and_b32 v{u}, 15, v{L}"); a(f"v_lshl_add_u32 v{u}, s5, 4, v{u}")
        a(f"v_lshlrev_b32 v{V_XO}, 6, v{u}"); a(f"v_lshl_add_u32 v{V_XO}, v{h}, 4, v{V_XO}")
        a(f"v_lshlrev_b32 v{V_RO}, 5, v{h}")
        a(f"v_bfe_u32 v{x}, v{L}, 1, 3"); a(f"v_lshl_add_u32 v{V_AT}, v{x}, 2, v{V_RO}"); a(f"s_lshl_b32 s6, s{S_W}, 7"); a(f"v_add_u32 v{V_AT}, s6, v{V_AT}")
        a(f"s_lshl_b32 s5, s{S_G}, 5"); a(f"v_or_b32 v{x}, s5, v{u}")
        a(f"v_cmp_eq_u32 vcc, 1, v{x}"); a(f"v_cndmask_b32 v{V_MSK}, 1.0, 0, vcc")
        a(f"v_and_b32 v{V_SR}, 15, v{L}"); a(f"v_lshlrev_b32 v{V_SR}, 5, v{V_SR}")
        a(f"v_lshlrev_b32 v{V_SO}, 4, v0"); a(f"v_mov_b32 v{x}, {OOB}"); a("v_cmp_gt_u32 vcc, 4, v0"); a(f"v_cndmask_b32 v{V_SO}, v{x}, v{V_SO}, vcc")
        for t in range(2):
            a(f"s_lshl_b32 s{65+t}, s{S_TA+t}, 6"); a(f"s_lshl_b32 s5, s{S_JT}, 12"); a(f"s_add_u32 s{65+t}, s{65+t}, s5")
            a(f"s_lshl_b32 s5, s{S_G}, 11"); a(f"s_lshl_b32 s{74+t}, s{S_TA+t}, 15"); a(f"s_add_u32 s{74+t}, s{74+t}, s5")
    else:
        a(f"v_lshrrev_b32 v{h}, 5, v{L}"); a(f"v_and_b32 v{u}, 31, v{L}"); a("s_lshl_b32 s5, s5, 5")
        a(f"v_and_b32 v{x}, 19, v{u}"); a(f"v_bfe_u32 v{V_RO}, v{u}, 3, 1"); a(f"v_lshl_add_u32 v{x}, v{V_RO}, 2, v{x}")
        a(f"v_bfe_u32 v{V_RO}, v{u}, 2, 1"); a(f"v_lshl_add_u32 v{x}, v{V_RO}, 3, v{x}")
        a(f"v_lshlrev_b32 v{V_RO}, 2, v{x}")
        a(f"v_and_b32 v{V_XO}, 7, v{x}"); a(f"v_lshlrev_b32 v{V_XO}, 15, v{V_XO}"); a(f"v_lshrrev_b32 v{x}, 3, v{x}"); a(f"v_lshl_add_u32 v{V_XO}, v{x}, 10, v{V_XO}")
        a(f"v_lshl_add_u32 v{V_XO}, v{h}, 4, v{V_XO}"); a(f"v_add_u32 v{V_XO}, s5, v{V_XO}")
        a(f"s_lshl_b32 s5, s{S_W}, 14"); a(f"s_add_u32 s67, s5, {LDS_X}"); a(f"v_add_u32 v{V_TR}, s67, v8")
        for t in range(2):
            rowbase(a, 74 + t, S_TA + t)
            a(f"s_lshl_b32 s5, s{S_G}, 6"); a(f"s_add_u32 s{74+t}, s{74+t}, s5")
            a(f"s_lshl_b32 s5, s{S_W}, 13"); a(f"s_lshl_b32 s{65+t}, s{S_TA+t}, 15"); a(f"s_add_u32 s{65+t}, s{65+t}, s5")
        a(f"s_mul_i32 s72, s{S_W}, {7*1024}"); a(f"s_sub_u32 s77, s67, {LDS_X - LDS_CT}"); a(f"v_add_u32 v{V_CR}, s77, v{V_L16}")
        srd(a, 24, K_OUT, S * D * 2)

def h_load(tile, i):
    return [f"s_mov_b32 s79, {4096*i}"], f"buffer_load_dwordx4 {hreg(i)}, v{V_T16}, s[{16+4*tile}:{19+4*tile}], s79 offen {LD}"
def r_load(a, final):
    for t in range(2):
        if final: a(f"buffer_load_dword v{V_R+t}, v{V_RO}, s[68:71], s{28+t} offen {LD}")
        else:
            a(f"buffer_load_dwordx4 {vr(V_R+8*t,4)}, v{V_RO}, s[68:71], s{28+t} offen {LD}")
            a(f"buffer_load_dwordx4 {vr(V_R+8*t+4,4)}, v{V_RO}, s[68:71], s{28+t} offen offset:16 {LD}")
            a(f"buffer_load_dwordx4 {vr(V_RES+4*t,4)}, v{V_XO}, s[8:11], s{74+t} offen {LD}")
def r_check(a, final, stubs):
    def bad(a):
        if final: sync.bad_fill(a, V_CK, [V_R, V_R + 1]); return
        sync.bad_fill(a, V_CK, range(V_R, V_R + 16)); a("s_mov_b64 s[6:7], vcc")
        sync.bad_tag(a, V_CK, [V_RES, V_RES + 4], True, f"s{S_TM}"); a("s_or_b64 vcc, vcc, s[6:7]")
    sync.check(a, bad, lambda a: r_load(a, final), stubs)

def ct_x(t, i):
    pre = []
    if i % 4 == 0: pre = [f"s_add_u32 m0, s67, {t*8192 + i*1024}", f"s_add_u32 s0, s{65+t}, {i*1024}"]
    return pre, f"buffer_load_dwordx4 v{V_L16}, s[8:11], s0 offen offset:{1024*(i%4)} {LD} lds"
def ct_w(n):
    jj, k = n // 8, n % 8
    pre = [f"s_add_u32 m0, s77, {n*1024}", f"s_add_u32 s64, s72, {86*1024 + k*1024}"] if k % 4 == 0 else []
    return pre, f"buffer_load_dwordx4 v{V_WL}, s[{56+4*jj}:{59+4*jj}], s64 offen offset:{(k%4)*1024} {LD} lds"
def ct_compute(a, hook=None):
    def rd(k):
        for jj in range(2): a(f"ds_read_b128 {ar(8*(k%3)+4*jj,4)}, v{V_CR} offset:{jj*8192 + k*1024}")
        for t in range(2):
            for rho in range(2): a(f"ds_read_b64_tr_b16 {ar(24+8*(k%3)+4*t+2*rho,2)}, v{V_TR} offset:{t*8192 + k*1024 + rho*512}")
    for k in range(2): rd(k)
    for k in range(8):
        for t in (1, 0):
            for jj in range(2):
                acc = vr(accr(t) + 16 * jj, 16)
                a(f"v_mfma_f32_32x32x16_bf16 {acc}, {ar(8*(k%3)+4*jj,4)}, {ar(24+8*(k%3)+4*t,4)}, {'0' if (k == 0 and t) else acc}")
            if t and k + 2 < 8: rd(k + 2)
            if hook: hook(k)
def scale(a, t, r):
    a(f"v_mov_b32 v{V_T2}, v{r}"); a(f"v_mov_b32 v{V_T2+1}, v{r}")
    for j in range(16): a(f"v_pk_mul_f32 {vr(accr(t)+2*j,2)}, {vr(V_T2,2)}, {vr(accr(t)+2*j,2)}")

CG = [(0, 3), (3, 6), (6, 9), (9, 12), (12, 15), (15, 18), (18, 20), (20, 22)]
def mm(a, tile, final, first, stubs, hook=None, need=None):
    checked = final or (tile and p1.FILLB)
    def chk(lo, hi):
        if need: need(tile, hi)
        def reload(a):
            for i in range(lo, hi): emit(a, h_load(tile, i))
        sync.check(a, lambda a: sync.bad_tag(a, V_CK, [V_H + 4 * i for i in range(lo, hi)], final, 1), reload, stubs)
    if checked: chk(*CG[0])
    for i in range(22):
        if not checked: need(tile, i + 1)
        for jj in range(2):
            acc = vr(accr(tile) + 16 * jj, 16)
            c = "0" if (i == 0 and first) else acc
            A, B = (wreg(i, jj), hreg(i)) if final else (hreg(i), wreg(i, jj))
            a(f"v_mfma_f32_32x32x16_bf16 {acc}, {A}, {B}, {c}")
            if hook and jj == 0: hook(i)
        for lo, hi in CG[1:]:
            if checked and i == lo - 1:
                chk(lo, hi)
                if os.environ.get('DBG') and not final and tile == 0:
                    tk = a.tick; a.tick = None; a.stamp(); a.flush(); a.tick = tk

def reduce(a, tile, swap, hook=None):
    acc = accr(tile); ts = 24576 if swap else LDS_CT
    def wr(qq):
        for k in range(2):
            a(f"ds_write_b128 v{V_RW+qq-1}, {vr(acc+8*qq+4*k,4)} offset:{tile*ts + (qq-1)*2048 + k*1024}")
    if swap:
        for e in range(8): a(f"v_permlane16_swap_b32 v{acc+e}, v{acc+8+e}")
        wr(1)
        for e in range(8): a(f"v_permlane16_swap_b32 v{acc+16+e}, v{acc+24+e}")
        wr(2); wr(3)
    else:
        wr(1); wr(2); wr(3)
    if hook: hook()
    a("s_waitcnt lgkmcnt(0)"); a("s_barrier")
    for k in range(6): a(f"ds_read_b128 {vr(acc+8+4*k,4)}, v{V_RR} offset:{tile*ts + k*1024}")
    for q in range(1, 4):
        for j in range(4): a(f"v_pk_add_f32 {vr(acc+2*j,2)}, {vr(acc+2*j,2)}, {vr(acc+8*q+2*j,2)}")

def unres(a, tile):
    t = accr(1 - tile) + 16
    for j in range(4):
        a(f"v_lshlrev_b32 v{t+2*j}, 16, v{V_RES+4*tile+j}"); a(f"v_and_b32 v{t+2*j+1}, s{S_HI}, v{V_RES+4*tile+j}")
def epi4(a, tile):
    acc = accr(tile); t = accr(1 - tile) + 16; s = acc + 16
    for j in range(4): a(f"v_pk_fma_f32 {vr(t+2*j,2)}, {vr(acc+2*j,2)}, {vr(V_R+8*tile+2*j,2)}, {vr(t+2*j,2)}")
    for j in range(4): a(f"v_pk_mul_f32 {vr(s+2*j,2)}, {vr(t+2*j,2)}, {vr(t+2*j,2)}")
    for j in range(4): a(f"v_pk_mul_f32 {vr(s+2*j,2)}, {vr(s+2*j,2)}, {vr(V_MSK,2)} op_sel_hi:[1,0]")
    pk = [f"v_cvt_pk_bf16_f32 v{acc+8+j}, v{t+2*j}, v{t+2*j+1}" for j in range(4)] + [f"v_and_or_b32 v{acc+8}, v{acc+8}, s{S_NTM}, 1"]
    for e in range(4): a(f"v_add_f32_dpp v{s+8+e}, v{s+e}, v{s+e} row_mirror row_mask:0xf bank_mask:0x3")
    for e in range(4): a(f"v_add_f32_dpp v{s+8+e}, v{s+4+e}, v{s+4+e} row_mirror row_mask:0xf bank_mask:0xc")
    for e in range(2): a(f"v_add_f32_dpp v{s+e}, v{s+8+e}, v{s+8+e} row_half_mirror row_mask:0xf bank_mask:0x5")
    a(pk.pop(0))
    for e in range(2): a(f"v_add_f32_dpp v{s+e}, v{s+10+e}, v{s+10+e} row_half_mirror row_mask:0xf bank_mask:0xa")
    a(pk.pop(0)); a("s_mov_b32 vcc_lo, 0xcccccccc"); a("s_mov_b32 vcc_hi, 0xcccccccc")
    for e in range(2): a(f"v_add_f32_dpp v{s+e}, v{s+e}, v{s+e} quad_perm:[2,3,0,1] row_mask:0xf bank_mask:0xf")
    a(f"v_cndmask_b32 v{s}, v{s}, v{s+1}, vcc")
    a(pk.pop(0)); a(pk.pop(0))
    a(f"v_add_f32_dpp v{s}, v{s}, v{s} quad_perm:[1,0,3,2] row_mask:0xf bank_mask:0xf")
    a(f"ds_write_b32 v{V_AT}, v{s} offset:{LDS_SS + 512*tile}")
    a(pk.pop(0))
    a(f"buffer_store_dwordx4 {vr(acc+8,4)}, v{V_XO}, s[8:11], s{74+tile} offen {ST}")
    a("s_waitcnt lgkmcnt(0)"); a("s_barrier")
    skip = a.newlabel("ssskip")
    a(f"s_cmp_lg_u32 s{S_W}, 0"); a(f"s_cbranch_scc1 {skip}")
    a.cond_begin()
    a(f"ds_read_b128 {vr(s,4)}, v{V_SR} offset:{LDS_SS + 512*tile}"); a(f"ds_read_b128 {vr(s+4,4)}, v{V_SR} offset:{LDS_SS + 512*tile + 16}")
    for m in ("row_ror:4", "row_ror:8"):
        for e in range(8): a(f"v_add_f32_dpp v{s+e}, v{s+e}, v{s+e} {m} row_mask:0xf bank_mask:0xf")
    for j in range(4): a(f"v_cvt_pk_bf16_f32 v{s+8+j}, v{s+2*j}, v{s+2*j+1}")
    a(f"v_min_u32 v{s+8}, s{S_SAN}, v{s+8}")
    a(f"buffer_store_dwordx4 {vr(s+8,4)}, v{V_SO}, s[12:15], s{65+tile} offen {ST}")
    a.cond_end()
    a.label(skip)

def epi7(a, tile, r):
    acc = accr(tile)
    if r is not None:
        for e in range(8): a(f"v_mul_f32 v{acc+e}, v{r}, v{acc+e}")
    for j in range(4): a(f"v_cvt_pk_bf16_f32 v{acc+8+j}, v{acc+2*j}, v{acc+2*j+1}")
    a(f"buffer_store_dwordx4 {vr(acc+8,4)}, v{V_XO}, s[24:27], s{74+tile} offen")

def body(a, final, stubs, wpre, flags=None):
    q = []
    for i in range(EARLY[final], 22):
        if not final and i >= 22 - WLATE: q += [(0, i, w_load(i, 0)), (0, i, w_load(i, 1))]
        q.append((0, i, h_load(0, i)))
    if final: q += [(0, 99, "rck")] + [(0, 99, ct_x(t, i)) for t in range(2) for i in range(8)]
    elif not p1.FILLB: q.append((0, 99, "pck"))
    q += [(1, i, h_load(1, i)) for i in range(22)]
    st = {"done": -1, "x": None, "r": False}
    def nxt():
        if not q: return
        t, i, item = q[0]
        if t == 1 and (i >= st["done"] or st["done"] < BST): return
        if item == "rck":
            if st["done"] < RST + 6: return
            q.pop(0); r_check(a, final, stubs); return
        if item == "pck":
            if st["done"] < PCS: return
            q.pop(0); flags[2](); return
        q.pop(0); op = emit(a, item)
        if q and (q[0][0] == 1 or q[0][1] == 99): tk[0] = TICKB
        if i == 99: st["x"] = op
    def need(tile, hi):
        while q and (q[0][0], q[0][1]) < (tile, hi): nxt()
    def hk(i):
        st["done"] = i
        if i == 0 and not final: srd(a, 12, K_WS, 32768, WS_SS2)
        if i == 0 and not final and not p1.FILLB: flags[0]()
        if i == PIS and not final and not p1.FILLB: flags[1]()
        if i == RST: r_load(a, final)
    tk = [TICK, nxt]
    if not final:
        for _ in range(FIRST): nxt()
    a.stamp()
    a.tick = tk
    mm(a, 0, final, True, stubs, hk, need)
    st["done"] = 23
    a.stamp()
    if final:
        scale(a, 0, V_R)
        a(f"v_rcp_f32 v{V_R+2}, v{V_R+1}")
        a("s_barrier")
        need(1, 0)
        a.wait_vm(st["x"]); ct_compute(a)
        reduce(a, 0, False); epi7(a, 0, None)
        scale(a, 1, V_R + 2)
        a.stamp()
        mm(a, 1, final, False, stubs, None, need)
        a.tick = None
        a.stamp()
        reduce(a, 1, False); a.stamp(); epi7(a, 1, V_R + 1)
    else:
        r_check(a, final, stubs)
        reduce(a, 0, True, lambda: unres(a, 0)); epi4(a, 0)
        a.stamp()
        mm(a, 1, final, True, stubs, None, need)
        a.tick = None
        a.stamp()
        reduce(a, 1, True, lambda: (unres(a, 1), wpre())); a.stamp(); epi4(a, 1)
    assert not q
    a.stamp()
```

```python
from asmdsl import *
from maps import *
from regs import *
FL_0 = 344 * 64
FL_M = FL_0 + 64 * 64
FL_H = FL_M + 1024 * 64
FL_NONCE = FL_H + 11 * 88 * 64
FL_SIZE = FL_NONCE + 128
import os
BACKOFF = int(os.environ.get('BACKOFF', 1))

def post_prep(a, t, k, wave):
    src = "v1" if wave else "v0"
    a(f"v_lshlrev_b32 v{t}, 4, {src}"); a(f"v_mov_b32 v{t+1}, {OOB}"); a(f"v_cmp_gt_u32 vcc, 4, {src}"); a(f"s_add_u32 s6, s{S_NONCE}, {k}")
    a(f"v_mov_b32 v{t+2}, s6"); a(f"v_mov_b32 v{t+3}, s6"); a(f"v_cndmask_b32 v{t}, v{t+1}, v{t}, vcc"); a(f"v_pk_mov_b32 {vr(t+4,2)}, {vr(t+2,2)}, {vr(t+2,2)}")
def post_do(a, t, so):
    a(f"buffer_store_dwordx4 {vr(t+2,4)}, v{t}, s[{SRD_FL}:{SRD_FL+3}], s{so} offen sc1")

def poll_issue(a, t, addr):
    return a(f"buffer_load_dword v{t}, v{addr}, s[{SRD_FL}:{SRD_FL+3}], 0 offen sc1")

def poll_check(a, t, addr, k, stubs, after=None):
    back, slow = a.newlabel("pback"), a.newlabel("pslow")
    tk = a.tick; a.tick = None
    a(f"s_add_u32 s6, s{S_NONCE}, {k}")
    a(f"v_subrev_u32 v{t}, s6, v{t}")
    a(f"v_cmp_le_u32 vcc, 8, v{t}")
    a(f"s_cbranch_vccnz {slow}")
    a.tick = tk
    a.label(back)
    def stub(a):
        lp, out = a.newlabel("ploop"), a.newlabel("pout")
        a.label(slow); a(f"s_mov_b32 s{S_CNT}, 0")
        a.label(lp)
        a("s_mov_b64 exec, vcc")
        a(f"buffer_load_dword v{t}, v{addr}, s[{SRD_FL}:{SRD_FL+3}], 0 offen sc1")
        a(f"s_add_u32 s{S_CNT}, s{S_CNT}, 1")
        a("s_waitcnt vmcnt(0)")
        a(f"v_subrev_u32 v{t}, s6, v{t}")
        a(f"v_cmp_le_u32 vcc, 8, v{t}")
        a(f"s_cbranch_vccz {out}")
        a(f"s_sleep {BACKOFF}")
        a(f"s_cmp_lt_u32 s{S_CNT}, {SPIN}"); a(f"s_cbranch_scc1 {lp}")
        a.label(out); a("s_mov_b64 exec, -1")
        if after: after(a)
        a(f"s_branch {back}")
    stubs.append(stub)

def fold(a, t, regs, kind):
    op2 = {"max": "v_max_u32", "or": "v_or_b32", "and": "v_and_b32"}[kind]
    op3 = {"max": "v_max3_u32 {}", "or": "v_or3_b32 {}", "and": "v_bitop3_b32 {} bitop3:0x80"}[kind]
    regs = list(regs)
    if len(regs) == 1: a(f"v_mov_b32 v{t}, v{regs[0]}"); return
    if len(regs) == 2: a(f"{op2} v{t}, v{regs[0]}, v{regs[1]}"); return
    a(op3.format(f"v{t}, v{regs[0]}, v{regs[1]}, v{regs[2]}")); regs = regs[3:]
    while len(regs) >= 2:
        a(op3.format(f"v{t}, v{t}, v{regs[0]}, v{regs[1]}")); regs = regs[2:]
    if regs: a(f"{op2} v{t}, v{t}, v{regs[0]}")
def bad_fill(a, t, regs):
    fold(a, t, regs, "max"); a(f"v_cmp_eq_u32 vcc, -1, v{t}")
def bad_tag(a, t, regs, ones, mask):
    fold(a, t, regs, "and" if ones else "or")
    a(f"v_and_b32 v{t}, {mask}, v{t}")
    a(f"v_cmp_ne_u32 vcc, {mask if ones else 0}, v{t}")

def check(a, gather, reload, stubs, masked=True):
    back, slow = a.newlabel("cback"), a.newlabel("cslow")
    tk = a.tick; a.tick = None
    gather(a)
    a(f"s_cbranch_vccnz {slow}")
    a.tick = tk
    a.label(back)
    def stub(a):
        lp, out = a.newlabel("cloop"), a.newlabel("cout")
        a.label(slow); a(f"s_mov_b32 s{S_CNT}, 0")
        a("s_waitcnt vmcnt(0) lgkmcnt(0)"); a("s_nop 7"); a("s_nop 7")
        a.label(lp)
        if masked: a("s_mov_b64 exec, vcc")
        reload(a)
        a(f"s_add_u32 s{S_CNT}, s{S_CNT}, 1")
        a("s_waitcnt vmcnt(0)")
        gather(a)
        a(f"s_cbranch_vccz {out}")
        a(f"s_sleep {BACKOFF}")
        a(f"s_cmp_lt_u32 s{S_CNT}, {SPIN}"); a(f"s_cbranch_scc1 {lp}")
        a.label(out)
        if masked: a("s_mov_b64 exec, -1")
        a("s_waitcnt lgkmcnt(0)"); a("s_nop 1")
        a(f"s_branch {back}")
    stubs.append(stub)

def fill_loop(a, off, size, sidx, n, vdata, voff):
    srd(a, 68, K_WS, size, off)
    a(f"s_lshl_b32 s72, s{sidx}, 12")
    lp = a.newlabel("fill"); a.label(lp)
    a(f"buffer_store_dwordx4 {vr(vdata,4)}, v{voff}, s[68:71], s72 offen sc1")
    a(f"s_add_u32 s72, s72, {n*4096}"); a(f"s_cmp_lt_u32 s72, {size}"); a(f"s_cbranch_scc1 {lp}")

def poll_block(a, t, addr, k, stubs):
    poll_issue(a, t, addr); poll_check(a, t, addr, k, stubs)
```

```python
import sys
from asmdsl import *
from maps import *
from regs import *
import p1, pcol, pg1, pg2, sync

STAMPS = "--stamps" in sys.argv
NAME = "interleave_layers__spectral_gfnet__glu_gated_reglu__prompt_kernel"
HDR = open("interleave_layers__spectral_gfnet__glu_gated_reglu__prompt.s.ref").read().split("; Override launch")[0]
CODE_KB = 88
import os
W1POST = int(os.environ.get('W1POST', 10))

def zero_stamps(a, lo, hi):
    if STAMPS:
        for i in range(lo, hi): a(f"s_mov_b32 s{84+2*i}, 0")

PLAN = [[int(x) for x in os.environ.get('PLAN0', '0,0,0,0,8,4').split(',')], [int(x) for x in os.environ.get('PLAN1', '0,5,3,4,4,0').split(',')]]
PH = [int(x) for x in os.environ.get('PH', '148,170').split(',')]
E0MIN = int(os.environ.get('E0MIN', 150))
WPRE = int(os.environ.get('WPRE', 8)); POLLH = int(os.environ.get('POLLH', 1)); PCK = int(os.environ.get('PCK', 3))
def layer(a, l, stubs):
    final = l == 1
    VL = pcol.V_SO if not final else pcol.V_PL + 3
    if not final: wl = [pg1.w_load(ks, VL) for ks in range(32)]
    else: wl = [pg2.w_load(n // 2, n % 2, VL) for n in range(WPRE, 44)]
    pcol.setmap(l)
    P = 84
    def hook(k):
        if not final:
            if k == 0: sync.poll_check(a, P, P + 1, 0, stubs); pcol.load_filter(a)
            if k == POLLH: sync.poll_issue(a, P + 2, P + 3)
            if k == PCK: sync.poll_check(a, P + 2, P + 3, 0, stubs)
        for _ in range(PLAN[l][k + 1]):
            assert final or k >= PCK
            pg1.emit(a, wl.pop(0))
    if final: a(f"v_mov_b32 v{VL}, v{pg2.V_WL}")
    pcol.addrs(a, l)
    if final: pcol.load_filter(a)
    pcol.reload(a)
    if final: pcol.idx(a); pcol.tables3(a); pcol.selector(a)
    else:
        a(f"s_lshl_b32 s5, s{S_W}, 4"); a(f"v_and_b32 v{P+1}, 15, v1"); a(f"v_add_u32 v{P+1}, s5, v{P+1}"); a(f"v_min_u32 v{P+1}, 62, v{P+1}")
        a(f"v_lshlrev_b32 v{P+1}, 6, v{P+1}"); a(f"v_add_u32 v{P+1}, {sync.FL_0}, v{P+1}")
        a(f"s_lshl_b32 s5, s{p1.S_B}, 2"); a(f"s_add_u32 s5, s5, s{S_W}"); a("s_lshl_b32 s5, s5, 6"); a(f"s_cmp_eq_u32 s{p1.S_TY}, 1"); a(f"s_cselect_b32 s63, s5, {OOB}")
        sync.post_prep(a, P + 4, 0, True)
    pcol.addrs2(a)
    a.stamp()
    a("s_waitcnt vmcnt(0)")
    if not final:
        sync.poll_check(a, p1.V_PL, p1.V_PL + 1, 0, stubs)
    a.stamp()
    pcol.loads(a, l)
    if not final:
        sync.poll_issue(a, P, P + 1)
        sync.post_do(a, P + 4, 63)
        pg1.w_setup(a)
        a(f"s_lshr_b32 s5, s{S_GAM}, 1"); a("s_min_u32 s5, s5, 42"); a("s_lshl_b32 s5, s5, 2")
        a(f"v_bfe_u32 v{P+3}, v0, 2, 1"); a(f"v_mul_u32_u24 v{P+3}, 172, v{P+3}"); a(f"v_and_b32 v{P+2}, 3, v0"); a(f"v_add3_u32 v{P+3}, v{P+3}, v{P+2}, s5"); a(f"v_lshlrev_b32 v{P+3}, 6, v{P+3}")
    hook(-1)
    a.stamp()
    op = pcol.compute(a, l, hook, stubs)
    a.stamp()
    pg1.addrs(a, l)
    if not final: wl = [pg1.w_load(ks, pg1.V_L16) for ks in range(32 - len(wl), 32)]
    if not final: pg2.w_setup(a, False); pg2.h_setup(a)
    pg2.wl_setup(a, pg2.V_WL)
    pg2.addrs(a, final)
    if not final:
        for _ in range(W1POST): pg1.emit(a, wl.pop(0))
    a.wait_vm(op); a("s_barrier")
    a.stamp(); a.flush()
    lst, lg2 = f"L_g1stats{l}", f"L_g2{l}"
    a(f"s_cmp_eq_u32 s{S_FT}, 22"); a(f"s_cbranch_scc1 {lst}")
    st = a.save()
    done = 44 - len(wl) if final else 0
    rest = [pg2.w_load(n // 2, n % 2) for n in range(done, 44 if final else 44 - 2 * pg2.WLATE)]
    cts = [pg2.ct_w(n) for n in range(16)] if final else []
    early = [pg2.h_load(0, i) for i in range(pg2.EARLY[l])]
    e0 = max(E0MIN, 188 - int(pg1.VGAP[l] * pg2.EARLY[l] + 0.99) - pg1.PAUSE)
    if final: extra = [(0, f) for f in rest] + [(112, f) for f in cts] + [(E0MIN, f) for f in early]
    else: extra = [(-1, f) for f in wl] + [(46, f) for f in rest] + [(e0, f) for f in early]
    pg1.set_slots(*((10, 16) if final else (8, 176)))
    events = [] if final else [(PH[0], lambda last: pg1.post_h(a, False, last)), (PH[1], lambda last: sync.poll_issue(a, pg1.V_P1, pg1.V_PA))]
    last = pg1.mainloop(a, l, extra, [], events, stubs)
    if not final: sync.poll_check(a, pg1.V_P1, pg1.V_PA, 1, stubs)
    a(f"s_branch {lg2}")
    nst_end = a.nst; st_end = a.save()
    a.restore(st); a.label(lst)
    pg1.stats(a, l, stubs, rest)
    if not final:
        a(f"v_mov_b32 v16, {OOB}"); a(f"v_mov_b32 v17, s{S_NONCE}")
        a("s_lshl_b32 s5, s2, 8"); a("v_or_b32 v18, s5, v0"); a("v_cmp_eq_u32 vcc, 0, v18"); a("v_cndmask_b32 v16, v16, 0, vcc")
        a(f"s_mov_b32 s5, {sync.FL_NONCE}")
        a(f"buffer_store_dword v17, v16, s[{SRD_FL}:{SRD_FL+3}], s5 offen sc1")
    for f in cts: pg2.emit(a, f)
    for f in early: pg2.emit(a, f)
    if not final: sync.poll_block(a, pg1.V_P1, pg1.V_PA, 1, stubs)
    a("s_waitcnt vmcnt(0)")
    zero_stamps(a, 0, nst_end)
    a.restore(st_end)
    a.label(lg2, 2)
    a.flush()
    def wpre():
        pg2.w_setup(a, True)
        for n in range(WPRE): pg2.emit(a, pg2.w_load(n // 2, n % 2))
    pg2.body(a, final, stubs, wpre, [lambda: pg1.post_h(a, True, last), lambda: sync.poll_issue(a, 7, pg1.V_PA), lambda: sync.poll_check(a, 7, pg1.V_PA, 2, stubs)])
    a.flush()

def main():
    a = Asm(); a.stamps = STAMPS
    stubs = []
    if "--cyc" in sys.argv: a.stampop = "s_memtime"
    a.raw(f".globl {NAME}\n.p2align 8\n.type {NAME},@function\n{NAME}:")
    a("s_load_dwordx16 s[16:31], s[0:1], 0")
    a("s_load_dwordx4 s[32:35], s[0:1], 64")
    a("s_cmp_ge_u32 s2, 256"); a("s_cbranch_scc1 L_exit")
    if os.environ.get('SCR'): a("s_and_b32 s5, s2, 7"); a("s_lshl_b32 s5, s5, 5"); a("s_lshr_b32 s2, s2, 3"); a("s_or_b32 s2, s2, s5")
    if STAMPS: a("s_mov_b32 s100, 0"); a("v_mov_b32 v15, 0")
    a.stamp()
    a("s_getpc_b64 s[6:7]"); a("s_lshr_b32 s5, s2, 3"); a("s_lshl_b32 s5, s5, 7")
    a(f"v_min_u32 v2, {CODE_KB//4 - 1}, v0"); a("v_lshl_add_u32 v2, v2, 12, s5")
    a("global_load_dword v236, v2, s[6:7]")
    a("v_and_b32 v1, 63, v0"); a("v_lshrrev_b32 v2, 6, v0"); a(f"v_readfirstlane_b32 s{S_W}, v2")
    def consts(a):
        srd(a, SRD_FL, K_WS, sync.FL_SIZE, WS_FLAG)
        a(f"s_load_dword s{S_NONCE}, s[{SRD_FL}:{SRD_FL+1}], {sync.FL_NONCE}")
        a(f"s_mov_b32 s{S_SAN}, -2"); a(f"s_mov_b32 s{S_HI}, 0xffff0000"); a(f"s_mov_b32 s{S_TM}, 0x00010001"); a(f"s_mov_b32 s{S_NTM}, 0xfffefffe")
    def prep(mid=None):
        pcol.setmap(0)
        pcol.task(a); pcol.idx(a); pcol.tables1(a); pcol.tables2(a)
        if mid: mid()
        pcol.tables3(a); pg1.task(a); pg2.task(a)
        a("s_waitcnt lgkmcnt(0)")
    ldone = "L_p1done"
    p1.decode(a)
    st = a.save(); nst = a.nst
    def path(label, state, n):
        a.restore(state); a.nst = n; a.label(label)
    a(f"s_cmp_lg_u32 s{p1.S_TY}, 0"); a("s_cbranch_scc1 L_h234")
    p1.t1_head(a); a("s_waitcnt lgkmcnt(0)"); a.stamp(); op1 = p1.t1_dma(a); a("s_branch L_t1"); st1 = a.save(); n1 = a.nst
    path("L_h234", st, nst)
    a(f"s_cmp_lg_u32 s{p1.S_TY}, 3"); a("s_cbranch_scc1 L_h23")
    p1.t4_pre(a); a("s_waitcnt lgkmcnt(0)"); a.stamp(); p1.t4_dma(a); a("s_branch L_t4"); st4 = a.save()
    path("L_h23", st, nst)
    a("s_waitcnt lgkmcnt(0)"); a.stamp(); consts(a); st2 = a.save()
    a(f"s_cmp_eq_u32 s{p1.S_TY}, 2"); a("s_cbranch_scc1 L_t2")
    p1.t3(a, prep, stubs); a(f"s_branch {ldone}")
    path("L_t2", st2, n1); p1.t2(a, prep, stubs); a(f"s_branch {ldone}")
    path("L_t4", st4, n1); p1.t4(a, lambda: consts(a), prep); a(f"s_branch {ldone}")
    path("L_t1", st1, n1); consts(a); p1.t1(a, op1, prep, stubs)
    a.label(ldone, 2)
    a.vm = []; a.lg = []
    a.flush()
    layer(a, 0, stubs)
    layer(a, 1, stubs)
    if STAMPS:
        a("s_waitcnt vmcnt(0)"); a.stamp(); a.flush()
        a("s_lshl_b32 s5, s2, 10"); a(f"s_add_u32 s5, s5, {WS_STAMP}")
        a("v_lshl_add_u32 v1, v0, 2, s5")
        a(f"global_store_dword v1, v15, s[{K_WS}:{K_WS+1}]")
    a.raw("L_exit:\n    s_endpgm")
    for s in stubs:
        a.reset(); s(a)
    a.raw(f"L_codeend:\n.fill ({CODE_KB*1024} + 256 - (L_codeend - {NAME})) / 4, 4, 0xbf810000")
    out = [HDR.rstrip("\n"), "; @launch grid=(256,1,1) block=(256,1,1) lds=163840", '.amdgcn_target "amdgcn-amd-amdhsa--gfx950"\n.text', a.text(), '.section .rodata,"a"', f""".p2align 6
.amdhsa_kernel {NAME}
  .amdhsa_next_free_vgpr 512
  .amdhsa_next_free_sgpr 102
  .amdhsa_accum_offset 256
  .amdhsa_group_segment_fixed_size 0
  .amdhsa_kernarg_size 80
  .amdhsa_user_sgpr_count 2
  .amdhsa_user_sgpr_kernarg_segment_ptr 1
  .amdhsa_system_sgpr_workgroup_id_x 1
  .amdhsa_float_denorm_mode_32 3
.end_amdhsa_kernel"""]
    return "\n".join(out)

class NoFit(Exception): pass
pg2.WLATE = int(os.environ.get("WLATE", 0)); pg2.CTLATE = int(os.environ.get("CTLATE", 0))
while True:
    try:
        txt = main(); break
    except pg1.NoFit as e:
        if e.args[0] == 0: pg2.WLATE += 1
        else: pg2.EARLY[1] -= 1
        assert pg2.WLATE <= 14 and pg2.CTLATE <= 16
print(txt); print("WLATE", pg2.WLATE, "EARLY", pg2.EARLY, file=sys.stderr)
```

```python
import sys
from asmdsl import *
from maps import *
from regs import *
import p1, pcol, pg1, pg2, sync

STAMPS = "--stamps" in sys.argv
NAME = "interleave_layers__spectral_gfnet__glu_gated_reglu__prompt_kernel"
HDR = open("interleave_layers__spectral_gfnet__glu_gated_reglu__prompt.s.ref").read().split("; Override launch")[0]
CODE_KB = 88
import os
W1POST = int(os.environ.get('W1POST', 10))

def zero_stamps(a, lo, hi):
    if STAMPS:
        for i in range(lo, hi): a(f"s_mov_b32 s{84+2*i}, 0")

PLAN = [[int(x) for x in os.environ.get('PLAN0', '0,0,0,0,8,4').split(',')], [int(x) for x in os.environ.get('PLAN1', '0,5,3,4,4,0').split(',')]]
PH = [int(x) for x in os.environ.get('PH', '148,170').split(',')]
E0MIN = int(os.environ.get('E0MIN', 150))
WPRE = int(os.environ.get('WPRE', 8)); POLLH = int(os.environ.get('POLLH', 1)); PCK = int(os.environ.get('PCK', 3))
def layer(a, l, stubs):
    final = l == 1
    VL = pcol.V_SO if not final else pcol.V_PL + 3
    if not final: wl = [pg1.w_load(ks, VL) for ks in range(32)]
    else: wl = [pg2.w_load(n // 2, n % 2, VL) for n in range(WPRE, 44)]
    pcol.setmap(l)
    P = 84
    def hook(k):
        if not final:
            if k == 0: sync.poll_check(a, P, P + 1, 0, stubs); pcol.load_filter(a)
            if k == POLLH: sync.poll_issue(a, P + 2, P + 3)
            if k == PCK: sync.poll_check(a, P + 2, P + 3, 0, stubs)
        for _ in range(PLAN[l][k + 1]):
            assert final or k >= PCK
            pg1.emit(a, wl.pop(0))
    if final: a(f"v_mov_b32 v{VL}, v{pg2.V_WL}")
    pcol.addrs(a, l)
    if final: pcol.load_filter(a)
    pcol.reload(a)
    if final: pcol.idx(a); pcol.tables3(a); pcol.selector(a)
    else:
        a(f"s_lshl_b32 s5, s{S_W}, 4"); a(f"v_and_b32 v{P+1}, 15, v1"); a(f"v_add_u32 v{P+1}, s5, v{P+1}"); a(f"v_min_u32 v{P+1}, 62, v{P+1}")
        a(f"v_lshlrev_b32 v{P+1}, 6, v{P+1}"); a(f"v_add_u32 v{P+1}, {sync.FL_0}, v{P+1}")
        a(f"s_lshl_b32 s5, s{p1.S_B}, 2"); a(f"s_add_u32 s5, s5, s{S_W}"); a("s_lshl_b32 s5, s5, 6"); a(f"s_cmp_eq_u32 s{p1.S_TY}, 1"); a(f"s_cselect_b32 s63, s5, {OOB}")
        sync.post_prep(a, P + 4, 0, True)
    pcol.addrs2(a)
    a.stamp()
    a("s_waitcnt vmcnt(0)")
    if not final:
        sync.poll_check(a, p1.V_PL, p1.V_PL + 1, 0, stubs)
    a.stamp()
    pcol.loads(a, l)
    if not final:
        sync.poll_issue(a, P, P + 1)
        sync.post_do(a, P + 4, 63)
        pg1.w_setup(a)
        a(f"s_lshr_b32 s5, s{S_GAM}, 1"); a("s_min_u32 s5, s5, 42"); a("s_lshl_b32 s5, s5, 2")
        a(f"v_bfe_u32 v{P+3}, v0, 2, 1"); a(f"v_mul_u32_u24 v{P+3}, 172, v{P+3}"); a(f"v_and_b32 v{P+2}, 3, v0"); a(f"v_add3_u32 v{P+3}, v{P+3}, v{P+2}, s5"); a(f"v_lshlrev_b32 v{P+3}, 6, v{P+3}")
    hook(-1)
    a.stamp()
    op = pcol.compute(a, l, hook, stubs)
    a.stamp()
    pg1.addrs(a, l)
    if not final: wl = [pg1.w_load(ks, pg1.V_L16) for ks in range(32 - len(wl), 32)]
    if not final: pg2.w_setup(a, False); pg2.h_setup(a)
    pg2.wl_setup(a, pg2.V_WL)
    pg2.addrs(a, final)
    if not final:
        for _ in range(W1POST): pg1.emit(a, wl.pop(0))
    a.wait_vm(op); a("s_barrier")
    a.stamp(); a.flush()
    lst, lg2 = f"L_g1stats{l}", f"L_g2{l}"
    a(f"s_cmp_eq_u32 s{S_FT}, 22"); a(f"s_cbranch_scc1 {lst}")
    st = a.save()
    done = 44 - len(wl) if final else 0
    rest = [pg2.w_load(n // 2, n % 2) for n in range(done, 44 if final else 44 - 2 * pg2.WLATE)]
    cts = [pg2.ct_w(n) for n in range(16)] if final else []
    early = [pg2.h_load(0, i) for i in range(pg2.EARLY[l])]
    e0 = max(E0MIN, 188 - int(pg1.VGAP[l] * pg2.EARLY[l] + 0.99) - pg1.PAUSE)
    if final: extra = [(0, f) for f in rest] + [(112, f) for f in cts] + [(E0MIN, f) for f in early]
    else: extra = [(-1, f) for f in wl] + [(46, f) for f in rest] + [(e0, f) for f in early]
    pg1.set_slots(*((10, 16) if final else (8, 176)))
    events = [] if final else [(PH[0], lambda last: pg1.post_h(a, False, last)), (PH[1], lambda last: sync.poll_issue(a, pg1.V_P1, pg1.V_PA))]
    last = pg1.mainloop(a, l, extra, [], events, stubs)
    if not final: sync.poll_check(a, pg1.V_P1, pg1.V_PA, 1, stubs)
    a(f"s_branch {lg2}")
    nst_end = a.nst; st_end = a.save()
    a.restore(st); a.label(lst)
    pg1.stats(a, l, stubs, rest)
    if not final:
        a(f"v_mov_b32 v16, {OOB}"); a(f"v_mov_b32 v17, s{S_NONCE}")
        a("s_lshl_b32 s5, s2, 8"); a("v_or_b32 v18, s5, v0"); a("v_cmp_eq_u32 vcc, 0, v18"); a("v_cndmask_b32 v16, v16, 0, vcc")
        a(f"s_mov_b32 s5, {sync.FL_NONCE}")
        a(f"buffer_store_dword v17, v16, s[{SRD_FL}:{SRD_FL+3}], s5 offen sc1")
    for f in cts: pg2.emit(a, f)
    for f in early: pg2.emit(a, f)
    if not final: sync.poll_block(a, pg1.V_P1, pg1.V_PA, 1, stubs)
    a("s_waitcnt vmcnt(0)")
    zero_stamps(a, 0, nst_end)
    a.restore(st_end)
    a.label(lg2, 2)
    a.flush()
    def wpre():
        pg2.w_setup(a, True)
        for n in range(WPRE): pg2.emit(a, pg2.w_load(n // 2, n % 2))
    pg2.body(a, final, stubs, wpre, [lambda: pg1.post_h(a, True, last), lambda: sync.poll_issue(a, 7, pg1.V_PA), lambda: sync.poll_check(a, 7, pg1.V_PA, 2, stubs)])
    a.flush()

def main():
    a = Asm(); a.stamps = STAMPS
    stubs = []
    if "--cyc" in sys.argv: a.stampop = "s_memtime"
    a.raw(f".globl {NAME}\n.p2align 8\n.type {NAME},@function\n{NAME}:")
    a("s_load_dwordx16 s[16:31], s[0:1], 0")
    a("s_load_dwordx4 s[32:35], s[0:1], 64")
    a("s_cmp_ge_u32 s2, 256"); a("s_cbranch_scc1 L_exit")
    if os.environ.get('SCR'): a("s_and_b32 s5, s2, 7"); a("s_lshl_b32 s5, s5, 5"); a("s_lshr_b32 s2, s2, 3"); a("s_or_b32 s2, s2, s5")
    if STAMPS: a("s_mov_b32 s100, 0"); a("v_mov_b32 v15, 0")
    a.stamp()
    a("s_getpc_b64 s[6:7]"); a("s_lshr_b32 s5, s2, 3"); a("s_lshl_b32 s5, s5, 7")
    a(f"v_min_u32 v2, {CODE_KB//4 - 1}, v0"); a("v_lshl_add_u32 v2, v2, 12, s5")
    a("global_load_dword v236, v2, s[6:7]")
    a("v_and_b32 v1, 63, v0"); a("v_lshrrev_b32 v2, 6, v0"); a(f"v_readfirstlane_b32 s{S_W}, v2")
    def consts(a):
        srd(a, SRD_FL, K_WS, sync.FL_SIZE, WS_FLAG)
        a(f"s_load_dword s{S_NONCE}, s[{SRD_FL}:{SRD_FL+1}], {sync.FL_NONCE}")
        a(f"s_mov_b32 s{S_SAN}, -2"); a(f"s_mov_b32 s{S_HI}, 0xffff0000"); a(f"s_mov_b32 s{S_TM}, 0x00010001"); a(f"s_mov_b32 s{S_NTM}, 0xfffefffe")
    def prep(mid=None):
        pcol.setmap(0)
        pcol.task(a); pcol.idx(a); pcol.tables1(a); pcol.tables2(a)
        if mid: mid()
        pcol.tables3(a); pg1.task(a); pg2.task(a)
        a("s_waitcnt lgkmcnt(0)")
    ldone = "L_p1done"
    p1.decode(a)
    st = a.save(); nst = a.nst
    def path(label, state, n):
        a.restore(state); a.nst = n; a.label(label)
    a(f"s_cmp_lg_u32 s{p1.S_TY}, 0"); a("s_cbranch_scc1 L_h234")
    p1.t1_head(a); a("s_waitcnt lgkmcnt(0)"); a.stamp(); op1 = p1.t1_dma(a); a("s_branch L_t1"); st1 = a.save(); n1 = a.nst
    path("L_h234", st, nst)
    a(f"s_cmp_lg_u32 s{p1.S_TY}, 3"); a("s_cbranch_scc1 L_h23")
    p1.t4_pre(a); a("s_waitcnt lgkmcnt(0)"); a.stamp(); p1.t4_dma(a); a("s_branch L_t4"); st4 = a.save()
    path("L_h23", st, nst)
    a("s_waitcnt lgkmcnt(0)"); a.stamp(); consts(a); st2 = a.save()
    a(f"s_cmp_eq_u32 s{p1.S_TY}, 2"); a("s_cbranch_scc1 L_t2")
    p1.t3(a, prep, stubs); a(f"s_branch {ldone}")
    path("L_t2", st2, n1); p1.t2(a, prep, stubs); a(f"s_branch {ldone}")
    path("L_t4", st4, n1); p1.t4(a, lambda: consts(a), prep); a(f"s_branch {ldone}")
    path("L_t1", st1, n1); consts(a); p1.t1(a, op1, prep, stubs)
    a.label(ldone, 2)
    a.vm = []; a.lg = []
    a.flush()
    layer(a, 0, stubs)
    layer(a, 1, stubs)
    if STAMPS:
        a("s_waitcnt vmcnt(0)"); a.stamp(); a.flush()
        a("s_lshl_b32 s5, s2, 10"); a(f"s_add_u32 s5, s5, {WS_STAMP}")
        a("v_lshl_add_u32 v1, v0, 2, s5")
        a(f"global_store_dword v1, v15, s[{K_WS}:{K_WS+1}]")
        if os.environ.get('DBGOUT'):
            sel = [1, 3, 5, 7, 9, 10, 13, 16, 22, 26, 27, 30, 33, 39, 40]
            a("v_readlane_b32 s5, v15, 0"); a("v_mov_b32 v2, 0")
            for i, k in enumerate(sel):
                a(f"v_readlane_b32 s6, v15, {k}"); a("s_nop 3"); a("s_sub_u32 s6, s6, s5"); a(f"v_writelane_b32 v2, s6, {i}")
            srd(a, 8, K_DBG, 60)
            a("s_cmp_eq_u32 s2, 8"); a("s_cselect_b32 s10, s10, 0"); a("v_lshlrev_b32 v3, 2, v0")
            a("buffer_store_dword v2, v3, s[8:11], 0 offen")
    a.raw("L_exit:\n    s_endpgm")
    for s in stubs:
        a.reset(); s(a)
    a.raw(f"L_codeend:\n.fill ({CODE_KB*1024} + 256 - (L_codeend - {NAME})) / 4, 4, 0xbf810000")
    out = [HDR.rstrip("\n"), "; @launch grid=(256,1,1) block=(256,1,1) lds=163840", '.amdgcn_target "amdgcn-amd-amdhsa--gfx950"\n.text', a.text(), '.section .rodata,"a"', f""".p2align 6
.amdhsa_kernel {NAME}
  .amdhsa_next_free_vgpr 512
  .amdhsa_next_free_sgpr 102
  .amdhsa_accum_offset 256
  .amdhsa_group_segment_fixed_size 0
  .amdhsa_kernarg_size 80
  .amdhsa_user_sgpr_count 2
  .amdhsa_user_sgpr_kernarg_segment_ptr 1
  .amdhsa_system_sgpr_workgroup_id_x 1
  .amdhsa_float_denorm_mode_32 3
.end_amdhsa_kernel"""]
    return "\n".join(out)

class NoFit(Exception): pass
pg2.WLATE = int(os.environ.get("WLATE", 0)); pg2.CTLATE = int(os.environ.get("CTLATE", 0))
while True:
    try:
        txt = main(); break
    except pg1.NoFit as e:
        if e.args[0] == 0: pg2.WLATE += 1
        else: pg2.EARLY[1] -= 1
        assert pg2.WLATE <= 14 and pg2.CTLATE <= 16
print(txt); print("WLATE", pg2.WLATE, "EARLY", pg2.EARLY, file=sys.stderr)
```

```python
import sys
from asmdsl import *
from maps import *
from regs import *
import p1, pcol, pg1, pg2, sync

STAMPS = "--stamps" in sys.argv
NAME = "interleave_layers__spectral_gfnet__glu_gated_reglu__prompt_kernel"
HDR = open("interleave_layers__spectral_gfnet__glu_gated_reglu__prompt.s.ref").read().split("; Override launch")[0]
CODE_KB = 88
import os
W1POST = int(os.environ.get('W1POST', 10))

def zero_stamps(a, lo, hi):
    if STAMPS:
        for i in range(lo, hi): a(f"s_mov_b32 s{84+2*i}, 0")

PLAN = [[int(x) for x in os.environ.get('PLAN0', '0,0,0,0,8,4').split(',')], [int(x) for x in os.environ.get('PLAN1', '0,5,3,4,4,0').split(',')]]
PH = [int(x) for x in os.environ.get('PH', '148,170').split(',')]
E0MIN = int(os.environ.get('E0MIN', 150))
WPRE = int(os.environ.get('WPRE', 8)); POLLH = int(os.environ.get('POLLH', 1)); PCK = int(os.environ.get('PCK', 3))
def layer(a, l, stubs):
    final = l == 1
    VL = pcol.V_SO if not final else pcol.V_PL + 3
    if not final: wl = [pg1.w_load(ks, VL) for ks in range(32)]
    else: wl = [pg2.w_load(n // 2, n % 2, VL) for n in range(WPRE, 44)]
    pcol.setmap(l)
    P = 84
    def hook(k):
        if not final:
            if k == 0: sync.poll_check(a, P, P + 1, 0, stubs); pcol.load_filter(a)
            if k == POLLH: sync.poll_issue(a, P + 2, P + 3)
            if k == PCK: sync.poll_check(a, P + 2, P + 3, 0, stubs)
        for _ in range(PLAN[l][k + 1]):
            assert final or k >= PCK
            pg1.emit(a, wl.pop(0))
    if final: a(f"v_mov_b32 v{VL}, v{pg2.V_WL}")
    pcol.addrs(a, l)
    if final: pcol.load_filter(a)
    pcol.reload(a)
    if final: pcol.idx(a); pcol.tables3(a); pcol.selector(a)
    else:
        a(f"s_lshl_b32 s5, s{S_W}, 4"); a(f"v_and_b32 v{P+1}, 15, v1"); a(f"v_add_u32 v{P+1}, s5, v{P+1}"); a(f"v_min_u32 v{P+1}, 62, v{P+1}")
        a(f"v_lshlrev_b32 v{P+1}, 6, v{P+1}"); a(f"v_add_u32 v{P+1}, {sync.FL_0}, v{P+1}")
        a(f"s_lshl_b32 s5, s{p1.S_B}, 2"); a(f"s_add_u32 s5, s5, s{S_W}"); a("s_lshl_b32 s5, s5, 6"); a(f"s_cmp_eq_u32 s{p1.S_TY}, 1"); a(f"s_cselect_b32 s63, s5, {OOB}")
        sync.post_prep(a, P + 4, 0, True)
    pcol.addrs2(a)
    a.stamp()
    a("s_waitcnt vmcnt(0)")
    if not final:
        sync.poll_check(a, p1.V_PL, p1.V_PL + 1, 0, stubs)
    a.stamp()
    pcol.loads(a, l)
    if not final:
        sync.poll_issue(a, P, P + 1)
        sync.post_do(a, P + 4, 63)
        pg1.w_setup(a)
        a(f"s_lshr_b32 s5, s{S_GAM}, 1"); a("s_min_u32 s5, s5, 42"); a("s_lshl_b32 s5, s5, 2")
        a(f"v_bfe_u32 v{P+3}, v0, 2, 1"); a(f"v_mul_u32_u24 v{P+3}, 172, v{P+3}"); a(f"v_and_b32 v{P+2}, 3, v0"); a(f"v_add3_u32 v{P+3}, v{P+3}, v{P+2}, s5"); a(f"v_lshlrev_b32 v{P+3}, 6, v{P+3}")
    hook(-1)
    a.stamp()
    op = pcol.compute(a, l, hook, stubs)
    a.stamp()
    pg1.addrs(a, l)
    if not final: wl = [pg1.w_load(ks, pg1.V_L16) for ks in range(32 - len(wl), 32)]
    if not final: pg2.w_setup(a, False); pg2.h_setup(a)
    pg2.wl_setup(a, pg2.V_WL)
    pg2.addrs(a, final)
    if not final:
        for _ in range(W1POST): pg1.emit(a, wl.pop(0))
    a.wait_vm(op); a("s_barrier")
    a.stamp(); a.flush()
    lst, lg2 = f"L_g1stats{l}", f"L_g2{l}"
    a(f"s_cmp_eq_u32 s{S_FT}, 22"); a(f"s_cbranch_scc1 {lst}")
    st = a.save()
    done = 44 - len(wl) if final else 0
    rest = [pg2.w_load(n // 2, n % 2) for n in range(done, 44 if final else 44 - 2 * pg2.WLATE)]
    cts = [pg2.ct_w(n) for n in range(16)] if final else []
    early = [pg2.h_load(0, i) for i in range(pg2.EARLY[l])]
    e0 = max(E0MIN, 188 - int(pg1.VGAP[l] * pg2.EARLY[l] + 0.99) - pg1.PAUSE)
    if final: extra = [(0, f) for f in rest] + [(112, f) for f in cts] + [(E0MIN, f) for f in early]
    else: extra = [(-1, f) for f in wl] + [(46, f) for f in rest] + [(e0, f) for f in early]
    pg1.set_slots(*((10, 16) if final else (8, 176)))
    events = [] if final else [(PH[0], lambda last: pg1.post_h(a, False, last)), (PH[1], lambda last: sync.poll_issue(a, pg1.V_P1, pg1.V_PA))]
    last = pg1.mainloop(a, l, extra, [], events, stubs)
    if not final: sync.poll_check(a, pg1.V_P1, pg1.V_PA, 1, stubs)
    a(f"s_branch {lg2}")
    nst_end = a.nst; st_end = a.save()
    a.restore(st); a.label(lst)
    pg1.stats(a, l, stubs, rest)
    if not final:
        a(f"v_mov_b32 v16, {OOB}"); a(f"v_mov_b32 v17, s{S_NONCE}")
        a("s_lshl_b32 s5, s2, 8"); a("v_or_b32 v18, s5, v0"); a("v_cmp_eq_u32 vcc, 0, v18"); a("v_cndmask_b32 v16, v16, 0, vcc")
        a(f"s_mov_b32 s5, {sync.FL_NONCE}")
        a(f"buffer_store_dword v17, v16, s[{SRD_FL}:{SRD_FL+3}], s5 offen sc1")
    for f in cts: pg2.emit(a, f)
    for f in early: pg2.emit(a, f)
    if not final: sync.poll_block(a, pg1.V_P1, pg1.V_PA, 1, stubs)
    a("s_waitcnt vmcnt(0)")
    zero_stamps(a, 0, nst_end)
    a.restore(st_end)
    a.label(lg2, 2)
    a.flush()
    def wpre():
        pg2.w_setup(a, True)
        for n in range(WPRE): pg2.emit(a, pg2.w_load(n // 2, n % 2))
    pg2.body(a, final, stubs, wpre, [lambda: pg1.post_h(a, True, last), lambda: sync.poll_issue(a, 7, pg1.V_PA), lambda: sync.poll_check(a, 7, pg1.V_PA, 2, stubs)])
    a.flush()

def main():
    a = Asm(); a.stamps = STAMPS
    stubs = []
    if "--cyc" in sys.argv: a.stampop = "s_memtime"
    a.raw(f".globl {NAME}\n.p2align 8\n.type {NAME},@function\n{NAME}:")
    a("s_load_dwordx16 s[16:31], s[0:1], 0")
    a("s_load_dwordx4 s[32:35], s[0:1], 64")
    a("s_cmp_ge_u32 s2, 256"); a("s_cbranch_scc1 L_exit")
    if os.environ.get('SCR'): a("s_and_b32 s5, s2, 7"); a("s_lshl_b32 s5, s5, 5"); a("s_lshr_b32 s2, s2, 3"); a("s_or_b32 s2, s2, s5")
    if STAMPS: a("s_mov_b32 s100, 0"); a("v_mov_b32 v15, 0")
    a.stamp()
    a("s_getpc_b64 s[6:7]"); a("s_lshr_b32 s5, s2, 3"); a("s_lshl_b32 s5, s5, 7")
    a(f"v_min_u32 v2, {CODE_KB//4 - 1}, v0"); a("v_lshl_add_u32 v2, v2, 12, s5")
    a("global_load_dword v236, v2, s[6:7]")
    a("v_and_b32 v1, 63, v0"); a("v_lshrrev_b32 v2, 6, v0"); a(f"v_readfirstlane_b32 s{S_W}, v2")
    def consts(a):
        srd(a, SRD_FL, K_WS, sync.FL_SIZE, WS_FLAG)
        a(f"s_load_dword s{S_NONCE}, s[{SRD_FL}:{SRD_FL+1}], {sync.FL_NONCE}")
        a(f"s_mov_b32 s{S_SAN}, -2"); a(f"s_mov_b32 s{S_HI}, 0xffff0000"); a(f"s_mov_b32 s{S_TM}, 0x00010001"); a(f"s_mov_b32 s{S_NTM}, 0xfffefffe")
    def prep(mid=None):
        pcol.setmap(0)
        pcol.task(a); pcol.idx(a); pcol.tables1(a); pcol.tables2(a)
        if mid: mid()
        pcol.tables3(a); pg1.task(a); pg2.task(a)
        a("s_waitcnt lgkmcnt(0)")
    ldone = "L_p1done"
    p1.decode(a)
    st = a.save(); nst = a.nst
    def path(label, state, n):
        a.restore(state); a.nst = n; a.label(label)
    a(f"s_cmp_lg_u32 s{p1.S_TY}, 0"); a("s_cbranch_scc1 L_h234")
    p1.t1_head(a); a("s_waitcnt lgkmcnt(0)"); a.stamp(); op1 = p1.t1_dma(a); a("s_branch L_t1"); st1 = a.save(); n1 = a.nst
    path("L_h234", st, nst)
    a(f"s_cmp_lg_u32 s{p1.S_TY}, 3"); a("s_cbranch_scc1 L_h23")
    p1.t4_pre(a); a("s_waitcnt lgkmcnt(0)"); a.stamp(); p1.t4_dma(a); a("s_branch L_t4"); st4 = a.save()
    path("L_h23", st, nst)
    a("s_waitcnt lgkmcnt(0)"); a.stamp(); consts(a); st2 = a.save()
    a(f"s_cmp_eq_u32 s{p1.S_TY}, 2"); a("s_cbranch_scc1 L_t2")
    p1.t3(a, prep, stubs); a(f"s_branch {ldone}")
    path("L_t2", st2, n1); p1.t2(a, prep, stubs); a(f"s_branch {ldone}")
    path("L_t4", st4, n1); p1.t4(a, lambda: consts(a), prep); a(f"s_branch {ldone}")
    path("L_t1", st1, n1); consts(a); p1.t1(a, op1, prep, stubs)
    a.label(ldone, 2)
    a.vm = []; a.lg = []
    a.flush()
    layer(a, 0, stubs)
    layer(a, 1, stubs)
    if STAMPS:
        a("s_waitcnt vmcnt(0)"); a.stamp(); a.flush()
        a("s_lshl_b32 s5, s2, 10"); a(f"s_add_u32 s5, s5, {WS_STAMP}")
        a("v_lshl_add_u32 v1, v0, 2, s5")
        a(f"global_store_dword v1, v15, s[{K_WS}:{K_WS+1}]")
        if os.environ.get('ENC'):
            k = int(os.environ['ENC'])
            a("v_readlane_b32 s5, v15, 0"); a(f"v_readlane_b32 s6, v15, {k}"); a("s_nop 3"); a("s_sub_u32 s7, s6, s5")
            a("s_cmp_eq_u32 s6, 0"); a("s_cselect_b32 s7, 0, s7")
            lo, hi = [int(x) for x in os.environ.get('ENCW', '0,32').split(',')]
            a(f"s_cmp_lt_u32 s2, {8*lo}"); a("s_cselect_b32 s7, 0, s7"); a(f"s_cmp_ge_u32 s2, {8*hi}"); a("s_cselect_b32 s7, 0, s7"); a("s_lshl_b32 s7, s7, 2"); a("s_add_u32 s7, s7, 10000")
            a.label("L_enc"); a("s_memrealtime s[8:9]"); a("s_waitcnt lgkmcnt(0)"); a("s_sub_u32 s8, s8, s5"); a("s_cmp_lt_u32 s8, s7"); a("s_cbranch_scc1 L_enc")
        if os.environ.get('DBGOUT'):
            sel = [1, 3, 5, 7, 9, 10, 13, 16, 22, 26, 27, 30, 33, 39, 40]
            a("v_readlane_b32 s5, v15, 0"); a("v_mov_b32 v2, 0")
            for i, k in enumerate(sel):
                a(f"v_readlane_b32 s6, v15, {k}"); a("s_nop 3"); a("s_sub_u32 s6, s6, s5"); a(f"v_writelane_b32 v2, s6, {i}")
            srd(a, 8, K_DBG, 60)
            a("s_cmp_eq_u32 s2, 8"); a("s_cselect_b32 s10, s10, 0"); a("v_lshlrev_b32 v3, 2, v0")
            a("buffer_store_dword v2, v3, s[8:11], 0 offen")
    a.raw("L_exit:\n    s_endpgm")
    for s in stubs:
        a.reset(); s(a)
    a.raw(f"L_codeend:\n.fill ({CODE_KB*1024} + 256 - (L_codeend - {NAME})) / 4, 4, 0xbf810000")
    out = [HDR.rstrip("\n"), "; @launch grid=(256,1,1) block=(256,1,1) lds=163840", '.amdgcn_target "amdgcn-amd-amdhsa--gfx950"\n.text', a.text(), '.section .rodata,"a"', f""".p2align 6
.amdhsa_kernel {NAME}
  .amdhsa_next_free_vgpr 512
  .amdhsa_next_free_sgpr 102
  .amdhsa_accum_offset 256
  .amdhsa_group_segment_fixed_size 0
  .amdhsa_kernarg_size 80
  .amdhsa_user_sgpr_count 2
  .amdhsa_user_sgpr_kernarg_segment_ptr 1
  .amdhsa_system_sgpr_workgroup_id_x 1
  .amdhsa_float_denorm_mode_32 3
.end_amdhsa_kernel"""]
    return "\n".join(out)

class NoFit(Exception): pass
pg2.WLATE = int(os.environ.get("WLATE", 0)); pg2.CTLATE = int(os.environ.get("CTLATE", 0))
while True:
    try:
        txt = main(); break
    except pg1.NoFit as e:
        if e.args[0] == 0: pg2.WLATE += 1
        else: pg2.EARLY[1] -= 1
        assert pg2.WLATE <= 14 and pg2.CTLATE <= 16
print(txt); print("WLATE", pg2.WLATE, "EARLY", pg2.EARLY, file=sys.stderr)
```
